```python
import torch

def _softmax(x, axis=-1):
    return torch.softmax(x, dim=axis)

def _gelu(x):
    return torch.nn.functional.gelu(x, approximate='tanh')

def _silu(x):
    return torch.nn.functional.silu(x)

def _sigmoid(x):
    return torch.sigmoid(x)

def _layernorm(x, axis=-1, eps=1e-05):
    m = x.mean(dim=axis, keepdim=True)
    v = x.var(dim=axis, keepdim=True, unbiased=False)
    return (x - m) / torch.sqrt(v + eps)

def _scatter_add(tgt, idx, src, axis=0):
    return tgt.clone().index_add_(axis, idx, src)

def _segment_sum(src, seg, n):
    out = torch.zeros((n,) + src.shape[1:], dtype=src.dtype)
    return out.index_add_(0, seg, src)

def _pad(x, pw):
    flat = tuple((v for pair in reversed(pw) for v in pair))
    return torch.nn.functional.pad(x, flat)
kernel_name = 'adaLN_cond__sliding_block_cached__glu_gated_bilinear__prompt'

def setup_inputs():

    _w = lambda a: (lambda t: t.to(torch.bfloat16) if t.is_floating_point() else t)(torch.as_tensor(a))

    def _A_setup():
        B, Sq, D = (1, 2048, 640)
        Hq, Hkv, Sk, Dh = (32, 32, 2048, 128)
        assert Hq % Hkv == 0, (Hq, Hkv)
        return {'x': _w((lambda *s: torch.randn(*s, dtype=torch.bfloat16) * 0.05)(B, Sq, D)), 'k_cache': _w((lambda *s: torch.randn(*s, dtype=torch.bfloat16) * 1.6)(B, Hkv, Sk, Dh)), 'v_cache': _w((lambda *s: torch.randn(*s, dtype=torch.bfloat16) * 0.8)(B, Hkv, Sk, Dh)), 'wq': _w((lambda *s: torch.randn(*s, dtype=torch.bfloat16) * 1.6)(D, Hq * Dh) * D ** (-0.5)), 'wo': _w((lambda *s: torch.randn(*s, dtype=torch.bfloat16) * 0.8)(Hq * Dh, D) * (Hq * Dh) ** (-0.5))}
    _A_in = _A_setup()

    def _B_setup():
        B, S, D, F = (1, 2048, 640, 1728)
        return {'x': _w((lambda *s: torch.randn(*s, dtype=torch.bfloat16) * 0.05)(B, S, D)), 'w_gate': _w((lambda *s: torch.randn(*s, dtype=torch.bfloat16) * 0.4)(D, F) * D ** (-0.5)), 'w_up': _w((lambda *s: torch.randn(*s, dtype=torch.bfloat16) * 0.4)(D, F) * D ** (-0.5)), 'w_down': _w((lambda *s: torch.randn(*s, dtype=torch.bfloat16) * 0.4)(F, D) * F ** (-0.5))}
    _B_in = _B_setup()
    return {'A_x': _A_in['x'], 'A_k_cache': _A_in['k_cache'], 'A_v_cache': _A_in['v_cache'], 'A_wq': _A_in['wq'], 'A_wo': _A_in['wo'], 'B_x': _B_in['x'], 'B_w_gate': _B_in['w_gate'], 'B_w_up': _B_in['w_up'], 'B_w_down': _B_in['w_down'], 'c': _w((lambda *s: torch.randn(*s, dtype=torch.bfloat16) * 0.2)(1, 640) * 8.0), 'w_mod': _w((lambda *s: torch.randn(*s, dtype=torch.bfloat16) * 0.2)(640, 6 * 640) * 640 ** (-0.5) * 8.0)}

def reference(A_x, A_k_cache, A_v_cache, A_wq, A_wo, B_x, B_w_gate, B_w_up, B_w_down, c, w_mod):

    def _A_ref(x, k_cache, v_cache, wq, wo):
        B, Sq, D = x.shape
        Hq, Dh = (32, 128)
        Hkv, Sk = (k_cache.shape[1], k_cache.shape[2])
        W = min(4096, max(256, Sk // 4))
        rep = Hq // Hkv
        q = (lambda x, *d: x.permute(*d))((x @ wq).reshape(B, Sq, Hq, Dh), 0, 2, 1, 3)
        k = (lambda x, n, axis: torch.repeat_interleave(x, n, dim=axis))(k_cache[:, :, Sk - W:, :], rep, axis=1)
        v = (lambda x, n, axis: torch.repeat_interleave(x, n, dim=axis))(v_cache[:, :, Sk - W:, :], rep, axis=1)
        scores = torch.einsum('bhqd,bhkd->bhqk', q, k) * Dh ** (-0.5)
        p = _softmax(scores, axis=-1)
        o = torch.einsum('bhqk,bhkd->bhqd', p, v)
        return (lambda x, *d: x.permute(*d))(o, 0, 2, 1, 3).reshape(B, Sq, Hq * Dh) @ wo

    def _B_ref(x, w_gate, w_up, w_down):
        g = torch.einsum('bsd,df->bsf', x, w_gate)
        u = torch.einsum('bsd,df->bsf', x, w_up)
        h = g * u
        return torch.einsum('bsf,fd->bsd', h, w_down)
    x = A_x
    mod = (_silu(c) @ w_mod).reshape(c.shape[0], 6, 1, -1)
    sa, ca, ga, sb, cb, gb = (mod[:, 0].clone(), mod[:, 1].clone(), mod[:, 2].clone(), mod[:, 3].clone(), mod[:, 4].clone(), mod[:, 5].clone())
    h = _layernorm(x, axis=-1) * (1 + ca) + sa
    x = x + ga * _A_ref(h, A_k_cache, A_v_cache, A_wq, A_wo)
    h = _layernorm(x, axis=-1) * (1 + cb) + sb
    x = x + gb * _B_ref(h, B_w_gate, B_w_up, B_w_down)
    return x
```

```python
import re

def v(i, n=1):
    return f"v{i}" if n == 1 else f"v[{i}:{i+n-1}]"
def a(i, n=1):
    return f"a{i}" if n == 1 else f"a[{i}:{i+n-1}]"
def s(i, n=1):
    return f"s{i}" if n == 1 else f"s[{i}:{i+n-1}]"

_REG = re.compile(r'^(-|\|)?(abs\()?([vas])(\d+|\[(\d+):(\d+)\])\)?\|?$')

def parse_reg(tok):
    tok = tok.strip()
    if tok in ('vcc', 'exec', 'm0', 'scc'):
        return [tok]
    if tok in ('vcc_lo', 'vcc_hi'):
        return ['vcc']
    if tok in ('exec_lo', 'exec_hi'):
        return ['exec']
    m = _REG.match(tok)
    if not m:
        return []
    cls = m.group(3)
    if m.group(5) is not None:
        return [(cls, i) for i in range(int(m.group(5)), int(m.group(6)) + 1)]
    return [(cls, int(m.group(4)))]

TRANS = ('v_exp_f32', 'v_log_f32', 'v_rcp_f32', 'v_rsq_f32', 'v_sqrt_f32', 'v_sin_f32', 'v_cos_f32',
         'v_rcp_iflag_f32')

class Ins:
    __slots__ = ('text', 'op', 'dst', 'src', 'kind', 'passes', 'srcA', 'srcB', 'srcC', 'tag',
                 'need', 'wide', 'dpp', 'comment', 'pos', 'nops', 'cost')

    def __init__(self, text, tag=None, need=None):
        self.text = text
        self.tag = tag
        self.need = need
        self.passes = 0
        self.srcA = self.srcB = self.srcC = ()
        self.wide = False
        self.dpp = False
        body = text.split(';')[0].strip()
        parts = body.split(None, 1)
        self.op = op = parts[0]
        ops = []
        if len(parts) > 1:
            depth = 0; cur = ''
            for ch in parts[1]:
                if ch in '[(':
                    depth += 1
                if ch in '])':
                    depth -= 1
                if ch == ',' and depth == 0:
                    ops.append(cur.strip()); cur = ''
                else:
                    cur += ch
            ops.append(cur.strip())
        mods = ''
        if ops:
            last = ops[-1].split(None, 1)
            if len(last) > 1:
                ops[-1] = last[0]; mods = last[1]
        R = [parse_reg(o) for o in ops]
        flat = lambda L: [r for x in L for r in x]
        dst = []; src = []
        if op.endswith(':') or op.startswith('.'):
            kind = 'label'
        elif op.startswith('v_mfma'):
            kind = 'mfma'
            dst = R[0]; self.srcA = tuple(R[1]); self.srcB = tuple(R[2]); self.srcC = tuple(R[3])
            src = R[1] + R[2] + R[3]
            self.passes = 8 if '32x32x16' in op else 4
            assert '32x32x16' in op or '16x16x32' in op
        elif op.startswith('buffer_load') or op.startswith('global_load') :
            if ' lds' in (' ' + mods) or 'load_lds' in op:
                kind = 'dma'; src = flat(R) + ['m0']
            else:
                kind = 'vload'; dst = R[0]; src = flat(R[1:])
        elif op.startswith('buffer_store') or op.startswith('global_store'):
            kind = 'vstore'; src = flat(R)
            self.wide = 'x3' in op or 'x4' in op
            self.srcA = tuple(R[0] if op.startswith('buffer') else R[1])
        elif op.startswith('global_atomic') or op.startswith('buffer_atomic'):
            if 'sc0' in mods and op.startswith('global'):
                kind = 'vload'; dst = R[0]; src = flat(R[1:])
            elif 'sc0' in mods:
                kind = 'vload'; dst = R[0]; src = flat(R)
            else:
                kind = 'vstore'; src = flat(R)
        elif op in ('buffer_wbl2', 'buffer_inv'):
            kind = 'vstore'
        elif op.startswith('ds_read') or op.startswith('ds_bpermute') or op.startswith('ds_swizzle') or op.startswith('ds_permute'):
            kind = 'dsread'; dst = R[0]; src = flat(R[1:])
        elif op.startswith('ds_write') or op.startswith('ds_add') or op.startswith('ds_max') or op.startswith('ds_or'):
            kind = 'dswrite'; src = flat(R)
        elif op.startswith('s_load') or op.startswith('s_memtime') or op.startswith('s_memrealtime'):
            kind = 'smem'; dst = R[0]; src = flat(R[1:])
        elif op == 's_waitcnt':
            kind = 'wait'
        elif op == 'waittag':
            kind = 'waittag'
        elif op == 's_nop':
            kind = 'nop'
        elif op == 's_barrier':
            kind = 'barrier'
        elif op.startswith('s_cbranch') or op == 's_branch' or op == 's_endpgm':
            kind = 'branch'
            if 'vcc' in op: src = ['vcc']
            if 'exec' in op: src = ['exec']
            if 'scc' in op: src = ['scc']
        elif op.startswith('s_cmp') or op.startswith('s_bitcmp'):
            kind = 'salu'; dst = ['scc']; src = flat(R)
        elif op in ('s_setprio', 's_sleep', 's_setreg_imm32_b32'):
            kind = 'salu'
        elif op.startswith('s_'):
            kind = 'salu'; dst = R[0] + ['scc']; src = flat(R[1:])
            if 'saveexec' in op:
                dst = dst + ['exec']; src = src + ['exec']
            if op.startswith('s_addc') or op.startswith('s_cselect') or op.startswith('s_subb'):
                src = src + ['scc']
            if op.startswith('s_addk') or op.startswith('s_mulk'):
                src = src + R[0]
            if op.startswith('s_mov') or op.startswith('s_getreg') or op.startswith('s_mul_') or op.startswith('s_cselect'):
                dst = R[0]
        elif op.startswith('v_'):
            kind = 'trans' if op.replace('_e32', '').replace('_e64', '') in TRANS else 'valu'
            if op.startswith('v_cmp'):
                dst = R[0]; src = flat(R[1:])
            elif '_co_' in op:
                dst = R[0] + R[1]; src = flat(R[2:])
            elif op.startswith('v_permlane') and 'swap' in op:
                dst = R[0] + R[1]; src = R[0] + R[1]
            elif op.startswith('v_div_scale'):
                dst = R[0] + R[1]; src = flat(R[2:])
            else:
                dst = R[0]; src = flat(R[1:])
                if op.startswith('v_fmac') or op.startswith('v_dot2c') or op.startswith('v_writelane') or op.startswith('v_mac'):
                    src = src + R[0]
                if op.startswith('v_div_fmas'):
                    src = src + ['vcc']
                if op.startswith('v_cndmask') and len(ops) == 3:
                    src = src + ['vcc']
            if '_dpp' in op or 'row_' in mods or 'quad_perm' in mods:
                self.dpp = True
                src = src + R[0]
        else:
            raise ValueError('unknown instruction: ' + text)
        self.kind = kind
        self.dst = tuple(dst)
        self.src = tuple(src)

    def states(self):
        if self.kind in ('label', 'waittag'):
            return 0
        if self.kind == 'nop':
            return int(self.text.split()[1], 0) + 1
        return 1


def mksync(regs=(), dma_keep=None, lgkm=None):
    rs = []
    for r in regs:
        rs += parse_reg(r)
    return Ins('waittag', need=dict(regs=rs, dma_keep=dma_keep, lgkm=lgkm))


class Loop:
    def __init__(self, body, n):
        self.body = body
        self.n = n


class Prog:
    def __init__(self):
        self.items = []
        self.cur = self.items

    def __call__(self, text, tag=None):
        for line in text.split('\n'):
            line = line.strip()
            if not line or line.startswith(';'):
                continue
            self.cur.append(Ins(line, tag=tag))

    def add(self, ins):
        if isinstance(ins, str):
            self(ins)
        else:
            self.cur.append(ins)

    def extend(self, lst):
        for i in lst:
            self.add(i)

    def sync(self, regs=(), dma_keep=None, lgkm=None):
        self.cur.append(mksync(regs, dma_keep, lgkm))

    def begin_loop(self):
        self.cur = []

    def end_loop(self, n):
        self.items.append(Loop(self.cur, n))
        self.cur = self.items

    def _trace(self, maxrep=4):
        for it in self.items:
            if isinstance(it, Loop):
                for rep in range(min(it.n, maxrep)):
                    for ins in it.body:
                        yield ins
            else:
                yield it

    def _flat(self):
        for it in self.items:
            if isinstance(it, Loop):
                yield from it.body
            else:
                yield it

    def resolve_waits(self):
        waits = {}
        def simulate(existing, record):
            vmq = []
            lgq = []
            for ins in self._trace():
                vm_need = None; lg_need = None
                if ins.kind == 'wait':
                    m = re.search(r'vmcnt\((\d+)\)', ins.text)
                    if m:
                        n = int(m.group(1)); vmq[:] = vmq[len(vmq) - n:] if n < len(vmq) and n > 0 else ([] if n == 0 else vmq)
                    m = re.search(r'lgkmcnt\((\d+)\)', ins.text)
                    if m:
                        n = int(m.group(1)); lgq[:] = lgq[len(lgq) - n:] if n < len(lgq) and n > 0 else ([] if n == 0 else lgq)
                    continue
                touched = set(ins.src) | set(ins.dst)
                if ins.kind == 'waittag':
                    touched = set(ins.need['regs'])
                    keep = ins.need['dma_keep']
                    if keep is not None:
                        idx = [i for i, e in enumerate(vmq) if e[1] == 'dma']
                        if len(idx) > keep:
                            vm_need = len(vmq) - 1 - idx[len(idx) - keep - 1]
                    if ins.need['lgkm'] is not None and len(lgq) > ins.need['lgkm']:
                        lg_need = ins.need['lgkm']
                if True:
                    for i, e in enumerate(vmq):
                        if e[0] & touched:
                            n = len(vmq) - 1 - i
                            vm_need = n if vm_need is None else min(vm_need, n)
                    for i, e in enumerate(lgq):
                        if e[0] & touched:
                            n = len(lgq) - 1 - i
                            if any(x[1] for x in lgq):
                                n = 0
                            lg_need = n if lg_need is None else min(lg_need, n)
                if vm_need is not None: vm_need = min(vm_need, 63)
                if lg_need is not None: lg_need = min(lg_need, 15)
                if record is not None and (vm_need is not None or lg_need is not None):
                    o = record.get(id(ins), (None, None))
                    mn = lambda x, y: y if x is None else (x if y is None else min(x, y))
                    record[id(ins)] = (mn(o[0], vm_need), mn(o[1], lg_need))
                w = existing.get(id(ins)) if existing is not None else (vm_need, lg_need)
                if existing is not None:
                    ew = w or (None, None)
                    if vm_need is not None:
                        assert ew[0] is not None and ew[0] <= vm_need, ('vm wait insufficient', ins.text)
                    if lg_need is not None:
                        assert ew[1] is not None and ew[1] <= lg_need, ('lgkm wait insufficient', ins.text)
                if w:
                    if w[0] is not None and w[0] < len(vmq):
                        vmq[:] = vmq[len(vmq) - w[0]:] if w[0] > 0 else []
                    if w[1] is not None and w[1] < len(lgq):
                        lgq[:] = lgq[len(lgq) - w[1]:] if w[1] > 0 else []
                if ins.kind in ('vload', 'vstore', 'dma'):
                    vmq.append((set(ins.dst), 'dma' if ins.kind == 'dma' else ins.tag))
                    assert len(vmq) <= 63, 'more than 63 VMEM ops outstanding at ' + ins.text
                elif ins.kind in ('dsread', 'dswrite'):
                    lgq.append((set(ins.dst), False))
                    if len(lgq) > 15:
                        pass
                elif ins.kind == 'smem':
                    lgq.append((set(ins.dst), True))
        simulate(None, waits)
        for _ in range(3):
            w2 = {}
            simulate(waits, w2)
            neww = {}
            for k, val in waits.items():
                if k in w2:
                    neww[k] = (val[0] if w2[k][0] is not None else None, val[1] if w2[k][1] is not None else None)
            if neww == waits:
                break
            waits = neww
        simulate(waits, None)
        return waits

    def apply_waits(self):
        waits = self.resolve_waits()
        def rebuild(lst):
            out = []
            for ins in lst:
                if isinstance(ins, Loop):
                    ins.body = rebuild(ins.body); out.append(ins); continue
                w = waits.get(id(ins))
                if w and (w[0] is not None or w[1] is not None):
                    t = 's_waitcnt'
                    if w[0] is not None: t += f' vmcnt({w[0]})'
                    if w[1] is not None: t += f' lgkmcnt({w[1]})'
                    out.append(Ins(t))
                if ins.kind != 'waittag':
                    out.append(ins)
            return out
        self.items = rebuild(self.items)
        self.cur = self.items

    def required_gap(self, p, c):
        need = 0
        pk, ck = p.kind, c.kind
        pd = set(p.dst)
        isvalu_p = pk in ('valu', 'trans')
        isvalu_c = ck in ('valu', 'trans')
        csrc = set(c.src); cdst = set(c.dst)
        if isvalu_p:
            pv = {r for r in pd if isinstance(r, tuple) and r[0] in 'va'}
            ps = {r for r in pd if (isinstance(r, tuple) and r[0] == 's') or r == 'vcc'}
            if ck == 'mfma' and pv & csrc: need = max(need, 2)
            if isvalu_c:
                if c.op.startswith('v_permlane') and pv & csrc: need = max(need, 2)
                if c.dpp and pv & csrc: need = max(need, 2)
                if (c.op.startswith('v_readlane') or c.op.startswith('v_readfirstlane')) and pv & csrc: need = max(need, 1)
                if pk == 'trans' and ck != 'trans' and pv & csrc: need = max(need, 1)
                if pk == 'trans' and ck == 'trans' and pv & csrc: need = max(need, 1)
                if ps & csrc:
                    need = max(need, 4 if (c.op.startswith('v_readlane') or c.op.startswith('v_writelane') or c.op.startswith('v_div_fmas')) else 2)
                if ('sdwa' in p.op and 'dst_sel:DWORD' not in p.text) and pv & (csrc | cdst): need = max(need, 1)
            if ck in ('vload', 'vstore', 'dma') and ps & csrc: need = max(need, 5)
            if pk == 'trans' and ck in ('vstore', 'dswrite', 'dsread', 'vload', 'dma') and pv & csrc: need = max(need, 1)
            if ck == 'branch' and 'vcc' in ps and 'vcc' in csrc: need = max(need, 5)
            if ck == 'salu' and ps & csrc: need = max(need, 1)
            if 'exec' in pd: need = max(need, 5)
        if pk == 'mfma':
            P = p.passes
            if ck == 'mfma':
                C = set(c.srcC)
                if pd & C:
                    if not (tuple(p.dst) == tuple(c.srcC) and p.passes == c.passes):
                        need = max(need, P + 2)
                if pd & (set(c.srcA) | set(c.srcB)): need = max(need, P + 4)
                if pd & cdst and not (pd & C):
                    if tuple(p.dst) != tuple(c.dst): need = max(need, P + 2)
            elif isvalu_c or ck in ('vload', 'vstore', 'dma', 'dsread', 'dswrite'):
                if pd & (csrc | cdst): need = max(need, P + 4)
                if isvalu_c and set(p.srcC) & cdst: need = max(need, P - 1)
        if pk == 'salu' and 'm0' in pd and ck == 'dma': need = max(need, 1)
        if pk == 'vstore' and p.wide and set(p.srcA) & cdst:
            need = max(need, 2 if isvalu_c else 1)
        if pk == 'salu' and 'exec' in pd and c.dpp: need = max(need, 1)
        return need

    def apply_nops(self, verbose=False):
        WIN = 24
        extra = {}
        changed = True
        while changed:
            changed = False
            hist = []
            pos = 0
            for ins in self._trace():
                if ins.kind == 'label':
                    continue
                pos += extra.get(id(ins), 0)
                short = 0
                for (p, ppos) in hist[-WIN:]:
                    gap = pos - ppos
                    if gap >= 20: continue
                    need = self.required_gap(p, ins)
                    if need > gap:
                        short = max(short, need - gap)
                if short:
                    extra[id(ins)] = extra.get(id(ins), 0) + short
                    pos += short
                    changed = True
                pos += ins.states()
                hist.append((ins, pos))
        total = 0
        def rebuild(lst):
            nonlocal total
            out = []
            for ins in lst:
                if isinstance(ins, Loop):
                    ins.body = rebuild(ins.body); out.append(ins); continue
                n = extra.get(id(ins), 0)
                if n and verbose:
                    print(f'  nop x{n} before: {ins.text}')
                total += n
                while n > 0:
                    k = min(n, 16)
                    out.append(Ins(f's_nop {k-1}'))
                    n -= k
                out.append(ins)
            return out
        self.items = rebuild(self.items)
        self.cur = self.items
        return total

    def finalize(self, verbose=False):
        self.apply_waits()
        n = self.apply_nops(verbose)
        return n

    def text(self):
        out = []
        for ins in self._flat():
            if ins.kind == 'label':
                out.append(ins.text)
            else:
                out.append('    ' + ins.text)
        return '\n'.join(out) + '\n'

    def stats(self):
        from collections import Counter
        c = Counter()
        for it in self.items:
            if isinstance(it, Loop):
                for ins in it.body: c[ins.kind] += it.n
            else:
                c[it.kind] += 1
        return dict(c)

    def maxregs(self):
        mv = ma = ms = -1
        for ins in self._flat():
            for r in list(ins.dst) + list(ins.src):
                if isinstance(r, tuple):
                    if r[0] == 'v': mv = max(mv, r[1])
                    if r[0] == 'a': ma = max(ma, r[1])
                    if r[0] == 's': ms = max(ms, r[1])
        return mv + 1, ma + 1, ms + 1


def interleave(backbone, fillers):
    out = []
    for m, f in zip(backbone, fillers):
        out.append(m)
        out.extend(f)
    return out


def kernel_text(name, prog, lds_static=0, force_vgpr=None):
    nv, na, ns = prog.maxregs()
    acc = max(4, (nv + 3) // 4 * 4)
    nfv = acc + na if na > 0 else max(nv, 1)
    if force_vgpr:
        nfv = max(nfv, force_vgpr)
    if na == 0:
        acc = min(256, (nfv + 3) // 4 * 4)
    code = f""".text
.globl {name}
.p2align 8
.type {name},@function
{name}:
{prog.text()}"""
    desc = f""".section .rodata,"a"
.p2align 6
.amdhsa_kernel {name}
  .amdhsa_next_free_vgpr {nfv}
  .amdhsa_next_free_sgpr {max(ns, 8)}
  .amdhsa_accum_offset {acc}
  .amdhsa_group_segment_fixed_size 0
  .amdhsa_kernarg_size 112
  .amdhsa_user_sgpr_count 2
  .amdhsa_user_sgpr_kernarg_segment_ptr 1
  .amdhsa_system_sgpr_workgroup_id_x 1
  .amdhsa_float_denorm_mode_32 3
  .amdhsa_float_denorm_mode_16_64 3
.end_amdhsa_kernel
"""
    return code, desc
```

```python
from asmgen import *

KA_X, KA_K, KA_V, KA_WQ, KA_WO, KA_BX, KA_WG, KA_WU, KA_WD, KA_C, KA_WMOD, KA_OUT, KA_DBG, KA_WS = [8 * i for i in range(14)]

WS_MOD   = 0x0
WS_STATS = 0x10000
WS_CNT   = 0x40000
WS_XN    = 0x100000
WS_X1F   = 0x400000
WS_X1L   = 0x700000
WS_WP    = 0xA00000
WS_HH    = 0x1000000
WS_PB    = 0x3400000
WS_WDF   = 0x1E00000
WS_O     = 0x2200000
WS_STAMP = 0x4000000
WS_END   = 0x5000000

SZ_X = 2048 * 640 * 2
SZ_KV = 32 * 2048 * 128 * 2
SZ_WQ = 640 * 4096 * 2
SZ_WO = 4096 * 640 * 2
SZ_WG = 640 * 1728 * 2
SZ_WD = 1728 * 640 * 2
SZ_C = 640 * 2
SZ_WMOD = 640 * 3840 * 2

LOG2E = 1.4426950408889634

import struct
def f2u(x):
    return struct.unpack('<I', struct.pack('<f', x))[0]
def fhex(x):
    return '0x%08x' % f2u(x)

def srd(p, d, base, size, add=0):
    if add:
        if add > 0:
            p(f"s_add_u32 s{d}, s{base}, {add}")
            p(f"s_addc_u32 s{d+1}, s{base+1}, 0")
        else:
            p(f"s_sub_u32 s{d}, s{base}, {-add}")
            p(f"s_subb_u32 s{d+1}, s{base+1}, 0")
    else:
        p(f"s_mov_b32 s{d}, s{base}")
        p(f"s_mov_b32 s{d+1}, s{base+1}")
    p(f"s_mov_b32 s{d+2}, {size}")
    p(f"s_mov_b32 s{d+3}, 0x00020000")

def round_bf16(p, dst, src):
    p(f"v_cvt_pk_bf16_f32 v{dst}, v{src}, v{src}")
    p(f"v_and_b32 v{dst}, 0xffff0000, v{dst}")
```

```python
from common import *

def dpp_ror_add(p, r, n, tmp=None):
    p(f"v_add_f32_dpp v{r}, v{r}, v{r} row_ror:{n} row_mask:0xf bank_mask:0xf")

def gen_k0(name='k0_kernel'):
    p = Prog()
    p(f"""
    s_cmp_ge_u32 s2, 496
    s_cbranch_scc1 L_{name}_end
    s_load_dwordx2 s[4:5], s[0:1], {KA_WS}
    s_cmp_ge_u32 s2, 240
    s_cbranch_scc1 L_{name}_ln
    s_load_dwordx4 s[8:11], s[0:1], {KA_C}
    s_and_b32 s3, s2, 7
    s_mul_i32 s3, s3, 30
    s_lshr_b32 s6, s2, 3
    s_add_u32 s3, s3, s6
    s_lshl_b32 s6, s3, 5
    v_lshrrev_b32 v1, 1, v0
    v_and_b32 v2, 1, v0
    v_mul_u32_u24 v3, 7680, v1
    v_lshlrev_b32 v2, 4, v2
    v_add3_u32 v3, v3, v2, s6
    v_lshlrev_b32 v1, 1, v1
    s_waitcnt lgkmcnt(0)
    """)
    srd(p, 12, 8, SZ_C)
    srd(p, 16, 10, SZ_WMOD)
    for i in range(5):
        p(f"s_mov_b32 s{20+i}, {i*128*7680}")
    for i in range(5):
        p(f"buffer_load_ushort v{8+i}, v1, s[12:15], 0 offen offset:{i*256}")
    for i in range(5):
        p(f"buffer_load_dwordx4 v[{16+4*i}:{19+4*i}], v3, s[16:19], s{20+i} offen")
    p(f"s_mov_b32 s25, {fhex(-LOG2E)}")
    for i in range(5):
        c = 8 + i
        p(f"v_lshlrev_b32 v{c}, 16, v{c}")
        p(f"v_mul_f32 v{40+i}, s25, v{c}")
        p(f"v_exp_f32 v{40+i}, v{40+i}")
    for i in range(5):
        p(f"v_add_f32 v{40+i}, 1.0, v{40+i}")
        p(f"v_rcp_f32 v{40+i}, v{40+i}")
    for i in range(5):
        p(f"v_mul_f32 v{40+i}, v{8+i}, v{40+i}")
        round_bf16(p, 40 + i, 40 + i)
    for i in range(5):
        for d in range(4):
            w = 16 + 4 * i + d
            p(f"v_lshlrev_b32 v56, 16, v{w}")
            p(f"v_and_b32 v57, 0xffff0000, v{w}")
            if i == 0:
                p(f"v_mul_f32 v{48+2*d}, v{40+i}, v56")
                p(f"v_mul_f32 v{49+2*d}, v{40+i}, v57")
            else:
                p(f"v_fmac_f32 v{48+2*d}, v{40+i}, v56")
                p(f"v_fmac_f32 v{49+2*d}, v{40+i}, v57")
    for n in (2, 4, 8):
        for e in range(8):
            dpp_ror_add(p, 48 + e, n)
    p(f"""
    v_lshrrev_b32 v1, 4, v0
    v_lshlrev_b32 v1, 6, v1
    v_and_b32 v2, 1, v0
    v_lshl_add_u32 v1, v2, 5, v1
    v_and_b32 v2, 14, v0
    v_cmp_eq_u32 vcc, 0, v2
    s_and_saveexec_b64 s[26:27], vcc
    ds_write_b128 v1, v[48:51]
    ds_write_b128 v1, v[52:55] offset:16
    s_mov_b64 exec, s[26:27]
    v_and_b32 v2, 15, v0
    v_lshlrev_b32 v2, 2, v2
    s_waitcnt lgkmcnt(0)
    s_barrier
    """)
    for i in range(16):
        p(f"ds_read_b32 v{16+i}, v2 offset:{64*i}")
    for st in (8, 4, 2, 1):
        for i in range(st):
            p(f"v_add_f32 v{16+i}, v{16+i}, v{16+i+st}")
    round_bf16(p, 16, 16)
    p(f"""
    s_lshl_b32 s3, s3, 6
    v_add_u32 v2, s3, v2
    v_cmp_gt_u32 vcc, 16, v0
    s_and_saveexec_b64 s[26:27], vcc
    s_cbranch_execz L_{name}_end
    global_store_dword v2, v16, s[4:5]
    s_endpgm
    L_{name}_ln:
    s_load_dwordx2 s[8:9], s[0:1], {KA_X}
    s_sub_u32 s3, s2, 240
    s_lshl_b32 s3, s3, 3
    v_lshrrev_b32 v1, 5, v0
    v_add_u32 v1, s3, v1
    v_and_b32 v2, 31, v0
    v_mul_u32_u24 v3, 1280, v1
    v_lshl_add_u32 v3, v2, 3, v3
    s_waitcnt lgkmcnt(0)
    """)
    srd(p, 12, 8, SZ_X)
    srd(p, 16, 4, 64 * 40 * 1024, add=WS_XN)
    for i in range(5):
        p(f"buffer_load_dwordx2 v[{8+2*i}:{9+2*i}], v3, s[12:15], 0 offen offset:{i*256}")
    p(f"""
    v_lshrrev_b32 v4, 6, v1
    v_mul_u32_u24 v4, 81920, v4
    v_lshrrev_b32 v5, 2, v2
    v_lshl_add_u32 v4, v5, 11, v4
    v_bfe_u32 v5, v1, 5, 1
    v_lshl_add_u32 v4, v5, 10, v4
    v_and_b32 v5, 31, v1
    v_lshl_add_u32 v4, v5, 4, v4
    v_bfe_u32 v5, v2, 1, 1
    v_lshl_add_u32 v4, v5, 9, v4
    v_and_b32 v5, 1, v2
    v_lshl_add_u32 v4, v5, 3, v4
    """)
    for i in range(5):
        p(f"s_mov_b32 s{20+i}, {i*16384}")
    for i in range(10):
        p(f"v_lshlrev_b32 v{20+2*i}, 16, v{8+i}")
        p(f"v_and_b32 v{21+2*i}, 0xffff0000, v{8+i}")
    def reduce32(r, t):
        for n in (1, 2, 4, 8):
            dpp_ror_add(p, r, n)
        p(f"v_mov_b32 v{t}, v{r}")
        p(f"v_permlane16_swap_b32 v{r}, v{t}")
        p(f"v_add_f32 v{r}, v{r}, v{t}")
    for c in range(4):
        p(f"v_add_f32 v{40+c}, v{20+c}, v{24+c}")
    for k in (28, 32, 36):
        for c in range(4):
            p(f"v_add_f32 v{40+c}, v{40+c}, v{k+c}")
    p("v_add_f32 v40, v40, v41\nv_add_f32 v42, v42, v43\nv_add_f32 v40, v40, v42")
    reduce32(40, 41)
    p(f"v_mul_f32 v40, {fhex(1.0/640)}, v40")
    for e in range(20):
        p(f"v_sub_f32 v{44 + e%4}, v{20+e}, v40")
        if e < 4:
            p(f"v_mul_f32 v{48+e%4}, v{44+e%4}, v{44+e%4}")
        else:
            p(f"v_fmac_f32 v{48+e%4}, v{44+e%4}, v{44+e%4}")
    p("v_add_f32 v48, v48, v49\nv_add_f32 v50, v50, v51\nv_add_f32 v48, v48, v50")
    reduce32(48, 49)
    p(f"v_mul_f32 v48, {fhex(1.0/640)}, v48")
    round_bf16(p, 48, 48)
    p(f"v_add_f32 v48, {fhex(1e-5)}, v48")
    round_bf16(p, 48, 48)
    p("v_sqrt_f32 v48, v48")
    round_bf16(p, 48, 48)
    p("v_rcp_f32 v48, v48")
    round_bf16(p, 40, 40)
    for i in range(10):
        x0, x1 = 20 + 2 * i, 21 + 2 * i
        p(f"""v_sub_f32 v{x0}, v{x0}, v40
        v_sub_f32 v{x1}, v{x1}, v40
        v_cvt_pk_bf16_f32 v{x0}, v{x0}, v{x1}
        v_and_b32 v{x1}, 0xffff0000, v{x0}
        v_lshlrev_b32 v{x0}, 16, v{x0}
        v_mul_f32 v{x0}, v{x0}, v48
        v_mul_f32 v{x1}, v{x1}, v48
        v_cvt_pk_bf16_f32 v{x0}, v{x0}, v{x1}
        v_and_b32 v{x1}, 0xffff0000, v{x0}
        v_lshlrev_b32 v{x0}, 16, v{x0}
        v_cvt_pk_f16_f32 v{8+i}, v{x0}, v{x1}""")
        if i % 2 == 1:
            p(f"buffer_store_dwordx2 v[{8+i-1}:{8+i}], v4, s[16:19], s{20+i//2} offen")
    p(f"""
    L_{name}_end:
    s_endpgm
    """)
    p.finalize()
    return p


def gen_kw(name='kw_kernel'):
    p = Prog()
    p(f"""
    s_cmp_ge_u32 s2, 452
    s_cbranch_scc1 L_{name}_end
    s_load_dwordx2 s[4:5], s[0:1], {KA_WS}
    s_cmp_ge_u32 s2, 224
    s_cbranch_scc1 L_{name}_tr
    s_load_dwordx4 s[8:11], s[0:1], {KA_WG}
    s_lshr_b32 s6, s2, 1
    s_and_b32 s7, s2, 1
    s_mul_i32 s40, s6, 9363
    s_lshr_b32 s40, s40, 16
    s_mul_i32 s41, s40, 7
    s_sub_u32 s41, s6, s41
    s_mul_i32 s42, s40, 27
    s_lshr_b32 s42, s42, 2
    s_add_u32 s42, s42, s41
    v_lshrrev_b32 v1, 1, v0
    v_and_b32 v2, 1, v0
    s_lshl_b32 s3, s42, 5
    v_mul_u32_u24 v3, {8*3456}, v1
    v_lshlrev_b32 v4, 4, v2
    v_add3_u32 v3, v3, v4, s3
    v_lshlrev_b32 v5, 5, v1
    s_waitcnt lgkmcnt(0)
    s_cmp_eq_u32 s7, 0
    s_cselect_b32 s8, s8, s10
    s_cselect_b32 s9, s9, s11
    """)
    srd(p, 12, 8, SZ_WG)
    srd(p, 16, 4, 640 * 4, add=WS_MOD + 3 * 640 * 4)
    srd(p, 20, 4, 640 * 4, add=WS_MOD + 4 * 640 * 4)
    srd(p, 24, 4, 16 * 41 * 7 * 1024, add=WS_WP)
    for r in range(8):
        p(f"s_mov_b32 s{28+r}, {r*3456}")
    for r in range(8):
        p(f"buffer_load_dwordx4 v[{16+4*r}:{19+4*r}], v3, s[12:15], s{28+r} offen")
    p("""buffer_load_dwordx4 v[48:51], v5, s[16:19], 0 offen
    buffer_load_dwordx4 v[52:55], v5, s[16:19], 0 offen offset:16
    buffer_load_dwordx4 v[56:59], v5, s[20:23], 0 offen
    buffer_load_dwordx4 v[60:63], v5, s[20:23], 0 offen offset:16""")
    p(f"""
    s_mul_i32 s3, s40, {41*7168}
    s_lshl_b32 s36, s41, 10
    s_add_u32 s3, s3, s36
    s_lshl_b32 s36, s7, 8
    s_add_u32 s3, s3, s36
    v_lshrrev_b32 v6, 1, v1
    v_mul_u32_u24 v6, 7168, v6
    v_and_b32 v7, 1, v1
    v_lshl_add_u32 v6, v7, 9, v6
    v_lshl_add_u32 v6, v2, 7, v6
    v_add_u32 v6, s3, v6
    v_mov_b32 v7, 0x7fffffff
    v_cmp_gt_u32 vcc, 80, v1
    v_cndmask_b32 v6, v7, v6, vcc
    """)
    for r in range(8):
        p(f"v_add_f32 v{56+r}, 1.0, v{56+r}")
        round_bf16(p, 56 + r, 56 + r)
    for r in range(8):
        for d in range(4):
            w = 16 + 4 * r + d
            lo, hi = 64 + 8 * r + 2 * d, 65 + 8 * r + 2 * d
            p(f"v_lshlrev_b32 v{lo}, 16, v{w}")
            p(f"v_and_b32 v{hi}, 0xffff0000, v{w}")
            if r == 0:
                p(f"v_mul_f32 v{128+2*d}, v{48+r}, v{lo}")
                p(f"v_mul_f32 v{129+2*d}, v{48+r}, v{hi}")
            else:
                p(f"v_fmac_f32 v{128+2*d}, v{48+r}, v{lo}")
                p(f"v_fmac_f32 v{129+2*d}, v{48+r}, v{hi}")
            p(f"v_mul_f32 v{lo}, v{56+r}, v{lo}")
            p(f"v_mul_f32 v{hi}, v{56+r}, v{hi}")
    for e in range(8):
        o = 16 + 4 * e
        for d in range(4):
            p(f"v_cvt_pk_bf16_f32 v{o+d}, v{64+8*(2*d)+e}, v{64+8*(2*d+1)+e}")
        p(f"buffer_store_dwordx4 v[{o}:{o+3}], v6, s[24:27], 0 offen offset:{16*e}")
        for d in range(4):
            p(f"v_lshlrev_b32 v8, 16, v{o+d}")
            p(f"v_and_b32 v9, 0xffff0000, v{o+d}")
            if d == 0:
                p(f"v_add_f32 v{136+e}, v8, v9")
            else:
                p(f"v_add_f32 v{136+e}, v{136+e}, v8")
                p(f"v_add_f32 v{136+e}, v{136+e}, v9")
    for n in (2, 4, 8):
        for e in range(16):
            dpp_ror_add(p, 128 + e, n)
    p(f"""
    v_lshrrev_b32 v1, 4, v0
    v_lshlrev_b32 v1, 7, v1
    v_lshl_add_u32 v1, v2, 5, v1
    v_and_b32 v4, 14, v0
    v_cmp_eq_u32 vcc, 0, v4
    s_and_saveexec_b64 s[38:39], vcc
    ds_write_b128 v1, v[128:131]
    ds_write_b128 v1, v[132:135] offset:16
    ds_write_b128 v1, v[136:139] offset:64
    ds_write_b128 v1, v[140:143] offset:80
    s_mov_b64 exec, s[38:39]
    v_and_b32 v2, 15, v0
    v_lshlrev_b32 v2, 2, v2
    s_waitcnt lgkmcnt(0)
    s_barrier
    """)
    for q in range(2):
        for i in range(10):
            p(f"ds_read_b32 v{64+16*q+i}, v2 offset:{128*i+64*q}")
    for q in range(2):
        b = 64 + 16 * q
        for i in range(5):
            p(f"v_add_f32 v{b+i}, v{b+i}, v{b+5+i}")
        p(f"v_add_f32 v{b}, v{b}, v{b+1}\nv_add_f32 v{b+2}, v{b+2}, v{b+3}\nv_add_f32 v{b}, v{b}, v{b+4}\nv_add_f32 v{b}, v{b}, v{b+2}")
        round_bf16(p, b + 1, b)
        p(f"v_sub_f32 v{b+2}, v{b}, v{b+1}")
        p(f"v_cvt_pk_bf16_f32 v{13-q}, v{b+1}, v{b+2}")
    p(f"""
    v_mov_b32 v14, 0
    v_mov_b32 v15, 0
    v_cmp_gt_u32 vcc, 16, v0
    v_cndmask_b32 v12, 0, v12, vcc
    v_cndmask_b32 v13, 0, v13, vcc
    v_lshlrev_b32 v1, 2, v2
    v_bfe_u32 v4, v0, 4, 1
    v_lshl_add_u32 v1, v4, 9, v1
    s_add_u32 s3, s3, {40*7168}
    v_add_u32 v1, s3, v1
    v_cmp_gt_u32 vcc, 32, v0
    s_and_saveexec_b64 s[38:39], vcc
    s_cbranch_execz L_{name}_end
    buffer_store_dwordx4 v[12:15], v1, s[24:27], 0 offen
    s_endpgm
    L_{name}_tr:
    s_load_dwordx2 s[8:9], s[0:1], {KA_WO}
    s_load_dwordx2 s[10:11], s[0:1], {KA_WD}
    v_lshrrev_b32 v1, 6, v0
    v_readfirstlane_b32 s6, v1
    s_sub_u32 s3, s2, 224
    s_lshl_b32 s3, s3, 2
    s_add_u32 s3, s3, s6
    s_cmp_ge_u32 s3, 910
    s_cbranch_scc1 L_{name}_end
    s_mov_b32 s20, {128*5120}
    s_mov_b32 s21, {WS_WOF}
    s_mov_b32 s22, {SZ_WO}
    s_waitcnt lgkmcnt(0)
    s_cmp_lt_u32 s3, 640
    s_cselect_b32 s8, s8, s10
    s_cselect_b32 s9, s9, s11
    s_cselect_b32 s20, s20, {54*5120}
    s_cselect_b32 s21, s21, {WS_WDF}
    s_cselect_b32 s22, s22, {SZ_WD}
    s_cselect_b32 s6, 0, 640
    s_sub_u32 s3, s3, s6
    s_mul_i32 s6, s3, 13108
    s_lshr_b32 s6, s6, 16
    s_mul_i32 s7, s6, 5
    s_sub_u32 s7, s3, s7
    s_mov_b32 s12, s8
    s_mov_b32 s13, s9
    s_mov_b32 s14, s22
    s_mov_b32 s15, 0x00020000
    s_add_u32 s16, s4, s21
    s_addc_u32 s17, s5, 0
    s_mov_b32 s18, s22
    s_mov_b32 s19, 0x00020000
    """)
    p(f"""
    v_and_b32 v1, 15, v0
    v_bfe_u32 v2, v0, 4, 2
    v_lshrrev_b32 v3, 1, v2
    v_lshlrev_b32 v3, 4, v3
    v_and_b32 v4, 1, v2
    v_lshl_add_u32 v3, v4, 2, v3
    v_mul_u32_u24 v3, 1280, v3
    v_lshl_add_u32 v3, v1, 4, v3
    s_mul_i32 s23, s6, {32*1280}
    s_lshl_b32 s24, s7, 8
    s_add_u32 s23, s23, s24
    s_add_u32 s24, s23, {8*1280}
    """)
    for j in range(8):
        p(f"buffer_load_dwordx4 v[{16+4*j}:{19+4*j}], v3, s[12:15], s{23+(j>>2)} offen offset:{(j&3)*1280}")
    p(f"""
    s_lshl_b32 s25, s7, 3
    v_lshrrev_b32 v4, 1, v1
    v_add_u32 v4, s25, v4
    v_mul_u32_u24 v5, 52, v4
    v_lshrrev_b32 v5, 8, v5
    v_mul_u32_u24 v6, 5, v5
    v_sub_u32 v6, v4, v6
    v_mul_lo_u32 v5, v5, s20
    v_lshl_add_u32 v5, v6, 10, v5
    v_and_b32 v6, 1, v1
    v_lshl_add_u32 v5, v6, 7, v5
    v_lshl_add_u32 v5, v2, 8, v5
    s_mul_i32 s25, s6, 5120
    s_mov_b32 s26, 0x05040100
    s_mov_b32 s27, 0x07060302
    """)
    for e in range(8):
        o = 48 + 4 * e
        for d in range(4):
            p(f"v_perm_b32 v{o+d}, v{16+4*(2*d+1)+(e>>1)}, v{16+4*(2*d)+(e>>1)}, s{26+(e&1)}")
        p(f"buffer_store_dwordx4 v[{o}:{o+3}], v5, s[16:19], s25 offen offset:{16*e}")
    p(f"""
    L_{name}_end:
    s_endpgm
    """)
    p.finalize()
    return p
```

```python
from common import *
import math

SLOT = 16768
WBLK = 4192
PADI = 1040
NSLOT = 8
LDS_CONST = NSLOT * SLOT
LDS_FLAG = LDS_CONST + 8192
K1_LDS = LDS_FLAG + 64

QSCALE = LOG2E / math.sqrt(128.0)

V_ACC = 0
V_Q = 0
V_S = 64
V_X = 128
V_C = 192
V_NEGM = 192
V_H = 224
V_T = 240
V_AK = 240
V_AW = 244
V_AV = 244
V_DMA = 248
V_CA = 252
V_L16 = 253
V_LS = 254
V_P = [224, 128]
A_O = 0
A_K = 128
A_V = 160
S_WQ, S_K, S_V, S_XN, S_O, S_MOD = 8, 12, 16, 20, 24, 28
S_DA, S_DB = 32, 36
S_DOFF, S_DSTEP, S_XOFF, S_CNT = 40, 41, 42, 43
S_CUR, S_PREV, S_DELTA, S_PAIR = 44, 45, 46, 47
S_WAVE, S_HEAD, S_QB, S_T0, S_T1, S_PASS = 48, 49, 50, 51, 52, 53
S_CM6 = 54
S_OOFF = 56


def acc(dt, qt): return V_ACC + 16 * (2 * dt + qt)
def qfrag(qt, m): return V_Q + 8 * (2 * (m >> 1) + qt) + 4 * (m & 1)
def oacc(dt, qt): return A_O + 16 * (2 * dt + qt)


def dma_group(first_of_pair):
    L = []
    if first_of_pair:
        L.append(f"s_mov_b32 m0, s{S_PREV}")
    else:
        L.append(f"s_add_u32 m0, s{S_PREV}, {SLOT}")
    for i in range(4):
        srdn = S_DA if i < 2 else S_DB
        off = f" offset:{i*PADI}" if i else ""
        L.append(f"buffer_load_dwordx4 v{V_DMA+i}, s[{srdn}:{srdn+3}], s{S_DOFF} offen{off} lds")
    L.append(f"s_add_u32 s{S_DOFF}, s{S_DOFF}, s{S_DSTEP}")
    return L


def pair_update_salu():
    return [f"s_mov_b32 s{S_PREV}, s{S_CUR}",
            f"s_add_u32 s{S_PAIR}, s{S_PAIR}, 1",
            f"s_and_b32 s{S_PAIR}, s{S_PAIR}, 3",
            f"s_cselect_b32 s{S_DELTA}, {2*SLOT}, s{S_CM6}",
            f"s_add_u32 s{S_CUR}, s{S_CUR}, s{S_DELTA}"]


def place(gaps, items, positions):
    for it, g in zip(items, positions):
        gaps[g].append(it)
    assert len(items) == len(positions), (len(items), len(positions))


def lane_id(p, r):
    p(f"v_mbcnt_lo_u32_b32 v{r}, -1, 0")
    p(f"v_mbcnt_hi_u32_b32 v{r}, -1, v{r}")


def kv_dma_addr(p, tl, t1, t2):
    lane_id(p, tl)
    p(f"""
    v_lshrrev_b32 v{t1}, 4, v{tl}
    v_and_b32 v{t2}, 15, v{tl}
    v_lshlrev_b32 v{tl}, 2, v{t1}
    v_xor_b32 v{t2}, v{tl}, v{t2}
    v_lshlrev_b32 v{t2}, 4, v{t2}
    v_lshl_add_u32 v{t2}, v{t1}, 8, v{t2}
    s_lshl_b32 s{S_T0}, s{S_WAVE}, 11
    s_add_u32 s{S_T0}, s{S_T0}, 4096
    v_add_u32 v{V_DMA}, s{S_T0}, v{t2}
    v_subrev_u32 v{V_DMA+1}, 16, v{V_DMA}
    v_mov_b32 v{V_DMA+2}, v{V_DMA}
    v_mov_b32 v{V_DMA+3}, v{V_DMA+1}
    """)
    for i in range(3):
        p(f"s_mov_b32 s{S_DA+i}, s{S_K+i}")
        p(f"s_mov_b32 s{S_DB+i}, s{S_V+i}")
    p(f"s_mov_b32 s{S_DOFF}, 0")
    p(f"s_mov_b32 s{S_DSTEP}, 8192")


def a_reads(buf, ks, slotimm):
    L = []
    for dt in range(4):
        for jj in range(2):
            r = A_K + 16 * buf + 4 * dt + 2 * jj
            L.append(f"ds_read_b64_tr_b16 a[{r}:{r+1}], v{V_AW+dt} offset:{slotimm + ks*WBLK + jj*PADI}")
    return L


def c_reads(buf, off):
    return [f"ds_read_b128 v[{V_C+16*buf+4*i}:{V_C+16*buf+4*i+3}], v{V_CA} offset:{off+16*i}" for i in range(4)]


def h_valu(xr, cbuf, hbuf):
    L = []
    n = 0
    for qt in range(2):
        for d in range(4):
            x = V_X + 8 * xr + 4 * qt + d
            ca = V_C + 16 * cbuf + 2 * d
            t0 = V_T + 2 * (n % 2); n += 1
            L.append(f"v_fma_mix_f32 v{t0}, v{x}, v{ca}, v{ca+8} op_sel_hi:[1,0,0]")
            L.append(f"v_fma_mix_f32 v{t0+1}, v{x}, v{ca+1}, v{ca+9} op_sel:[1,0,0] op_sel_hi:[1,0,0]")
            L.append(f"v_cvt_pk_bf16_f32 v{V_H+8*hbuf+4*qt+d}, v{t0}, v{t0+1}")
    return L


def x_loads(xr, imm):
    return [f"buffer_load_dwordx4 v[{V_X+8*xr+4*qt}:{V_X+8*xr+4*qt+3}], v{V_L16}, s[{S_XN}:{S_XN+3}], s{S_XOFF} offen offset:{imm+1024*qt}"
            for qt in range(2)]


def k_reads(slotimm):
    return [f"ds_read_b128 a[{A_K+4*m}:{A_K+4*m+3}], v{V_AK+(m>>1)} offset:{slotimm+(m&1)*32}" for m in range(8)]


def v_reads(slotimm):
    L = []
    for ks in range(2):
        for dt in range(4):
            for jj in range(2):
                r = A_V + 16 * ks + 4 * dt + 2 * jj
                L.append(f"ds_read_b64_tr_b16 a[{r}:{r+1}], v{V_AV+dt} offset:{slotimm + 2080 + (2*ks+jj)*WBLK}")
    return L


def qk_mfmas(sbuf, cinit):
    L = []
    for m in range(8):
        for qt in range(2):
            d = V_S + 32 * sbuf + 16 * qt
            if m == 0:
                c = '0' if cinit == 'zero' else v(V_NEGM + 16 * qt, 16)
            else:
                c = v(d, 16)
            L.append(f"v_mfma_f32_32x32x16_bf16 {v(d,16)}, {a(A_K+4*m,4)}, {v(qfrag(qt,m),4)}, {c}")
    return L


def pv_mfmas(pbuf):
    L = []
    for ks in range(2):
        for dt in range(4):
            for qt in range(2):
                o = oacc(dt, qt)
                L.append(f"v_mfma_f32_32x32x16_bf16 {a(o,16)}, {a(A_V+16*ks+4*dt,4)}, {v(V_P[pbuf]+8*qt+4*ks,4)}, {a(o,16)}")
    return L


def softmax_valu(sbuf, pbuf):
    elems = [(qt, r) for ks in range(2) for qt in range(2) for r in range(8 * ks, 8 * ks + 8)]
    G = [[] for _ in range(33)]
    for g, (qt, r) in enumerate(elems):
        x = V_S + 32 * sbuf + 16 * qt + r
        G[g].append(f"v_exp_f32 v{x}, v{x}")
        G[g + 1].append(f"v_add_f32 v{V_LS+qt}, v{V_LS+qt}, v{x}")
        if r % 2 == 1:
            G[g + 1].append(f"v_cvt_pk_bf16_f32 v{V_P[pbuf]+8*qt+r//2}, v{x-1}, v{x}")
    return G


def attn_iter(p, j, do_qk, do_pv, do_sm, do_kread, do_vread, do_dma, barrier=True):
    first = (j % 2 == 1)
    slotimm = 0 if first else SLOT
    pre = []
    if barrier:
        pre.append(mksync(dma_keep=20, lgkm=0))
        pre.append("s_barrier")
    M = []
    if do_qk: M += qk_mfmas((j + 1) % 2, 'negm')
    nq = len(M)
    if do_pv: M += pv_mfmas((j - 1) % 2)
    n = len(M)
    gaps = [[] for _ in range(n)]
    head = []
    if first:
        upd = pair_update_salu() + [f"v_add_u32 v{V_AV+i}, s{S_DELTA}, v{V_AV+i}" for i in range(4)]
        updk = [f"v_add_u32 v{V_AK+i}, s{S_DELTA}, v{V_AK+i}" for i in range(4)]
    else:
        upd, updk = [], []
    if n == 32:
        sm = softmax_valu(j % 2, j % 2)
        for g in range(32):
            gaps[g] += sm[g]
        gaps[31] += sm[32]
        pre = upd + pre
        place(gaps, v_reads(slotimm), [min(i * 13 // 16, 12) for i in range(16)])
        place(gaps, updk, [13, 14, 15, 15][:len(updk)])
        gaps[15].append(mksync(lgkm=0))
        place(gaps, k_reads(slotimm), [16 + i for i in range(8)])
        if do_dma:
            place(gaps, dma_group(first), [23, 24, 26, 28, 30, 31])
    else:
        pre = upd + updk + pre
        if do_vread:
            head += v_reads(slotimm)
        if do_sm:
            sm = softmax_valu(j % 2, j % 2)
            for g in range(33):
                gaps[min(g // 2, n - 1)] += sm[g]
        tail = []
        if do_kread:
            tail += k_reads(slotimm)
        if do_dma:
            place(gaps, dma_group(first), [2, 3, 5, 7, 9, 11])
        gaps[n - 1] += tail
    p.extend(pre)
    p.extend(head)
    p.extend(interleave(M, gaps))


def gen_k1(name='k1_kernel', stamps=False):
    p = Prog()
    def stamp(i):
        if stamps:
            p(f"s_memtime s[{64+2*i}:{65+2*i}]")
    p(f"""
    s_cmp_ge_u32 s2, 256
    s_cbranch_scc1 L_{name}_end
    """)
    stamp(0)
    p(f"""
    s_load_dwordx4 s[{S_K}:{S_K+3}], s[0:1], {KA_K}
    s_load_dwordx2 s[{S_WQ}:{S_WQ+1}], s[0:1], {KA_WQ}
    s_load_dwordx2 s[4:5], s[0:1], {KA_WS}
    v_lshrrev_b32 v1, 6, v0
    v_readfirstlane_b32 s{S_WAVE}, v1
    s_and_b32 s{S_HEAD}, s2, 7
    s_lshl_b32 s{S_HEAD}, s{S_HEAD}, 2
    s_bfe_u32 s{S_T0}, s2, 0x20003
    s_add_u32 s{S_HEAD}, s{S_HEAD}, s{S_T0}
    s_lshr_b32 s{S_QB}, s2, 5
    v_and_b32 v2, 63, v0
    v_lshlrev_b32 v{V_L16}, 4, v2
    """)
    p(f"""
    v_lshrrev_b32 v3, 4, v2
    v_and_b32 v4, 15, v2
    v_lshlrev_b32 v5, 2, v3
    v_xor_b32 v4, v5, v4
    v_lshlrev_b32 v4, 4, v4
    v_lshl_add_u32 v4, v3, 13, v4
    s_lshl_b32 s{S_T0}, s{S_WAVE}, 17
    v_add_u32 v{V_DMA}, s{S_T0}, v4
    """)
    for i in range(1, 4):
        p(f"v_add_u32 v{V_DMA+i}, {i*(4*8192-PADI)}, v{V_DMA}")
    p(f"""
    s_mul_i32 s{S_CUR}, s{S_WAVE}, {WBLK}
    s_add_u32 s{S_PREV}, s{S_CUR}, {6*SLOT}
    s_mov_b32 s{S_PAIR}, 0
    s_mov_b32 s{S_DOFF}, 0
    s_mov_b32 s{S_DSTEP}, {64*8192}
    s_mov_b32 s{S_XOFF}, 0
    s_mov_b32 s{S_PASS}, 0
    s_mov_b32 s{S_CM6}, {(-6*SLOT) & 0xffffffff}
    s_waitcnt lgkmcnt(0)
    """)
    p(f"""
    s_lshl_b32 s{S_T0}, s{S_HEAD}, 8
    s_add_u32 s{S_DA}, s{S_WQ}, s{S_T0}
    s_addc_u32 s{S_DA+1}, s{S_WQ+1}, 0
    s_sub_u32 s{S_DA+2}, {SZ_WQ}, s{S_T0}
    s_mov_b32 s{S_DA+3}, 0x00020000
    s_mov_b32 s{S_DB}, s{S_DA}
    s_mov_b32 s{S_DB+1}, s{S_DA+1}
    s_mov_b32 s{S_DB+2}, s{S_DA+2}
    s_mov_b32 s{S_DB+3}, 0x00020000
    """)
    def pro_group(g):
        L = [f"s_add_u32 m0, s{S_CUR}, {(g+1)*SLOT}"] + dma_group(True)[1:]
        p.extend(L)
    pro_group(0)
    p(f"""
    s_lshl_b32 s{S_T0}, s{S_QB}, 2
    s_add_u32 s{S_T0}, s{S_T0}, s{S_WAVE}
    s_mul_i32 s{S_T1}, s{S_T0}, 81920
    s_add_u32 s{S_T1}, s{S_T1}, {WS_XN}
    s_add_u32 s{S_XN}, s4, s{S_T1}
    s_addc_u32 s{S_XN+1}, s5, 0
    s_mov_b32 s{S_XN+2}, 81920
    s_mov_b32 s{S_XN+3}, 0x00020000
    """)
    srd(p, S_MOD, 4, 640 * 4, add=0)
    p(f"""
    v_lshlrev_b32 v6, 4, v0
    buffer_load_dwordx4 v[8:11], v6, s[{S_MOD}:{S_MOD+3}], 0 offen
    s_add_u32 s{S_MOD}, s{S_MOD}, 2560
    s_addc_u32 s{S_MOD+1}, s{S_MOD+1}, 0
    buffer_load_dwordx4 v[12:15], v6, s[{S_MOD}:{S_MOD+3}], 0 offen
    """)
    for t in range(8):
        p.extend(x_loads(t, (t % 2) * 2048))
        if t % 2 == 1:
            p(f"s_add_u32 s{S_XOFF}, s{S_XOFF}, 4096")
        if t == 3:
            pro_group(1)
    for g in range(2, 6):
        pro_group(g)
    p(f"""
    s_lshl_b32 s{S_T0}, s{S_T0}, 19
    s_lshl_b32 s{S_T1}, s{S_HEAD}, 14
    s_add_u32 s{S_T0}, s{S_T0}, s{S_T1}
    s_add_u32 s{S_T0}, s{S_T0}, {WS_O}
    s_add_u32 s{S_O}, s4, s{S_T0}
    s_addc_u32 s{S_O+1}, s5, 0
    s_mov_b32 s{S_O+2}, 16384
    s_mov_b32 s{S_O+3}, 0x00020000
    s_lshl_b32 s{S_T0}, s{S_HEAD}, 19
    s_add_u32 s{S_T1}, s{S_T0}, {1536*256 - 4096 - 2080 - 3*8192}
    s_add_u32 s{S_V}, s{S_K+2}, s{S_T1}
    s_addc_u32 s{S_V+1}, s{S_K+3}, 0
    s_mov_b32 s{S_V+2}, {4096 + 2080 + 3*8192 + 512*256}
    s_mov_b32 s{S_V+3}, 0x00020000
    s_add_u32 s{S_T1}, s{S_T0}, {1536*256 - 4096}
    s_add_u32 s{S_K}, s{S_K}, s{S_T1}
    s_addc_u32 s{S_K+1}, s{S_K+1}, 0
    s_mov_b32 s{S_K+2}, {4096 + 512*256}
    s_mov_b32 s{S_K+3}, 0x00020000
    """)
    p(f"""
    v_lshrrev_b32 v3, 5, v2
    v_mul_u32_u24 v3, 2080, v3
    v_bfe_u32 v4, v2, 2, 2
    v_lshl_add_u32 v3, v4, 8, v3
    v_bfe_u32 v5, v2, 4, 1
    v_lshl_add_u32 v3, v5, 5, v3
    v_and_b32 v5, 1, v2
    v_lshl_add_u32 v3, v5, 4, v3
    v_bfe_u32 v5, v2, 1, 1
    v_lshl_add_u32 v3, v5, 3, v3
    """)
    for dt in range(4):
        p(f"v_xor_b32 v5, {dt}, v4")
        p(f"v_lshl_add_u32 v{V_AW+dt}, v5, 6, v3")
    p(f"""
    v_lshrrev_b32 v3, 5, v2
    v_lshlrev_b32 v3, 6, v3
    v_add_u32 v{V_CA}, {LDS_CONST}, v3
    v_lshrrev_b32 v3, 1, v0
    v_lshlrev_b32 v3, 6, v3
    v_and_b32 v4, 1, v0
    v_lshl_add_u32 v3, v4, 4, v3
    v_add_u32 v7, {LDS_CONST}, v3
    s_mov_b32 s{S_T0}, {fhex(QSCALE)}
    """)
    for i in range(128):
        p(f"v_accvgpr_write_b32 a{i}, 0")
    for e in range(4):
        p(f"v_add_f32 v{12+e}, 1.0, v{12+e}")
        round_bf16(p, 12 + e, 12 + e)
        p(f"v_mul_f32 v{12+e}, s{S_T0}, v{12+e}")
        p(f"v_mul_f32 v{8+e}, s{S_T0}, v{8+e}")
    p(f"""
    ds_write_b128 v7, v[12:15]
    ds_write_b128 v7, v[8:11] offset:32
    """)
    p.sync(lgkm=0)
    for i in range(128):
        p(f"v_mov_b32 v{i}, 0")
    p.sync(dma_keep=20)
    p("s_barrier")
    stamp(1)
    p.extend(c_reads(0, 0))
    p.extend(a_reads(0, 0, SLOT))
    p.extend(c_reads(1, 128))
    p.extend(h_valu(0, 0, 0))
    p(f"s_mov_b32 s{S_CNT}, 0")
    p.begin_loop()
    p(f"L_{name}_qp:")
    for t in range(8):
        M = []
        for dt in range(4):
            for qt in range(2):
                c = acc(dt, qt)
                M.append(f"v_mfma_f32_32x32x16_bf16 {v(c,16)}, {a(A_K+16*(t%2)+4*dt,4)}, {v(V_H+8*(t%2)+4*qt,4)}, {v(c,16)}")
        gaps = [[] for _ in range(8)]
        pre = []
        xr = (t + 1) % 8
        xregs = [v(V_X + 8 * xr, 8)]
        if t == 3:
            pre += pair_update_salu() + [f"v_add_u32 v{V_AW+i}, s{S_DELTA}, v{V_AW+i}" for i in range(4)]
        if t in (3, 7):
            pre += [mksync(regs=xregs, dma_keep=20, lgkm=0), "s_barrier"]
        else:
            pre += [mksync(regs=xregs, lgkm=0)]
        ks = (t + 1) % 4
        slotimm = 0 if 3 <= t <= 6 else SLOT
        hv = h_valu(xr, (t + 1) % 2, (t + 1) % 2)
        for g in range(8):
            gaps[g] += hv[3 * g:3 * g + 3]
        place(gaps, a_reads((t + 1) % 2, ks, slotimm), [0, 0, 1, 1, 2, 2, 3, 3])
        place(gaps, c_reads(t % 2, (t + 2) * 128), [4, 4, 5, 5])
        place(gaps, x_loads(t, (t % 2) * 2048), [6, 7])
        if t % 2 == 1:
            gaps[7].append(f"s_add_u32 s{S_XOFF}, s{S_XOFF}, 4096")
        if t in (0, 4):
            dg = dma_group(t == 4)
            place(gaps, dg[:2], [5, 6])
        if t in (1, 5):
            place(gaps, dg[2:4], [4, 6])
        if t in (2, 6):
            place(gaps, dg[4:6], [4, 6])
        if t == 7:
            gaps[6].append(f"v_add_u32 v{V_CA}, 1024, v{V_CA}")
            gaps[7] += [f"s_add_u32 s{S_CNT}, s{S_CNT}, 1"]
        p.extend(pre)
        p.extend(interleave(M, gaps))
    p(f"""
    s_cmp_eq_u32 s{S_CNT}, 2
    s_cbranch_scc1 L_{name}_switch
    L_{name}_swret:
    s_cmp_lt_u32 s{S_CNT}, 5
    s_cbranch_scc1 L_{name}_qp
    """)
    p.end_loop(5)
    stamp(2)
    T = V_H
    p(f"L_{name}_attn:")
    lane_id(p, T)
    p(f"""
    s_mul_i32 s{S_T0}, s{S_PAIR}, {2*SLOT}
    v_bfe_u32 v{T+1}, v{T}, 3, 2
    v_mul_u32_u24 v{T+1}, {WBLK}, v{T+1}
    v_bfe_u32 v{T+2}, v{T}, 2, 1
    v_mul_u32_u24 v{T+2}, {PADI}, v{T+2}
    v_add3_u32 v{T+1}, v{T+1}, v{T+2}, s{S_T0}
    v_and_b32 v{T+2}, 3, v{T}
    v_lshl_add_u32 v{T+1}, v{T+2}, 8, v{T+1}
    v_lshrrev_b32 v{T+3}, 5, v{T}
    v_lshl_add_u32 v{T+1}, v{T+3}, 4, v{T+1}
    """)
    for mm in range(4):
        p(f"v_xor_b32 v{T+4}, {mm}, v{T+2}")
        p(f"v_lshl_add_u32 v{V_AK+mm}, v{T+4}, 6, v{T+1}")
    p.sync(lgkm=0)
    p.extend(k_reads(SLOT))
    p(f"""
    v_mul_u32_u24 v{T+1}, {PADI}, v{T+3}
    v_bfe_u32 v{T+2}, v{T}, 2, 2
    v_lshl_add_u32 v{T+1}, v{T+2}, 8, v{T+1}
    v_bfe_u32 v{T+4}, v{T}, 4, 1
    v_lshl_add_u32 v{T+1}, v{T+4}, 5, v{T+1}
    v_and_b32 v{T+4}, 3, v{T}
    v_lshl_add_u32 v{T+1}, v{T+4}, 3, v{T+1}
    v_add_u32 v{T+1}, s{S_T0}, v{T+1}
    """)
    for dt in range(4):
        p(f"v_xor_b32 v{T+4}, {dt}, v{T+2}")
        p(f"v_lshl_add_u32 v{V_AV+dt}, v{T+4}, 6, v{T+1}")
    p.extend(dma_group(False))
    p(f"v_mov_b32 v{V_LS}, 0\nv_mov_b32 v{V_LS+1}, 0")
    p(f"s_cmp_lg_u32 s{S_PASS}, 0\ns_cbranch_scc1 L_{name}_qdone")
    for tile in range(8):
        for i in range(8):
            p(f"v_cvt_pk_bf16_f32 v{8*tile+i}, v{16*tile+2*i}, v{16*tile+2*i+1}")
    p(f"L_{name}_qdone:")
    upd = pair_update_salu() + [f"v_add_u32 v{V_AV+i}, s{S_DELTA}, v{V_AV+i}" for i in range(4)] + \
          [f"v_add_u32 v{V_AK+i}, s{S_DELTA}, v{V_AK+i}" for i in range(4)]
    p.extend(upd)
    p.sync(dma_keep=20, lgkm=0)
    p("s_barrier")
    M = qk_mfmas(0, 'zero')
    gaps = [[] for _ in range(16)]
    place(gaps, dma_group(True), [2, 3, 5, 7, 9, 11])
    gaps[15] += k_reads(0)
    p.extend(interleave(M, gaps))
    p(f"s_cmp_lg_u32 s{S_PASS}, 0\ns_cbranch_scc1 L_{name}_mdone")
    for qt in range(2):
        S = V_S + 16 * qt
        m = V_NEGM + 16 * qt
        p(f"v_max3_f32 v{m}, v{S}, v{S+1}, v{S+2}")
        p(f"v_max3_f32 v{m+1}, v{S+3}, v{S+4}, v{S+5}")
        p(f"v_max3_f32 v{m}, v{m}, v{S+6}, v{S+7}")
        p(f"v_max3_f32 v{m+1}, v{m+1}, v{S+8}, v{S+9}")
        p(f"v_max3_f32 v{m}, v{m}, v{S+10}, v{S+11}")
        p(f"v_max3_f32 v{m+1}, v{m+1}, v{S+12}, v{S+13}")
        p(f"v_max3_f32 v{m}, v{m}, v{S+14}, v{S+15}")
        p(f"v_max_f32 v{m}, v{m}, v{m+1}")
        p(f"v_mov_b32 v{m+1}, v{m}")
    for qt in range(2):
        m = V_NEGM + 16 * qt
        p(f"v_permlane32_swap_b32 v{m}, v{m+1}")
    for qt in range(2):
        m = V_NEGM + 16 * qt
        p(f"v_max_f32 v{m}, v{m}, v{m+1}")
        p(f"v_sub_f32 v{m}, 0, v{m}")
    for qt in range(2):
        m = V_NEGM + 16 * qt
        for i in range(1, 16):
            p(f"v_mov_b32 v{m+i}, v{m}")
    p(f"L_{name}_mdone:")
    p("s_nop 7\ns_nop 3")
    for qt in range(2):
        for i in range(16):
            p(f"v_add_f32 v{V_S+16*qt+i}, v{V_NEGM+16*qt}, v{V_S+16*qt+i}")
    stamp(3)
    attn_iter(p, 0, True, False, True, True, False, True)
    p(f"s_mov_b32 s{S_CNT}, 0")
    p.begin_loop()
    p(f"L_{name}_at:")
    attn_iter(p, 1, True, True, True, True, True, True)
    attn_iter(p, 2, True, True, True, True, True, True)
    p(f"""
    s_add_u32 s{S_CNT}, s{S_CNT}, 1
    s_cmp_lt_u32 s{S_CNT}, 7
    s_cbranch_scc1 L_{name}_at
    """)
    p.end_loop(7)
    attn_tail(p, name)
    stamp(4)
    T = V_S
    for qt in range(2):
        p(f"v_mov_b32 v{T+qt}, v{V_LS+qt}")
    for qt in range(2):
        p(f"v_permlane32_swap_b32 v{V_LS+qt}, v{T+qt}")
    for qt in range(2):
        p(f"v_add_f32 v{V_LS+qt}, v{V_LS+qt}, v{T+qt}")
    for qt in range(2):
        p(f"v_rcp_f32 v{V_LS+qt}, v{V_LS+qt}")
    lane_id(p, T + 2)
    p(f"""
    v_and_b32 v{T+3}, 15, v{T+2}
    v_lshlrev_b32 v{T+3}, 4, v{T+3}
    v_bfe_u32 v{T+4}, v{T+2}, 4, 1
    v_lshl_add_u32 v{T+3}, v{T+4}, 10, v{T+3}
    v_lshrrev_b32 v{T+4}, 5, v{T+2}
    v_lshl_add_u32 v{T+3}, v{T+4}, 8, v{T+3}
    """)
    for dt in range(4):
        p(f"s_mov_b32 s{S_OOFF+dt}, {dt*4096}")
    n = 0
    for dt in range(4):
        for qt in range(2):
            for h8 in range(2):
                B = 0 + 16 * (n % 4)
                n += 1
                o = oacc(dt, qt) + 8 * h8
                for i in range(8):
                    p(f"v_accvgpr_read_b32 v{B+i}, a{o+i}")
                for i in range(8):
                    p(f"v_mul_f32 v{B+i}, v{V_LS+qt}, v{B+i}")
                for i in range(4):
                    p(f"v_cvt_pk_bf16_f32 v{B+8+i}, v{B+2*i}, v{B+2*i+1}")
                p(f"buffer_store_dwordx4 v[{B+8}:{B+11}], v{T+3}, s[{S_O}:{S_O+3}], s{S_OOFF+dt} offen offset:{qt*2048+h8*512}")
    if stamps:
        p("s_waitcnt vmcnt(0)")
        stamp(5)
        p("s_memrealtime s[76:77]")
        p("s_waitcnt lgkmcnt(0)")
        p(f"s_lshl_b32 s{S_T0}, s2, 2\ns_add_u32 s{S_T0}, s{S_T0}, s{S_WAVE}\ns_lshl_b32 s{S_T0}, s{S_T0}, 5\ns_add_u32 s{S_T0}, s{S_T0}, {WS_STAMP}")
        p(f"v_mov_b32 v0, s{S_T0}")
        for i in range(6):
            p(f"v_mov_b32 v{2+i}, s{64+2*i}")
        p("v_mov_b32 v8, s76\nv_mov_b32 v9, 0")
        p("global_store_dwordx4 v0, v[2:5], s[4:5]\nglobal_store_dwordx4 v0, v[6:9], s[4:5] offset:16")
    p(f"""
    L_{name}_end:
    s_endpgm
    """)
    n = p.finalize()
    q = Prog()
    q(f"L_{name}_switch:")
    kv_dma_addr(q, V_T, V_T + 1, V_T + 2)
    q(f"s_branch L_{name}_swret")
    q.finalize()
    p.items += q.items
    return p


def attn_tail(p, name):
    upd = pair_update_salu() + [f"v_add_u32 v{V_AV+i}, s{S_DELTA}, v{V_AV+i}" for i in range(4)]
    p.extend(upd)
    p.sync(dma_keep=16, lgkm=0)
    p("s_barrier")
    p.extend(v_reads(0))
    M = pv_mfmas(14 % 2)
    gaps = [[] for _ in range(16)]
    sm = softmax_valu(15 % 2, 15 % 2)
    head = sm[0] + sm[1] + sm[2] + sm[3]
    for g in range(4, 33):
        gaps[min((g - 4) // 2, 15)] += sm[g]
    vr = [x.replace(f"a[{A_V+2*i}:{A_V+2*i+1}]", f"a[{A_K+2*i}:{A_K+2*i+1}]") for i, x in enumerate(v_reads(SLOT))]
    place(gaps, vr, [i * 12 // 16 for i in range(16)])
    p.extend(head)
    p.extend(interleave(M, gaps))
    M2 = []
    for x in pv_mfmas(15 % 2):
        for r in range(A_V, A_V + 32, 4):
            x = x.replace(f"a[{r}:{r+3}],", f"a[{r-A_V+A_K}:{r-A_V+A_K+3}],")
        M2.append(x)
    p.extend(M2)


if __name__ == '__main__':
    p = gen_k1()
    print(p.stats(), p.maxregs())
    open('k1.s', 'w').write(p.text())
```

```python
from common import *
from k1 import place

def stamp_store(p, nst, slot, swave, t0):
    p("s_waitcnt vmcnt(0)")
    p(f"s_memtime s[{64+2*(nst-1)}:{65+2*(nst-1)}]")
    p("s_memrealtime s[76:77]")
    p("s_waitcnt lgkmcnt(0)")
    p(f"s_lshl_b32 s{t0}, s2, 2\ns_add_u32 s{t0}, s{t0}, s{swave}\ns_lshl_b32 s{t0}, s{t0}, 5\ns_add_u32 s{t0}, s{t0}, {WS_STAMP + slot*32768}")
    p(f"v_mov_b32 v0, s{t0}")
    for i in range(6):
        p(f"v_mov_b32 v{2+i}, s{64+2*min(i,nst-1)}")
    p("v_mov_b32 v8, s76\nv_mov_b32 v9, 0")
    p("global_store_dwordx4 v0, v[2:5], s[4:5]\nglobal_store_dwordx4 v0, v[6:9], s[4:5] offset:16")


def gen_skinny(name, mode, stamps=False):
    if mode == 'wo':
        NKS, PER, R, D, WS_B, WS_A, modrow = 128, 32, 4, 3, WS_O, WS_WOF, 2
    else:
        NKS, PER, R, D, WS_B, WS_A, modrow = 54, 14, 7, 5, WS_HH, WS_WDF, 5
    S_B, S_A, S_X, S_G, S_O1, S_O2, S_O3 = 8, 12, 16, 20, 24, 28, 32
    S_RB, S_CT, S_W, S_T0, S_T1, S_BO, S_AO, S_CNT = 36, 37, 38, 39, 40, 41, 42, 43
    V_ACC = 0
    V_L16, V_L16B = 80, 81
    V_XR = 84
    V_G = 96
    V_T = 116
    def fr(slot, i): return 36 * slot + 4 * i
    def loads(slot):
        L = []
        for i in range(4):
            L.append(f"buffer_load_dwordx4 {a(fr(slot,i),4)}, v{V_L16}, s[{S_B}:{S_B+3}], s{S_BO} offen offset:{1024*i}")
        for i in range(4):
            L.append(f"buffer_load_dwordx4 {a(fr(slot,4+i),4)}, v{V_L16}, s[{S_A}:{S_A+3}], s{S_AO} offen offset:{1024*i}")
        L.append(f"buffer_load_dwordx4 {a(fr(slot,8),4)}, v{V_L16B}, s[{S_A}:{S_A+3}], s{S_AO} offen")
        return L
    adv = [f"s_add_u32 s{S_BO}, s{S_BO}, 4096", f"s_add_u32 s{S_AO}, s{S_AO}, 5120"]
    p = Prog()
    def stamp(i):
        if stamps: p(f"s_memtime s[{64+2*i}:{65+2*i}]")
    p(f"""
    s_cmp_ge_u32 s2, 256
    s_cbranch_scc1 L_{name}_end
    """)
    stamp(0)
    p(f"""
    s_load_dwordx2 s[4:5], s[0:1], {KA_WS}
    s_load_dwordx2 s[6:7], s[0:1], {KA_X if mode == 'wo' else KA_OUT}
    v_lshrrev_b32 v1, 6, v0
    v_readfirstlane_b32 s{S_W}, v1
    v_and_b32 v82, 63, v0
    v_lshlrev_b32 v{V_L16}, 4, v82
    v_add_u32 v{V_L16B}, 4096, v{V_L16}
    """)
    p(f"""
    s_bfe_u32 s{S_RB}, s2, 0x20001
    s_lshl_b32 s{S_RB}, s{S_RB}, 3
    s_lshr_b32 s{S_T0}, s2, 5
    s_add_u32 s{S_RB}, s{S_RB}, s{S_T0}
    s_and_b32 s{S_CT}, s2, 1
    s_lshl_b32 s{S_CT}, s{S_CT}, 2
    s_bfe_u32 s{S_T0}, s2, 0x20003
    s_add_u32 s{S_CT}, s{S_CT}, s{S_T0}
    s_mul_i32 s{S_BO}, s{S_W}, {PER*4096}
    s_mul_i32 s{S_AO}, s{S_W}, {PER*5120}
    s_add_u32 s{S_B+2}, s{S_BO}, {PER*4096}
    s_min_u32 s{S_B+2}, s{S_B+2}, {NKS*4096}
    s_add_u32 s{S_A+2}, s{S_AO}, {PER*5120}
    s_min_u32 s{S_A+2}, s{S_A+2}, {NKS*5120}
    s_mov_b32 s{S_B+3}, 0x00020000
    s_mov_b32 s{S_A+3}, 0x00020000
    s_mul_i32 s{S_T0}, s{S_RB}, {NKS*4096}
    s_add_u32 s{S_T0}, s{S_T0}, {WS_B}
    s_mul_i32 s{S_T1}, s{S_CT}, {NKS*5120}
    s_add_u32 s{S_T1}, s{S_T1}, {WS_A}
    s_waitcnt lgkmcnt(0)
    s_add_u32 s{S_B}, s4, s{S_T0}
    s_addc_u32 s{S_B+1}, s5, 0
    s_add_u32 s{S_A}, s4, s{S_T1}
    s_addc_u32 s{S_A+1}, s5, 0
    """)
    for t in range(D):
        p.extend(loads(t)); p.extend(adv)
    srd(p, S_G, 4, 640 * 4, add=WS_MOD + modrow * 640 * 4)
    p(f"""
    v_lshrrev_b32 v83, 4, v82
    v_and_b32 v82, 15, v82
    s_mul_i32 s{S_T0}, s{S_CT}, 320
    v_lshlrev_b32 v{V_T}, 4, v83
    """)
    for t in range(5):
        p(f"buffer_load_dwordx4 {v(V_G+4*t,4)}, v{V_T}, s[{S_G}:{S_G+3}], s{S_T0} offen offset:{64*t}")
    p(f"""
    s_lshl_b32 s{S_T0}, s{S_RB}, 2
    s_add_u32 s{S_T0}, s{S_T0}, s{S_W}
    s_lshl_b32 s{S_T0}, s{S_T0}, 4
    v_add_u32 v{V_T+1}, s{S_T0}, v82
    v_mul_u32_u24 v{V_T+2}, 1280, v{V_T+1}
    v_lshl_add_u32 v{V_T+2}, v83, 3, v{V_T+2}
    s_mul_i32 s{S_T1}, s{S_CT}, 160
    v_add_u32 v{V_T+2}, s{S_T1}, v{V_T+2}
    """)
    srd(p, S_X, 6, SZ_X)
    p(f"""
    s_lshl_b32 s{S_T0}, s{S_RB}, 3
    s_add_u32 s{S_T0}, s{S_T0}, s{S_CT}
    s_lshl_b32 s{S_T0}, s{S_T0}, 2
    s_add_u32 s{S_T0}, s{S_T0}, s{S_W}
    s_mul_i32 s{S_T0}, s{S_T0}, 2560
    s_add_u32 s{S_T0}, s{S_T0}, {WS_X1L}
    s_add_u32 s{S_O1}, s4, s{S_T0}
    s_addc_u32 s{S_O1+1}, s5, 0
    s_mov_b32 s{S_O1+2}, 2560
    s_mov_b32 s{S_O1+3}, 0x00020000
    v_lshrrev_b32 v{V_T+3}, 1, v{V_L16}
    """)
    for t in range(5):
        if mode == 'wo':
            p(f"buffer_load_dwordx2 {v(V_XR+2*t,2)}, v{V_T+2}, s[{S_X}:{S_X+3}], 0 offen offset:{32*t}")
        else:
            p(f"buffer_load_dwordx2 {v(V_XR+2*t,2)}, v{V_T+3}, s[{S_O1}:{S_O1+3}], 0 offen offset:{512*t}")
    for i in range(80):
        p(f"v_mov_b32 v{i}, 0")
    p(f"s_mov_b32 s{S_CNT}, 0")
    stamp(1)
    p.begin_loop()
    p(f"L_{name}_loop:")
    for t in range(R):
        M = []
        for rt in range(4):
            for ct in range(5):
                c = V_ACC + 4 * (5 * rt + ct)
                M.append(f"v_mfma_f32_16x16x32_bf16 {v(c,4)}, {a(fr(t,4+ct),4)}, {a(fr(t,rt),4)}, {v(c,4)}")
        gaps = [[] for _ in range(20)]
        place(gaps, loads((t + D) % R), [0, 2, 4, 6, 8, 10, 12, 14, 16])
        place(gaps, adv, [17, 18])
        p.sync(regs=[a(fr(t, 0), 36)])
        p.extend(interleave(M, gaps))
    p(f"""
    s_add_u32 s{S_CNT}, s{S_CNT}, 1
    s_cmp_lt_u32 s{S_CNT}, {PER//R}
    s_cbranch_scc1 L_{name}_loop
    """)
    p.end_loop(PER // R)
    stamp(2)
    p(f"""
    s_mul_i32 s{S_T0}, s{S_W}, 20480
    v_add_u32 v{V_T+4}, s{S_T0}, v{V_L16}
    s_mul_i32 s{S_T0}, s{S_W}, 5120
    v_add_u32 v{V_T+5}, s{S_T0}, v{V_L16}
    """)
    for rt in range(4):
        for ct in range(5):
            c = V_ACC + 4 * (5 * rt + ct)
            p(f"ds_write_b128 v{V_T+4}, {v(c,4)} offset:{(5*rt+ct)*1024}")
    p.sync(lgkm=0)
    p("s_barrier")
    for w in range(4):
        for ct in range(5):
            c = V_ACC + 4 * (5 * w + ct)
            if w < 3:
                p(f"ds_read_b128 {v(c,4)}, v{V_T+5} offset:{w*20480+ct*1024}")
            else:
                if ct == 0: p(f"v_add_u32 v{V_T+5}, {3*20480}, v{V_T+5}")
                p(f"ds_read_b128 {v(c,4)}, v{V_T+5} offset:{ct*1024}")
    for i in range(20):
        p(f"v_add_f32 v{i}, v{i}, v{20+i}")
    for i in range(20):
        p(f"v_add_f32 v{40+i}, v{40+i}, v{60+i}")
    for i in range(20):
        p(f"v_add_f32 v{i}, v{i}, v{40+i}")
    stamp(3)
    for d in range(10):
        x0, x1 = 2 * d, 2 * d + 1
        p(f"""v_cvt_pk_bf16_f32 v{x0}, v{x0}, v{x1}
        v_and_b32 v{x1}, 0xffff0000, v{x0}
        v_lshlrev_b32 v{x0}, 16, v{x0}
        v_mul_f32 v{x0}, v{V_G+x0}, v{x0}
        v_mul_f32 v{x1}, v{V_G+x1}, v{x1}
        v_cvt_pk_bf16_f32 v{x0}, v{x0}, v{x1}
        v_and_b32 v{x1}, 0xffff0000, v{x0}
        v_lshlrev_b32 v{x0}, 16, v{x0}
        v_lshlrev_b32 v40, 16, v{V_XR+d}
        v_and_b32 v41, 0xffff0000, v{V_XR+d}
        v_add_f32 v{x0}, v40, v{x0}
        v_add_f32 v{x1}, v41, v{x1}
        v_cvt_pk_bf16_f32 v{20+d}, v{x0}, v{x1}""")
    if mode == 'down':
        for t in range(5):
            p(f"buffer_store_dwordx2 {v(20+2*t,2)}, v{V_T+2}, s[{S_X}:{S_X+3}], 0 offen offset:{32*t}")
    else:
        for t in range(5):
            p(f"buffer_store_dwordx2 {v(20+2*t,2)}, v{V_T+3}, s[{S_O1}:{S_O1+3}], 0 offen offset:{512*t}")
        srd(p, S_O2, 4, 64 * 40 * 1024, add=WS_X1F)
        srd(p, S_O3, 4, 2048 * 64, add=WS_STATS)
        p(f"""
        v_lshrrev_b32 v42, 5, v{V_T+1}
        v_mul_u32_u24 v42, 40960, v42
        v_and_b32 v43, 31, v{V_T+1}
        v_lshl_add_u32 v42, v43, 4, v42
        v_lshrrev_b32 v43, 1, v83
        v_lshl_add_u32 v42, v43, 9, v42
        v_and_b32 v43, 1, v83
        v_lshl_add_u32 v42, v43, 3, v42
        s_mul_i32 s{S_T0}, s{S_CT}, 5120
        s_add_u32 s{S_T1}, s{S_T0}, 4096
        """)
        for t in range(5):
            if t < 4:
                p(f"buffer_store_dwordx2 {v(20+2*t,2)}, v42, s[{S_O2}:{S_O2+3}], s{S_T0} offen offset:{1024*t}")
            else:
                p(f"buffer_store_dwordx2 {v(20+2*t,2)}, v42, s[{S_O2}:{S_O2+3}], s{S_T1} offen")
        for d in range(10):
            p(f"v_lshlrev_b32 v{2*d}, 16, v{20+d}")
            p(f"v_and_b32 v{2*d+1}, 0xffff0000, v{20+d}")
        def red4(r, t):
            p(f"""v_mov_b32 v{t}, v{r}
            v_permlane16_swap_b32 v{r}, v{t}
            v_add_f32 v{r}, v{r}, v{t}
            v_mov_b32 v{t}, v{r}
            v_permlane32_swap_b32 v{r}, v{t}
            v_add_f32 v{r}, v{r}, v{t}""")
        for c in range(4):
            p(f"v_add_f32 v{44+c}, v{c}, v{4+c}")
        for k in (8, 12, 16):
            for c in range(4):
                p(f"v_add_f32 v{44+c}, v{44+c}, v{k+c}")
        p("v_add_f32 v44, v44, v45\nv_add_f32 v46, v46, v47\nv_add_f32 v44, v44, v46")
        red4(44, 46)
        p(f"v_mul_f32 v46, {fhex(1.0/80)}, v44")
        for e in range(20):
            p(f"v_sub_f32 v{e}, v{e}, v46")
        for e in range(20):
            if e < 4: p(f"v_mul_f32 v{48+e}, v{e}, v{e}")
            else: p(f"v_fmac_f32 v{48+e%4}, v{e}, v{e}")
        p("v_add_f32 v48, v48, v49\nv_add_f32 v50, v50, v51\nv_add_f32 v45, v48, v50")
        red4(45, 46)
        p(f"""
        v_lshlrev_b32 v46, 6, v{V_T+1}
        s_lshl_b32 s{S_T0}, s{S_CT}, 3
        v_cmp_eq_u32 vcc, 0, v83
        s_and_saveexec_b64 s[44:45], vcc
        buffer_store_dwordx2 v[44:45], v46, s[{S_O3}:{S_O3+3}], s{S_T0} offen
        s_mov_b64 exec, s[44:45]
        """)
    if stamps:
        stamp_store(p, 5, 1 if mode == 'wo' else 3, S_W, S_T0)
    p(f"""
    L_{name}_end:
    s_endpgm
    """)
    p.finalize()
    return p


K3_SLOT = 28672
K3_NS = 5
def gen_k3(name='k3_kernel', stamps=False):
    S_A, S_B, S_ST, S_H = 8, 12, 16, 20
    S_RB, S_CG, S_W, S_T0, S_T1, S_AO, S_BO, S_CNT, S_WR, S_RD, S_DL, S_LIM, S_AO2 = range(24, 37)
    V_ACC = 0
    V_L16, V_RD = 112, 113
    V_ST = 116
    V_E = 132
    V_T = 136
    A_B = 0
    A_A = 32
    p = Prog()
    def stamp(i):
        if stamps: p(f"s_memtime s[{64+2*i}:{65+2*i}]")
    def dma_group():
        L = [f"s_mov_b32 m0, s{S_WR}"]
        for i in range(4):
            L.append(f"buffer_load_dwordx4 v{V_L16}, s[{S_A}:{S_A+3}], s{S_AO} offen offset:{1024*i} lds")
        L.append(f"s_add_u32 m0, s{S_WR}, 4096")
        L.append(f"s_add_u32 s{S_AO2}, s{S_AO}, 4096")
        for i in range(3):
            L.append(f"buffer_load_dwordx4 v{V_L16}, s[{S_A}:{S_A+3}], s{S_AO2} offen offset:{1024*i} lds")
        L += [f"s_add_u32 s{S_AO}, s{S_AO}, {K3_SLOT}",
              f"s_add_u32 s{S_WR}, s{S_WR}, {K3_SLOT}",
              f"s_cmp_ge_u32 s{S_WR}, s{S_LIM}",
              f"s_cselect_b32 s{S_T0}, {K3_NS*K3_SLOT}, 0",
              f"s_sub_u32 s{S_WR}, s{S_WR}, s{S_T0}"]
        return L
    def rd_adv():
        return [f"s_add_u32 s{S_RD}, s{S_RD}, 1",
                f"s_cmp_eq_u32 s{S_RD}, {K3_NS}",
                f"s_cselect_b32 s{S_DL}, s{S_T1}, {K3_SLOT}",
                f"s_cselect_b32 s{S_RD}, 0, s{S_RD}",
                f"v_add_u32 v{V_RD}, s{S_DL}, v{V_RD}"]
    def a_reads(buf, ks):
        return [f"ds_read_b128 {a(A_A+28*buf+4*i,4)}, v{V_RD} offset:{ks*7168+i*1024}" for i in range(7)]
    def b_load(r, imm):
        return f"buffer_load_dwordx4 {a(A_B+4*r,4)}, v{V_L16}, s[{S_B}:{S_B+3}], s{S_BO} offen offset:{imm}"
    p(f"""
    s_cmp_ge_u32 s2, 256
    s_cbranch_scc1 L_{name}_end
    """)
    stamp(0)
    p(f"""
    s_load_dwordx2 s[4:5], s[0:1], {KA_WS}
    v_lshrrev_b32 v1, 6, v0
    v_readfirstlane_b32 s{S_W}, v1
    v_and_b32 v114, 63, v0
    v_lshlrev_b32 v{V_L16}, 4, v114
    v_mov_b32 v{V_RD}, v{V_L16}
    """)
    p(f"""
    s_and_b32 s{S_RB}, s2, 1
    s_lshl_b32 s{S_RB}, s{S_RB}, 3
    s_lshr_b32 s{S_T0}, s2, 5
    s_add_u32 s{S_RB}, s{S_RB}, s{S_T0}
    s_bfe_u32 s{S_CG}, s2, 0x20001
    s_lshl_b32 s{S_CG}, s{S_CG}, 2
    s_bfe_u32 s{S_T0}, s2, 0x20003
    s_add_u32 s{S_CG}, s{S_CG}, s{S_T0}
    s_mul_i32 s{S_AO}, s{S_W}, 7168
    s_mov_b32 s{S_WR}, s{S_AO}
    s_add_u32 s{S_LIM}, s{S_WR}, {K3_NS*K3_SLOT}
    s_mov_b32 s{S_RD}, 0
    s_mov_b32 s{S_BO}, 0
    s_mul_i32 s{S_T0}, s{S_CG}, {41*7168}
    s_add_u32 s{S_T0}, s{S_T0}, {WS_WP}
    s_lshl_b32 s{S_CNT}, s{S_RB}, 2
    s_add_u32 s{S_CNT}, s{S_CNT}, s{S_W}
    s_mul_i32 s{S_T1}, s{S_CNT}, 40960
    s_add_u32 s{S_T1}, s{S_T1}, {WS_X1F}
    s_mov_b32 s{S_A+2}, {41*7168}
    s_mov_b32 s{S_A+3}, 0x00020000
    s_mov_b32 s{S_B+2}, 40960
    s_mov_b32 s{S_B+3}, 0x00020000
    s_waitcnt lgkmcnt(0)
    s_add_u32 s{S_A}, s4, s{S_T0}
    s_addc_u32 s{S_A+1}, s5, 0
    s_add_u32 s{S_B}, s4, s{S_T1}
    s_addc_u32 s{S_B+1}, s5, 0
    """)
    p.extend(dma_group())
    for t in range(7):
        p(b_load(t, (t % 4) * 1024))
        if t % 4 == 3: p(f"s_add_u32 s{S_BO}, s{S_BO}, 4096")
    p.extend(dma_group())
    p.extend(dma_group())
    srd(p, S_ST, 4, 2048 * 64, add=WS_STATS)
    p(f"""
    v_and_b32 v115, 31, v114
    s_lshl_b32 s{S_T0}, s{S_CNT}, 11
    v_lshlrev_b32 v{V_T}, 6, v115
    """)
    for i in range(4):
        p(f"buffer_load_dwordx4 {v(V_ST+4*i,4)}, v{V_T}, s[{S_ST}:{S_ST+3}], s{S_T0} offen offset:{16*i}")
    p(f"""
    s_lshr_b32 s{S_T0}, s{S_CNT}, 1
    s_mul_i32 s{S_T0}, s{S_T0}, {54*4096}
    s_and_b32 s{S_T1}, s{S_CNT}, 1
    s_lshl_b32 s{S_T1}, s{S_T1}, 11
    s_add_u32 s{S_T0}, s{S_T0}, s{S_T1}
    s_add_u32 s{S_T0}, s{S_T0}, {WS_HH}
    s_add_u32 s{S_H}, s4, s{S_T0}
    s_addc_u32 s{S_H+1}, s5, 0
    s_mov_b32 s{S_H+2}, {54*4096 - 2048}
    s_mov_b32 s{S_H+3}, 0x00020000
    s_mov_b32 s{S_T1}, {(-(K3_NS-1)*K3_SLOT) & 0xffffffff}
    """)
    for i in range(112):
        p(f"v_mov_b32 v{i}, 0")
    p.sync(dma_keep=14)
    p("s_barrier")
    stamp(1)
    p.extend(a_reads(0, 0))
    p(f"s_mov_b32 s{S_CNT}, 0")
    p.begin_loop()
    p(f"L_{name}_loop:")
    for t in range(8):
        M = [f"v_mfma_f32_32x32x16_bf16 {v(16*i,16)}, {a(A_A+28*(t%2)+4*i,4)}, {a(A_B+4*t,4)}, {v(16*i,16)}" for i in range(7)]
        gaps = [[] for _ in range(7)]
        pre = []
        if t % 4 == 3:
            pre += rd_adv()
            pre += [mksync(regs=[a(A_B + 4 * t, 4)], dma_keep=14, lgkm=0), "s_barrier"]
        else:
            pre += [mksync(regs=[a(A_B + 4 * t, 4)], lgkm=0)]
        place(gaps, a_reads((t + 1) % 2, (t + 1) % 4), [0, 0, 1, 1, 2, 2, 3])
        gaps[3].append(b_load((t + 7) % 8, ((t + 7) % 4) * 1024))
        if (t + 7) % 4 == 3: gaps[4].append(f"s_add_u32 s{S_BO}, s{S_BO}, 4096")
        if t % 4 == 0:
            dg = dma_group()
            place(gaps, dg[:4], [3, 4, 5, 6])
        if t % 4 == 1:
            place(gaps, dg[4:9], [4, 4, 4, 5, 6])
        if t % 4 == 2:
            place(gaps, dg[9:], [4, 5, 5, 5, 6, 6])
        p.extend(pre)
        p.extend(interleave(M, gaps))
    p(f"""
    s_add_u32 s{S_CNT}, s{S_CNT}, 1
    s_cmp_lt_u32 s{S_CNT}, 5
    s_cbranch_scc1 L_{name}_loop
    """)
    p.end_loop(5)
    stamp(2)
    T = V_T
    p(f"v_add_f32 v{T}, v{V_ST}, v{V_ST+2}")
    p(f"v_add_f32 v{T+1}, v{V_ST+1}, v{V_ST+3}")
    for i in range(2, 8):
        p(f"v_add_f32 v{T}, v{T}, v{V_ST+2*i}")
        p(f"v_add_f32 v{T+1}, v{T+1}, v{V_ST+2*i+1}")
    p(f"v_mul_f32 v{T}, {fhex(1.0/640)}, v{T}")
    p(f"s_mov_b32 s{S_T0}, {fhex(1.0/80)}")
    p(f"v_mov_b32 v{T+2}, 0")
    for i in range(8):
        p(f"v_fma_f32 v{T+3}, v{V_ST+2*i}, s{S_T0}, -v{T}")
        p(f"v_fmac_f32 v{T+2}, v{T+3}, v{T+3}")
    p(f"v_fmac_f32 v{T+1}, {fhex(80.0)}, v{T+2}")
    p(f"v_mul_f32 v{T+1}, {fhex(1.0/640)}, v{T+1}")
    round_bf16(p, T + 1, T + 1)
    p(f"v_add_f32 v{T+1}, {fhex(1e-5)}, v{T+1}")
    round_bf16(p, T + 1, T + 1)
    p(f"v_sqrt_f32 v{T+1}, v{T+1}")
    p(f"""
    v_sub_f32 v{T}, 0, v{T}
    v_cvt_pk_bf16_f32 v{V_E}, v{T}, v{T}
    v_cvt_pk_bf16_f32 v{V_E+1}, v{T+1}, v{T+1}
    v_mov_b32 v{V_E+2}, 0
    v_mov_b32 v{V_E+3}, 0
    v_and_b32 v{T+1}, 0xffff0000, v{V_E+1}
    v_rcp_f32 v{T+1}, v{T+1}
    """)
    p.sync(lgkm=0)
    for i in range(7):
        p(f"v_mfma_f32_32x32x16_bf16 {v(16*i,16)}, {a(A_A+4*i,4)}, {v(V_E,4)}, {v(16*i,16)}")
    p(f"v_mul_f32 v{T+1}, v{T+1}, v{T+1}")
    p(f"""
    v_and_b32 v{T+2}, 15, v114
    v_lshlrev_b32 v{T+2}, 4, v{T+2}
    v_bfe_u32 v{T+3}, v114, 4, 1
    v_lshl_add_u32 v{T+2}, v{T+3}, 10, v{T+2}
    v_lshrrev_b32 v{T+3}, 5, v114
    v_lshl_add_u32 v{T+2}, v{T+3}, 8, v{T+2}
    s_mul_i32 s{S_CG}, s{S_CG}, 27
    s_lshr_b32 s{S_CG}, s{S_CG}, 2
    """)
    stamp(3)
    for i in range(7):
        b = 16 * i
        p(f"""s_add_u32 s{S_T0}, s{S_CG}, {i}
        s_lshr_b32 s{S_T1}, s{S_T0}, 1
        s_lshl_b32 s{S_T1}, s{S_T1}, 12
        s_and_b32 s{S_T0}, s{S_T0}, 1
        s_lshl_b32 s{S_T0}, s{S_T0}, 9
        s_add_u32 s{S_T0}, s{S_T0}, s{S_T1}""")
        for r in range(8):
            p(f"v_mul_f32 v{b+r}, v{T+1}, v{b+r}")
        for r in range(8):
            p(f"v_mul_f32 v{b+r}, v{b+r}, v{b+8+r}")
        for d in range(4):
            p(f"v_cvt_pk_bf16_f32 v{b+8+d}, v{b+2*d}, v{b+2*d+1}")
        p(f"buffer_store_dwordx4 {v(b+8,4)}, v{T+2}, s[{S_H}:{S_H+3}], s{S_T0} offen")
    if stamps:
        stamp_store(p, 5, 2, S_W, S_T0)
    p(f"""
    L_{name}_end:
    s_endpgm
    """)
    p.finalize()
    return p


def kernels(stamps=False):
    return [('k2_kernel', gen_skinny('k2_kernel', 'wo', stamps), 256, 256, 81920),
            ('k3_kernel', gen_k3('k3_kernel', stamps), 256, 256, K3_NS * K3_SLOT),
            ('k4_kernel', gen_skinny('k4_kernel', 'down', stamps), 256, 256, 81920)]
```

```python
import sys
from common import *
import k0, k1
NAME = 'adaLN_cond__sliding_block_cached__glu_gated_bilinear__prompt'

def build(out, stamps=False, upto=99):
    ks = []
    ks.append(('k0_kernel', k0.gen_k0(), 496, 256, 1024))
    ks.append(('kw_kernel', k0.gen_kw(), 452, 256, 2048))
    ks.append(('k1_kernel', k1.gen_k1(stamps=stamps), 256, 256, k1.K1_LDS))
    try:
        import k2
        ks += k2.kernels(stamps)
    except ImportError:
        pass
    ks = ks[:upto]
    head = open('cdna_kernels/' + NAME + '.s.ref').read().split('; Override launch')[0]
    txt = head
    for n, p, g, b, l in ks:
        txt += f"; @launch kernel={n} grid=({g},1,1) block=({b},1,1) lds={l}\n"
    txt += '.amdgcn_target "amdgcn-amd-amdhsa--gfx950"\n'
    descs = ''
    for n, p, g, b, l in ks:
        c, d = kernel_text(n, p)
        txt += c; descs += d
    txt += descs
    open(out, 'w').write(txt)

if __name__ == '__main__':
    out = sys.argv[1] if len(sys.argv) > 1 else 'cur.s'
    build(out, stamps='stamps' in sys.argv)
```

```python
import re

def v(i, n=1):
    return f"v{i}" if n == 1 else f"v[{i}:{i+n-1}]"
def a(i, n=1):
    return f"a{i}" if n == 1 else f"a[{i}:{i+n-1}]"
def s(i, n=1):
    return f"s{i}" if n == 1 else f"s[{i}:{i+n-1}]"

_REG = re.compile(r'^(-|\|)?(abs\()?([vas])(\d+|\[(\d+):(\d+)\])\)?\|?$')

def parse_reg(tok):
    tok = tok.strip()
    if tok in ('vcc', 'exec', 'm0', 'scc'):
        return [tok]
    if tok in ('vcc_lo', 'vcc_hi'):
        return ['vcc']
    if tok in ('exec_lo', 'exec_hi'):
        return ['exec']
    m = _REG.match(tok)
    if not m:
        return []
    cls = m.group(3)
    if m.group(5) is not None:
        return [(cls, i) for i in range(int(m.group(5)), int(m.group(6)) + 1)]
    return [(cls, int(m.group(4)))]

TRANS = ('v_exp_f32', 'v_log_f32', 'v_rcp_f32', 'v_rsq_f32', 'v_sqrt_f32', 'v_sin_f32', 'v_cos_f32',
         'v_rcp_iflag_f32')

class Ins:
    __slots__ = ('text', 'op', 'dst', 'src', 'kind', 'passes', 'srcA', 'srcB', 'srcC', 'tag',
                 'need', 'wide', 'dpp', 'comment', 'pos', 'nops', 'cost', 'cond')

    def __init__(self, text, tag=None, need=None):
        self.text = text
        self.tag = tag
        self.need = need
        self.passes = 0
        self.cond = None
        self.srcA = self.srcB = self.srcC = ()
        self.wide = False
        self.dpp = False
        body = text.split(';')[0].strip()
        parts = body.split(None, 1)
        self.op = op = parts[0]
        ops = []
        if len(parts) > 1:
            depth = 0; cur = ''
            for ch in parts[1]:
                if ch in '[(':
                    depth += 1
                if ch in '])':
                    depth -= 1
                if ch == ',' and depth == 0:
                    ops.append(cur.strip()); cur = ''
                else:
                    cur += ch
            ops.append(cur.strip())
        mods = ''
        if ops:
            last = ops[-1].split(None, 1)
            if len(last) > 1:
                ops[-1] = last[0]; mods = last[1]
        R = [parse_reg(o) for o in ops]
        flat = lambda L: [r for x in L for r in x]
        dst = []; src = []
        if op.endswith(':') or op.startswith('.'):
            kind = 'label'
        elif op.startswith('v_mfma'):
            kind = 'mfma'
            dst = R[0]; self.srcA = tuple(R[1]); self.srcB = tuple(R[2]); self.srcC = tuple(R[3])
            src = R[1] + R[2] + R[3]
            self.passes = 8 if '32x32x16' in op else 4
            assert '32x32x16' in op or '16x16x32' in op
        elif op.startswith('buffer_load') or op.startswith('global_load') :
            if ' lds' in (' ' + mods) or 'load_lds' in op:
                kind = 'dma'; src = flat(R) + ['m0']
            else:
                kind = 'vload'; dst = R[0]; src = flat(R[1:])
        elif op.startswith('buffer_store') or op.startswith('global_store'):
            kind = 'vstore'; src = flat(R)
            self.wide = 'x3' in op or 'x4' in op
            self.srcA = tuple(R[0] if op.startswith('buffer') else R[1])
        elif op.startswith('global_atomic') or op.startswith('buffer_atomic'):
            if 'sc0' in mods and op.startswith('global'):
                kind = 'vload'; dst = R[0]; src = flat(R[1:])
            elif 'sc0' in mods:
                kind = 'vload'; dst = R[0]; src = flat(R)
            else:
                kind = 'vstore'; src = flat(R)
        elif op in ('buffer_wbl2', 'buffer_inv'):
            kind = 'vstore'
        elif op.startswith('ds_read') or op.startswith('ds_bpermute') or op.startswith('ds_swizzle') or op.startswith('ds_permute'):
            kind = 'dsread'; dst = R[0]; src = flat(R[1:])
        elif op.startswith('ds_write') or op.startswith('ds_add') or op.startswith('ds_max') or op.startswith('ds_or'):
            kind = 'dswrite'; src = flat(R)
        elif op.startswith('s_load') or op.startswith('s_memtime') or op.startswith('s_memrealtime'):
            kind = 'smem'; dst = R[0]; src = flat(R[1:])
        elif op == 's_waitcnt':
            kind = 'wait'
        elif op == 'waittag':
            kind = 'waittag'
        elif op == 's_nop':
            kind = 'nop'
        elif op == 's_barrier':
            kind = 'barrier'
        elif op.startswith('s_cbranch') or op == 's_branch' or op == 's_endpgm':
            kind = 'branch'
            if 'vcc' in op: src = ['vcc']
            if 'exec' in op: src = ['exec']
            if 'scc' in op: src = ['scc']
        elif op.startswith('s_cmp') or op.startswith('s_bitcmp'):
            kind = 'salu'; dst = ['scc']; src = flat(R)
        elif op in ('s_setprio', 's_sleep', 's_setreg_imm32_b32'):
            kind = 'salu'
        elif op.startswith('s_'):
            kind = 'salu'; dst = R[0] + ['scc']; src = flat(R[1:])
            if 'saveexec' in op:
                dst = dst + ['exec']; src = src + ['exec']
            if op.startswith('s_addc') or op.startswith('s_cselect') or op.startswith('s_subb'):
                src = src + ['scc']
            if op.startswith('s_addk') or op.startswith('s_mulk'):
                src = src + R[0]
            if op.startswith('s_mov') or op.startswith('s_getreg') or op.startswith('s_mul_') or op.startswith('s_cselect'):
                dst = R[0]
        elif op.startswith('v_'):
            kind = 'trans' if op.replace('_e32', '').replace('_e64', '') in TRANS else 'valu'
            if op.startswith('v_cmp'):
                dst = R[0]; src = flat(R[1:])
            elif '_co_' in op:
                dst = R[0] + R[1]; src = flat(R[2:])
            elif op.startswith('v_permlane') and 'swap' in op:
                dst = R[0] + R[1]; src = R[0] + R[1]
            elif op.startswith('v_div_scale'):
                dst = R[0] + R[1]; src = flat(R[2:])
            else:
                dst = R[0]; src = flat(R[1:])
                if op.startswith('v_fmac') or op.startswith('v_dot2c') or op.startswith('v_writelane') or op.startswith('v_mac'):
                    src = src + R[0]
                if op.startswith('v_div_fmas'):
                    src = src + ['vcc']
                if op.startswith('v_cndmask') and len(ops) == 3:
                    src = src + ['vcc']
            if '_dpp' in op or 'row_' in mods or 'quad_perm' in mods:
                self.dpp = True
                src = src + R[0]
        else:
            raise ValueError('unknown instruction: ' + text)
        self.kind = kind
        self.dst = tuple(dst)
        self.src = tuple(src)

    def states(self):
        if self.kind in ('label', 'waittag'):
            return 0
        if self.kind == 'nop':
            return int(self.text.split()[1], 0) + 1
        return 1


def mksync(regs=(), dma_keep=None, lgkm=None):
    rs = []
    for r in regs:
        rs += parse_reg(r)
    return Ins('waittag', need=dict(regs=rs, dma_keep=dma_keep, lgkm=lgkm))


class Loop:
    def __init__(self, body, n):
        self.body = body
        self.n = n


class Prog:
    def __init__(self):
        self.items = []
        self.cur = self.items
        self.cond = None
        self._nc = 0

    def begin_cond(self):
        self._nc += 1
        self.cond = self._nc

    def end_cond(self):
        self.cond = None

    def __call__(self, text, tag=None):
        for line in text.split('\n'):
            line = line.strip()
            if not line or line.startswith(';'):
                continue
            ins = Ins(line, tag=tag); ins.cond = self.cond
            self.cur.append(ins)

    def add(self, ins):
        if isinstance(ins, str):
            self(ins)
        else:
            ins.cond = self.cond
            self.cur.append(ins)

    def extend(self, lst):
        for i in lst:
            self.add(i)

    def sync(self, regs=(), dma_keep=None, lgkm=None):
        self.add(mksync(regs, dma_keep, lgkm))

    def begin_loop(self):
        self.cur = []

    def end_loop(self, n):
        self.items.append(Loop(self.cur, n))
        self.cur = self.items

    def _trace(self, maxrep=4):
        for it in self.items:
            if isinstance(it, Loop):
                for rep in range(min(it.n, maxrep)):
                    for ins in it.body:
                        yield ins
            else:
                yield it

    def _flat(self):
        for it in self.items:
            if isinstance(it, Loop):
                yield from it.body
            else:
                yield it

    def resolve_waits(self):
        waits = {}
        def simulate(existing, record):
            vmq = []
            lgq = []
            def younger(q, i, c):
                return sum(1 for e in q[i + 1:] if e[2] is None or e[2] == c)
            def apply(q, n, c):
                q[:] = [e for i, e in enumerate(q) if not (younger(q, i, c) >= n and (c is None or e[2] == c))]
            for ins in self._trace():
                vm_need = None; lg_need = None
                c = ins.cond
                if ins.kind == 'wait':
                    m = re.search(r'vmcnt\((\d+)\)', ins.text)
                    if m: apply(vmq, int(m.group(1)), c)
                    m = re.search(r'lgkmcnt\((\d+)\)', ins.text)
                    if m: apply(lgq, int(m.group(1)), c)
                    continue
                touched = set(ins.src) | set(ins.dst)
                if ins.kind == 'waittag':
                    touched = set(ins.need['regs'])
                    keep = ins.need['dma_keep']
                    if keep is not None:
                        idx = [i for i, e in enumerate(vmq) if e[1] == 'dma']
                        if len(idx) > keep:
                            vm_need = younger(vmq, idx[len(idx) - keep - 1], c)
                    if ins.need['lgkm'] is not None and len(lgq) > ins.need['lgkm']:
                        lg_need = ins.need['lgkm']
                vtouched = set(ins.src) if ins.kind == 'vload' else touched
                for i, e in enumerate(vmq):
                    if e[0] & vtouched:
                        n = younger(vmq, i, c)
                        vm_need = n if vm_need is None else min(vm_need, n)
                for i, e in enumerate(lgq):
                    if e[0] & touched:
                        n = younger(lgq, i, c)
                        if any(x[1] for x in lgq):
                            n = 0
                        lg_need = n if lg_need is None else min(lg_need, n)
                if vm_need is not None: vm_need = min(vm_need, 63)
                if lg_need is not None: lg_need = min(lg_need, 15)
                if record is not None and (vm_need is not None or lg_need is not None):
                    o = record.get(id(ins), (None, None))
                    mn = lambda x, y: y if x is None else (x if y is None else min(x, y))
                    record[id(ins)] = (mn(o[0], vm_need), mn(o[1], lg_need))
                w = existing.get(id(ins)) if existing is not None else (vm_need, lg_need)
                if existing is not None:
                    ew = w or (None, None)
                    if vm_need is not None:
                        assert ew[0] is not None and ew[0] <= vm_need, ('vm wait insufficient', ins.text)
                    if lg_need is not None:
                        assert ew[1] is not None and ew[1] <= lg_need, ('lgkm wait insufficient', ins.text)
                if w:
                    if w[0] is not None: apply(vmq, w[0], c)
                    if w[1] is not None: apply(lgq, w[1], c)
                if ins.kind in ('vload', 'vstore', 'dma'):
                    vmq.append((set(ins.dst), 'dma' if ins.kind == 'dma' else ins.tag, c))
                    assert len(vmq) <= 63, 'more than 63 VMEM ops outstanding at ' + ins.text
                elif ins.kind in ('dsread', 'dswrite'):
                    lgq.append((set(ins.dst), False, c))
                elif ins.kind == 'smem':
                    lgq.append((set(ins.dst), True, c))
        simulate(None, waits)
        for _ in range(3):
            w2 = {}
            simulate(waits, w2)
            neww = {}
            for k, val in waits.items():
                if k in w2:
                    neww[k] = (val[0] if w2[k][0] is not None else None, val[1] if w2[k][1] is not None else None)
            if neww == waits:
                break
            waits = neww
        simulate(waits, None)
        return waits

    def apply_waits(self):
        waits = self.resolve_waits()
        def rebuild(lst):
            out = []
            for ins in lst:
                if isinstance(ins, Loop):
                    ins.body = rebuild(ins.body); out.append(ins); continue
                w = waits.get(id(ins))
                if w and (w[0] is not None or w[1] is not None):
                    t = 's_waitcnt'
                    if w[0] is not None: t += f' vmcnt({w[0]})'
                    if w[1] is not None: t += f' lgkmcnt({w[1]})'
                    wi = Ins(t); wi.cond = ins.cond; out.append(wi)
                if ins.kind != 'waittag':
                    out.append(ins)
            return out
        self.items = rebuild(self.items)
        self.cur = self.items

    def required_gap(self, p, c):
        need = 0
        pk, ck = p.kind, c.kind
        pd = set(p.dst)
        isvalu_p = pk in ('valu', 'trans')
        isvalu_c = ck in ('valu', 'trans')
        csrc = set(c.src); cdst = set(c.dst)
        if isvalu_p:
            pv = {r for r in pd if isinstance(r, tuple) and r[0] in 'va'}
            ps = {r for r in pd if (isinstance(r, tuple) and r[0] == 's') or r == 'vcc'}
            if ck == 'mfma' and pv & csrc: need = max(need, 2)
            if isvalu_c:
                if c.op.startswith('v_permlane') and pv & csrc: need = max(need, 2)
                if c.dpp and pv & csrc: need = max(need, 2)
                if (c.op.startswith('v_readlane') or c.op.startswith('v_readfirstlane')) and pv & csrc: need = max(need, 1)
                if pk == 'trans' and ck != 'trans' and pv & csrc: need = max(need, 1)
                if pk == 'trans' and ck == 'trans' and pv & csrc: need = max(need, 1)
                if ps & csrc:
                    need = max(need, 4 if (c.op.startswith('v_readlane') or c.op.startswith('v_writelane') or c.op.startswith('v_div_fmas')) else 2)
                if ('sdwa' in p.op and 'dst_sel:DWORD' not in p.text) and pv & (csrc | cdst): need = max(need, 1)
            if p.op.startswith('v_dot') and pv & (csrc | cdst) and c.op != p.op: need = max(need, 3)
            if ck in ('vload', 'vstore', 'dma') and ps & csrc: need = max(need, 5)
            if pk == 'trans' and ck in ('vstore', 'dswrite', 'dsread', 'vload', 'dma') and pv & csrc: need = max(need, 1)
            if ck == 'branch' and 'vcc' in ps and 'vcc' in csrc: need = max(need, 5)
            if ck == 'salu' and ps & csrc: need = max(need, 1)
            if 'exec' in pd: need = max(need, 5)
        if pk == 'mfma':
            P = p.passes
            if ck == 'mfma':
                C = set(c.srcC)
                if pd & C:
                    if not (tuple(p.dst) == tuple(c.srcC) and p.passes == c.passes):
                        need = max(need, P + 2)
                if pd & (set(c.srcA) | set(c.srcB)): need = max(need, P + 4)
                if pd & cdst and not (pd & C):
                    if tuple(p.dst) != tuple(c.dst): need = max(need, P + 2)
            elif isvalu_c or ck in ('vload', 'vstore', 'dma', 'dsread', 'dswrite'):
                if pd & (csrc | cdst): need = max(need, P + 4)
                if isvalu_c and set(p.srcC) & cdst: need = max(need, P - 1)
        if pk == 'salu' and 'm0' in pd and ck == 'dma': need = max(need, 1)
        if pk == 'vstore' and p.wide and set(p.srcA) & cdst:
            need = max(need, 2 if isvalu_c else 1)
        if pk == 'salu' and 'exec' in pd and c.dpp: need = max(need, 1)
        return need

    def apply_nops(self, verbose=False):
        WIN = 24
        extra = {}
        changed = True
        while changed:
            changed = False
            hist = []
            pos = 0
            uhist = []; upos = 0
            for ins in self._trace():
                if ins.kind == 'label':
                    continue
                pos += extra.get(id(ins), 0)
                short = 0
                cands = hist[-WIN:]
                if ins.cond is None:
                    cands = cands + [(q_, pos - (upos + extra.get(id(ins), 0) - up_)) for (q_, up_) in uhist[-WIN:]]
                for (p, ppos) in cands:
                    gap = pos - ppos
                    if gap >= 20: continue
                    need = self.required_gap(p, ins)
                    if need > gap:
                        short = max(short, need - gap)
                if short:
                    extra[id(ins)] = extra.get(id(ins), 0) + short
                    pos += short
                    changed = True
                pos += ins.states()
                hist.append((ins, pos))
                if ins.cond is None:
                    upos += extra.get(id(ins), 0) + ins.states()
                    uhist.append((ins, upos))
        total = 0
        def rebuild(lst):
            nonlocal total
            out = []
            for ins in lst:
                if isinstance(ins, Loop):
                    ins.body = rebuild(ins.body); out.append(ins); continue
                n = extra.get(id(ins), 0)
                if n and verbose:
                    print(f'  nop x{n} before: {ins.text}')
                total += n
                while n > 0:
                    k = min(n, 16)
                    out.append(Ins(f's_nop {k-1}'))
                    n -= k
                out.append(ins)
            return out
        self.items = rebuild(self.items)
        self.cur = self.items
        return total

    def finalize(self, verbose=False):
        self.apply_waits()
        n = self.apply_nops(verbose)
        return n

    def text(self):
        out = []
        for ins in self._flat():
            if ins.kind == 'label':
                out.append(ins.text)
            else:
                out.append('    ' + ins.text)
        return '\n'.join(out) + '\n'

    def stats(self):
        from collections import Counter
        c = Counter()
        for it in self.items:
            if isinstance(it, Loop):
                for ins in it.body: c[ins.kind] += it.n
            else:
                c[it.kind] += 1
        return dict(c)

    def maxregs(self):
        mv = ma = ms = -1
        for ins in self._flat():
            for r in list(ins.dst) + list(ins.src):
                if isinstance(r, tuple):
                    if r[0] == 'v': mv = max(mv, r[1])
                    if r[0] == 'a': ma = max(ma, r[1])
                    if r[0] == 's': ms = max(ms, r[1])
        return mv + 1, ma + 1, ms + 1


def interleave(backbone, fillers):
    out = []
    for m, f in zip(backbone, fillers):
        out.append(m)
        out.extend(f)
    return out


def kernel_text(name, prog, lds_static=0, force_vgpr=None):
    nv, na, ns = prog.maxregs()
    acc = max(4, (nv + 3) // 4 * 4)
    nfv = acc + na if na > 0 else max(nv, 1)
    if force_vgpr:
        nfv = max(nfv, force_vgpr)
    if na == 0:
        acc = min(256, (nfv + 3) // 4 * 4)
    code = f""".text
.globl {name}
.p2align 8
.type {name},@function
{name}:
{prog.text()}"""
    desc = f""".section .rodata,"a"
.p2align 6
.amdhsa_kernel {name}
  .amdhsa_next_free_vgpr {nfv}
  .amdhsa_next_free_sgpr {max(ns, 8)}
  .amdhsa_accum_offset {acc}
  .amdhsa_group_segment_fixed_size 0
  .amdhsa_kernarg_size 112
  .amdhsa_user_sgpr_count 2
  .amdhsa_user_sgpr_kernarg_segment_ptr 1
  .amdhsa_system_sgpr_workgroup_id_x 1
  .amdhsa_float_denorm_mode_32 3
  .amdhsa_float_denorm_mode_16_64 3
.end_amdhsa_kernel
"""
    return code, desc


def icost(x):
    if not isinstance(x, str):
        return 4
    op = x.split()[0]
    if op.startswith('buffer_') or op.startswith('global_'): return 8
    if op.startswith('ds_'): return 5
    if op == 's_barrier': return 18
    if op.startswith('s_cbranch'): return 22
    if op.replace('_e32', '').replace('_e64', '') in TRANS: return 8
    return 4

def gcost(L):
    nl = sum(1 for x in L if isinstance(x, str) and x.startswith('ds_'))
    c = sum(icost(x) for x in L if not (isinstance(x, str) and x.startswith('ds_')))
    return c + (0 if nl == 0 else 4 + 6 * (nl - 1))

def pack(M, fixed, stream, budget=24, start=0, stop=None, verbose=None):
    n = len(M)
    stop = n if stop is None else stop
    gaps = [list(fixed.get(g, [])) for g in range(n)]
    base = [gcost(gaps[g]) for g in range(n)]
    m = len(stream)
    pre = [0]
    for x in stream: pre.append(pre[-1] + icost(x))
    INF = float('inf')
    best = [0] + [INF] * m
    back = []
    for g in range(start, stop):
        nb = [INF] * (m + 1); bk = [0] * (m + 1)
        for j in range(m + 1):
            for i in range(max(0, j - 24), j + 1):
                if best[i] == INF: continue
                c = base[g] + pre[j] - pre[i]
                val = best[i] + max(0, c - budget) * 10000 + c * c
                if val < nb[j]: nb[j] = val; bk[j] = i
        best = nb; back.append(bk)
    j = m
    for g in range(stop - 1, start - 1, -1):
        i = back[g - start][j]
        gaps[g] += stream[i:j]
        j = i
    if verbose:
        est = sum(max(budget, gcost(gaps[g])) + 8 for g in range(n))
        print(f'  pack[{verbose}]: {n} MFMA, est {est} cyc ({est/n:.2f}/MFMA), gap costs', [gcost(gaps[g]) for g in range(n)])
    return interleave(M, gaps)
```

```python
from common import *
import math, sys

OPT = {}
NM = 'L'

P_X, P_K, P_V, P_WQ, P_WO, P_BX, P_WG, P_WU, P_WD, P_C, P_WMOD, P_OUT, P_DBG, P_WS = range(64, 92, 2)
S_WAVE, S_T0, S_T1, S_T2 = 60, 61, 62, 63
S_EX = 92
S_SPIN = 94
S_ST = 96

C_WOF, C_WP, C_F1, C_F2, C_F3, C_N = 0, 32, 64, 192, 256, 320
SPIN_MAX = 1 << 16

SLOT, WBLK, PADI = 16768, 4192, 1040
PAIR = 2 * SLOT
LDS_TOTAL = 163840
RING0 = LDS_TOTAL - 4 * PAIR
LDS_TABW = 0
LDS_TABG = 640
LDS_CONST = 1280
LDS_JUNK = LDS_CONST + 10240
IMG_W, IMG_A, IMG_B = 1280, 1280 + 20480, 1280 + 40960
QSCALE = LOG2E / math.sqrt(128.0)

nstamp = 0
def TIMER(): return "s_memtime" if OPT.get("cyc") else "s_memrealtime"
def stamp(p):
    global nstamp
    if OPT.get('stamps'):
        p(f"{TIMER()} s[{S_ST}:{S_ST+1}]\ns_waitcnt lgkmcnt(0)\nv_accvgpr_write_b32 a{224+nstamp}, s{S_ST}")
        nstamp += 1
        assert nstamp <= 28

def lane_id(p, r):
    p(f"v_mbcnt_lo_u32_b32 v{r}, -1, 0")
    p(f"v_mbcnt_hi_u32_b32 v{r}, -1, v{r}")

def mksrd(p, d, ptr, off, size):
    if off is None or off == 0:
        p(f"s_mov_b32 s{d}, s{ptr}\ns_mov_b32 s{d+1}, s{ptr+1}")
    else:
        p(f"s_add_u32 s{d}, s{ptr}, {off}\ns_addc_u32 s{d+1}, s{ptr+1}, 0")
    p(f"s_mov_b32 s{d+2}, {size}\ns_mov_b32 s{d+3}, 0x00020000")

def signal(p, sidx, va, vb, base=P_WS, shift=8, add=WS_CNT):
    p(f"""s_lshl_b32 s{S_T2}, s{sidx}, {shift}
    s_add_u32 s{S_T2}, s{S_T2}, {add}
    v_mov_b32 v{va}, s{S_T2}
    v_mov_b32 v{vb}, 1
    s_mov_b64 exec, 1
    global_atomic_add v{va}, v{vb}, s[{base}:{base+1}] sc1
    s_mov_b64 exec, -1""")

npoll = 0
def poll(p, va, vd, expect, base=P_WS):
    global npoll
    npoll += 1
    p(f"""s_mov_b32 s{S_SPIN}, 0
    {NM}_poll{npoll}:
    global_load_dword v{vd}, v{va}, s[{base}:{base+1}] sc1
    s_add_u32 s{S_SPIN}, s{S_SPIN}, 1
    s_waitcnt vmcnt(0)
    v_cmp_gt_u32 vcc, {expect}, v{vd}
    s_cmp_gt_u32 s{S_SPIN}, {SPIN_MAX}
    s_cbranch_scc1 {NM}_pdone{npoll}
    s_cbranch_vccnz {NM}_poll{npoll}
    {NM}_pdone{npoll}:""")

def dpp_ror_add(p, r, n):
    p(f"v_add_f32_dpp v{r}, v{r}, v{r} row_ror:{n} row_mask:0xf bank_mask:0xf")

def mod_loads(p, srdn, row, vaddr, dst, n4, imms, soff=None):
    for kq in range(4):
        mksrd(p, srdn, P_WS, WS_MOD + kq * 15360 + row * 2560, 2560)
        for i in range(n4):
            p(f"buffer_load_dwordx4 {v(dst+4*(n4*kq+i),4)}, v{vaddr}, s[{srdn}:{srdn+3}], {soff or 0} offen offset:{imms[i]} sc1")

def mod_sum(p, dst, n):
    for e in range(n):
        p(f"v_add_f32 v{dst+e}, v{dst+e}, v{dst+n+e}")
        p(f"v_add_f32 v{dst+2*n+e}, v{dst+2*n+e}, v{dst+3*n+e}")
    for e in range(n):
        p(f"v_add_f32 v{dst+e}, v{dst+e}, v{dst+2*n+e}")
    for e in range(0, n, 2):
        p(f"v_cvt_pk_bf16_f32 v{dst+e}, v{dst+e}, v{dst+e+1}")
        p(f"v_and_b32 v{dst+e+1}, 0xffff0000, v{dst+e}")
        p(f"v_lshlrev_b32 v{dst+e}, 16, v{dst+e}")

V_Q, V_S, V_X, V_C, V_H, V_T, V_AW, V_DMA, V_CA, V_L16, V_LS = 0, 64, 128, 192, 224, 240, 244, 248, 252, 253, 254
V_NEGM, V_AK, V_AV = 192, 240, 244
V_P = [224, 128]
A_O, A_K, A_V = 0, 128, 160
S_KS, S_VS, S_XN, S_O, S_G = 8, 12, 16, 20, 24
S_DA, S_DB = 28, 32
S_DOFF, S_DSTEP, S_XOFF, S_CNT, S_WR, S_DELTA, S_POS, S_WOFF, S_CM3, S_HEAD, S_QB, S_DMASK = range(36, 48)
S_RDB, S_SOFF, S_SWR, S_SSTEP = S_DSTEP, 4, S_XOFF, S_DMASK
S_JA, S_JB = 48, 52
S_JIN = 58
S_JBN = 59
S_WPO = 5
S_WIN = 6
S_WPX = 7
S_RB, S_CT = 56, 57
S_OOFF = 98
V_SC, V_JO, V_WO = 144, 145, 146
A_SF = 192
A_XR = 200

def acc(dt, qt): return 16 * (2 * dt + qt)
def qfrag(qt, m): return V_Q + 8 * (2 * (m >> 1) + qt) + 4 * (m & 1)
def oacc(dt, qt): return A_O + 16 * (2 * dt + qt)

def dma4():
    L = []
    for i in range(4):
        srdn = S_DA if i < 2 else S_DB
        off = f" offset:{i*PADI}" if i else ""
        L.append(f"buffer_load_dwordx4 v{V_DMA+i}, s[{srdn}:{srdn+3}], s{S_DOFF} offen{off} nt lds")
    return L

def dma_pair_qp():
    adv = [f"s_add_u32 s{S_DOFF}, s{S_DOFF}, s{S_DSTEP}"]
    return [f"s_mov_b32 m0, s{S_WR}"] + dma4() + adv + [f"s_add_u32 m0, m0, s{S_T1}"] + dma4() + adv

def dma_pair_at():
    adv = [f"s_add_u32 s{S_DOFF}, s{S_DOFF}, 8192"]
    return [f"s_mov_b32 m0, s{S_WR}"] + dma4() + adv + [f"s_add_u32 m0, m0, {SLOT}"] + dma4() + adv

def pos_update():
    return [f"s_add_u32 s{S_POS}, s{S_POS}, 1",
            f"s_and_b32 s{S_POS}, s{S_POS}, 3",
            f"s_cselect_b32 s{S_DELTA}, {PAIR}, s{S_CM3}"]
def wr_update():
    return [f"s_xor_b32 s{S_WR}, s{S_POS}, 2",
            f"s_mul_i32 s{S_WR}, s{S_WR}, {PAIR}",
            f"s_add_u32 s{S_WR}, s{S_WR}, s{S_WOFF}"]
def pos_update_at():
    return [f"s_add_u32 s{S_POS}, s{S_POS}, 1",
            f"s_cmp_eq_u32 s{S_POS}, 4",
            f"s_cselect_b32 s{S_POS}, 1, s{S_POS}",
            f"s_cselect_b32 s{S_DELTA}, s{S_CM3}, {PAIR}",
            f"s_mov_b32 s{S_WR}, s{S_RDB}",
            f"s_add_u32 s{S_RDB}, s{S_RDB}, s{S_DELTA}"]

def a_reads(buf, kp):
    L = []
    for dt in range(4):
        for jj in range(2):
            r = A_K + 16 * buf + 4 * dt + 2 * jj
            L.append(f"ds_read_b64_tr_b16 a[{r}:{r+1}], v{V_AW+dt} offset:{(kp//4)*SLOT + (kp%4)*WBLK + jj*PADI}")
    return L

def c_reads(buf, off):
    return [f"ds_read_b128 {v(V_C+16*buf+4*i,4)}, v{V_CA} offset:{off+16*i}" for i in range(4)]

def h_valu(xr, cbuf, hbuf):
    L = []
    n = 0
    for qt in range(2):
        for d in range(4):
            x = V_X + 8 * xr + 4 * qt + d
            ca = V_C + 16 * cbuf + 2 * d
            t0 = V_T + 2 * (n % 2); n += 1
            L.append(f"v_fma_mix_f32 v{t0}, v{x}, v{ca}, v{ca+8} op_sel_hi:[1,0,0]")
            L.append(f"v_fma_mix_f32 v{t0+1}, v{x}, v{ca+1}, v{ca+9} op_sel:[1,0,0] op_sel_hi:[1,0,0]")
            L.append(f"v_cvt_pk_bf16_f32 v{V_H+8*hbuf+4*qt+d}, v{t0}, v{t0+1}")
    return L

def x_loads(xr, imm):
    return [f"buffer_load_dwordx4 {v(V_X+8*xr+4*qt,4)}, v{V_L16}, s[{S_XN}:{S_XN+3}], s{S_XOFF} offen offset:{imm+1024*qt} sc1"
            for qt in range(2)]

def k_reads(slotimm):
    return [f"ds_read_b128 {a(A_K+4*m,4)}, v{V_AK+(m>>1)} offset:{slotimm+(m&1)*32}" for m in range(8)]

def v_reads(slotimm, dst=A_V):
    L = []
    for ks in range(2):
        for dt in range(4):
            for jj in range(2):
                r = dst + 16 * ks + 4 * dt + 2 * jj
                L.append(f"ds_read_b64_tr_b16 a[{r}:{r+1}], v{V_AV+dt} offset:{slotimm + 2080 + (2*ks+jj)*WBLK}")
    return L

def qk_mfmas(sbuf, cinit):
    L = []
    for m in range(8):
        for qt in range(2):
            d = V_S + 32 * sbuf + 16 * qt
            c = ('0' if cinit == 'zero' else v(V_NEGM + 16 * qt, 16)) if m == 0 else v(d, 16)
            L.append(f"v_mfma_f32_32x32x16_bf16 {v(d,16)}, {a(A_K+4*m,4)}, {v(qfrag(qt,m),4)}, {c}")
    return L

def pv_mfmas(pbuf, src=A_V):
    L = []
    for ks in range(2):
        for dt in range(4):
            for qt in range(2):
                o = oacc(dt, qt)
                L.append(f"v_mfma_f32_32x32x16_bf16 {a(o,16)}, {a(src+16*ks+4*dt,4)}, {v(V_P[pbuf]+8*qt+4*ks,4)}, {a(o,16)}")
    return L

def softmax_stream(sbuf, pbuf):
    elems = [(qt, r) for ks in range(2) for qt in range(2) for r in range(8 * ks, 8 * ks + 8)]
    L = []
    def post(i):
        qt, r = elems[i]
        x = V_S + 32 * sbuf + 16 * qt + r
        L.append(f"v_add_f32 v{V_LS+qt}, v{V_LS+qt}, v{x}")
        if r % 2 == 1:
            L.append(f"v_cvt_pk_bf16_f32 v{V_P[pbuf]+8*qt+r//2}, v{x-1}, v{x}")
    for i, (qt, r) in enumerate(elems):
        x = V_S + 32 * sbuf + 16 * qt + r
        L.append(f"v_exp_f32 v{x}, v{x}")
        if i >= 1: post(i - 1)
    post(31)
    return L

def put(fixed, items, positions):
    assert len(items) == len(positions), (len(items), len(positions))
    for it, g in zip(items, positions):
        fixed.setdefault(g, []).append(it)

def order_gap(fixed):
    def key(x):
        if not isinstance(x, str): return 1
        if x.startswith('buffer_') or x.startswith('ds_') or x.startswith('global_'): return 0
        if x.startswith('s_'): return 1
        return 2
    for g in fixed:
        fixed[g].sort(key=key)

def prefill(p, lo, hi):
    for i in range(lo, hi):
        p(f"""s_add_u32 s{S_T0}, s{S_QB}, {i}
        s_and_b32 s{S_T0}, s{S_T0}, 7
        s_lshl_b32 s{S_DOFF}, s{S_T0}, 19
        s_mul_i32 s{S_T0}, s{S_T0}, {SLOT}
        s_add_u32 m0, s{S_T0}, s{S_WOFF}""")
        p.extend(dma4())


def phase0(p):
    p(f"""
    s_load_dwordx16 s[64:79], s[0:1], 0
    s_load_dwordx8 s[80:87], s[0:1], 64
    s_load_dwordx4 s[88:91], s[0:1], 96
    v_lshrrev_b32 v1, 6, v0
    v_readfirstlane_b32 s{S_WAVE}, v1
    """)
    if not OPT.get('nocodepf'):
        p(f"""
        s_getpc_b64 s[4:5]
        {NM}_pc:
        s_lshr_b32 s3, s2, 3
        s_lshl_b32 s3, s3, 11
        v_lshlrev_b32 v1, 3, v0
        v_add_u32 v1, s3, v1
        v_min_u32 v1, {NM}_codeend-{NM}_pc-8, v1
        global_load_dwordx2 v[126:127], v1, s[4:5]
        """)
    p(f"""
    s_and_b32 s{S_HEAD}, s2, 7
    s_lshl_b32 s{S_HEAD}, s{S_HEAD}, 2
    s_bfe_u32 s{S_T0}, s2, 0x20003
    s_add_u32 s{S_HEAD}, s{S_HEAD}, s{S_T0}
    s_lshr_b32 s{S_QB}, s2, 5
    s_mul_i32 s{S_WOFF}, s{S_WAVE}, {WBLK}
    s_add_u32 s{S_WOFF}, s{S_WOFF}, {RING0}
    """)
    p(f"""
    s_lshl_b32 s3, s2, 3
    v_lshrrev_b32 v1, 5, v0
    v_add_u32 v3, s3, v1
    v_and_b32 v2, 31, v0
    v_mul_u32_u24 v3, 1280, v3
    v_lshl_add_u32 v3, v2, 3, v3
    """)
    p(f"""
    s_and_b32 s6, s2, 3
    s_mul_i32 s6, s6, 160
    s_lshr_b32 s7, s2, 2
    s_lshl_b32 s3, s7, 7
    s_cmp_ge_u32 s2, 240
    s_cselect_b32 s3, 0x40000000, s3
    v_lshrrev_b32 v4, 3, v0
    v_add_u32 v4, s6, v4
    v_mul_u32_u24 v5, 7680, v4
    v_and_b32 v6, 7, v0
    v_lshlrev_b32 v6, 4, v6
    v_add3_u32 v5, v5, v6, s3
    v_lshlrev_b32 v4, 1, v4
    """)
    p(f"""
    v_and_b32 v7, 63, v0
    v_lshlrev_b32 v{V_L16}, 4, v7
    v_lshrrev_b32 v98, 4, v7
    v_and_b32 v99, 15, v7
    v_lshlrev_b32 v100, 2, v98
    v_xor_b32 v99, v100, v99
    v_lshlrev_b32 v99, 4, v99
    v_lshl_add_u32 v99, v98, 13, v99
    s_lshl_b32 s{S_T0}, s{S_WAVE}, 17
    v_add_u32 v{V_DMA}, s{S_T0}, v99
    """)
    for i in range(1, 4):
        p(f"v_add_u32 v{V_DMA+i}, {i*(4*8192-PADI)}, v{V_DMA}")
    for i in range(5):
        p(f"s_mov_b32 s{50+i}, {i*32*7680}")
    p("s_waitcnt lgkmcnt(0)")
    mksrd(p, 8, P_X, None, SZ_X)
    mksrd(p, 12, P_C, None, SZ_C)
    mksrd(p, 16, P_WMOD, None, SZ_WMOD)
    for i in range(5):
        p(f"buffer_load_dwordx2 {v(8+2*i,2)}, v3, s[8:11], 0 offen offset:{i*256} nt")
    for i in range(5):
        p(f"buffer_load_ushort v{52+i}, v4, s[12:15], 0 offen offset:{i*64}")
    for i in range(5):
        p(f"buffer_load_dwordx4 {v(60+4*i,4)}, v5, s[16:19], s{50+i} offen nt")
    p(f"""
    s_lshl_b32 s{S_T0}, s{S_HEAD}, 8
    s_add_u32 s{S_DA}, s{P_WQ}, s{S_T0}
    s_addc_u32 s{S_DA+1}, s{P_WQ+1}, 0
    s_sub_u32 s{S_DA+2}, {SZ_WQ}, s{S_T0}
    s_mov_b32 s{S_DA+3}, 0x00020000
    s_mov_b32 s{S_DB}, s{S_DA}
    s_mov_b32 s{S_DB+1}, s{S_DA+1}
    s_mov_b32 s{S_DB+2}, s{S_DA+2}
    s_mov_b32 s{S_DB+3}, 0x00020000
    """)
    NB1 = OPT.get('nb1', 2)
    prefill(p, 0, NB1)
    p(f"""
    v_lshrrev_b32 v6, 1, v2
    v_lshlrev_b32 v6, 7, v6
    v_lshl_add_u32 v6, v1, 4, v6
    v_and_b32 v7, 1, v2
    v_lshl_add_u32 v6, v7, 3, v6
    v_add_u32 v6, {LDS_CONST}, v6
    """)
    for i in range(10):
        p(f"v_lshlrev_b32 v{20+2*i}, 16, v{8+i}")
        p(f"v_and_b32 v{21+2*i}, 0xffff0000, v{8+i}")
    def reduce32(r, t):
        for n in (1, 2, 4, 8):
            dpp_ror_add(p, r, n)
        p(f"v_mov_b32 v{t}, v{r}\nv_permlane16_swap_b32 v{r}, v{t}\nv_add_f32 v{r}, v{r}, v{t}")
    for c in range(4):
        p(f"v_add_f32 v{40+c}, v{20+c}, v{24+c}")
    for k in (28, 32, 36):
        for c in range(4):
            p(f"v_add_f32 v{40+c}, v{40+c}, v{k+c}")
    p("v_add_f32 v40, v40, v41\nv_add_f32 v42, v42, v43\nv_add_f32 v40, v40, v42")
    reduce32(40, 41)
    p(f"v_mul_f32 v40, {fhex(1.0/640)}, v40")
    for e in range(20):
        p(f"v_sub_f32 v{44 + e%4}, v{20+e}, v40")
        p(f"v_mul_f32 v{48+e%4}, v{44+e%4}, v{44+e%4}" if e < 4 else f"v_fmac_f32 v{48+e%4}, v{44+e%4}, v{44+e%4}")
    p("v_add_f32 v48, v48, v49\nv_add_f32 v50, v50, v51\nv_add_f32 v48, v48, v50")
    reduce32(48, 49)
    p(f"v_mul_f32 v48, {fhex(1.0/640)}, v48")
    round_bf16(p, 48, 48)
    p(f"v_add_f32 v48, {fhex(1e-5)}, v48")
    round_bf16(p, 48, 48)
    p("v_sqrt_f32 v48, v48")
    round_bf16(p, 48, 48)
    p("v_rcp_f32 v48, v48")
    round_bf16(p, 40, 40)
    for i in range(10):
        x0, x1 = 20 + 2 * i, 21 + 2 * i
        p(f"""v_sub_f32 v{x0}, v{x0}, v40
        v_sub_f32 v{x1}, v{x1}, v40
        v_cvt_pk_bf16_f32 v{x0}, v{x0}, v{x1}
        v_and_b32 v{x1}, 0xffff0000, v{x0}
        v_lshlrev_b32 v{x0}, 16, v{x0}
        v_mul_f32 v{x0}, v{x0}, v48
        v_mul_f32 v{x1}, v{x1}, v48
        v_cvt_pk_bf16_f32 v{x0}, v{x0}, v{x1}
        v_and_b32 v{x1}, 0xffff0000, v{x0}
        v_lshlrev_b32 v{x0}, 16, v{x0}
        v_cvt_pk_f16_f32 v{8+i}, v{x0}, v{x1}""")
        if i % 2 == 1:
            p(f"ds_write_b64 v6, {v(8+i-1,2)} offset:{(i//2)*2048}")
    p(f"s_mov_b32 s3, {fhex(-LOG2E)}")
    for i in range(5):
        p(f"v_lshlrev_b32 v{52+i}, 16, v{52+i}\nv_mul_f32 v{80+i}, s3, v{52+i}\nv_exp_f32 v{80+i}, v{80+i}")
    for i in range(5):
        p(f"v_add_f32 v{80+i}, 1.0, v{80+i}\nv_rcp_f32 v{80+i}, v{80+i}")
    for i in range(5):
        p(f"v_mul_f32 v{80+i}, v{52+i}, v{80+i}")
        round_bf16(p, 80 + i, 80 + i)
    for i in range(5):
        for d in range(4):
            w = 60 + 4 * i + d
            op = 'v_mul_f32' if i == 0 else 'v_fmac_f32'
            p(f"v_lshlrev_b32 v96, 16, v{w}\nv_and_b32 v97, 0xffff0000, v{w}")
            p(f"{op} v{88+2*d}, v{80+i}, v96\n{op} v{89+2*d}, v{80+i}, v97")
    for e in range(8):
        dpp_ror_add(p, 88 + e, 8)
    p(f"""
    v_lshrrev_b32 v1, 4, v0
    v_lshlrev_b32 v1, 8, v1
    v_and_b32 v2, 7, v0
    v_lshl_add_u32 v1, v2, 5, v1
    v_add_u32 v1, {LDS_JUNK}, v1
    v_and_b32 v2, 8, v0
    v_cmp_eq_u32 vcc, 0, v2
    s_and_saveexec_b64 s[{S_EX}:{S_EX+1}], vcc
    ds_write_b128 v1, v[88:91]
    ds_write_b128 v1, v[92:95] offset:16
    s_mov_b64 exec, s[{S_EX}:{S_EX+1}]
    v_lshlrev_b32 v1, 4, v0
    v_add_u32 v1, {LDS_CONST}, v1
    """)
    p(f"""
    s_lshr_b32 s3, s2, 3
    s_mul_i32 s3, s3, 81920
    s_bfe_u32 s6, s2, 0x10002
    s_lshl_b32 s6, s6, 10
    s_add_u32 s3, s3, s6
    s_and_b32 s6, s2, 3
    s_lshl_b32 s6, s6, 7
    s_add_u32 s3, s3, s6
    s_add_u32 s3, s3, {WS_XN}
    v_lshrrev_b32 v2, 4, v0
    v_lshlrev_b32 v2, 11, v2
    v_bfe_u32 v3, v0, 3, 1
    v_lshl_add_u32 v2, v3, 9, v2
    v_and_b32 v3, 7, v0
    v_lshl_add_u32 v2, v3, 4, v2
    s_mov_b32 s50, 32768
    s_mov_b32 s51, 65536
    """)
    mksrd(p, 8, P_WS, 's3', 40 * 2048 - 1024)
    p.sync(lgkm=0)
    p("s_barrier")
    for i in range(3):
        p(f"ds_read_b128 {v(8+4*i,4)}, v1 offset:{4096*i}")
    p(f"""
    s_cmp_lg_u32 s{S_WAVE}, 3
    s_cbranch_scc1 {NM}_p0_nomod
    """)
    p.begin_cond()
    p(f"""
    s_cmp_ge_u32 s2, 240
    s_cbranch_scc1 {NM}_p0_nomod
    v_lshrrev_b32 v4, 2, v{V_L16}
    v_add_u32 v5, {LDS_JUNK}, v4
    """)
    for i in range(16):
        p(f"ds_read_b32 v{24+i}, v5 offset:{256*i}")
    for st in (8, 4, 2, 1):
        for i in range(st):
            p(f"v_add_f32 v{24+i}, v{24+i}, v{24+i+st}")
    p(f"""
    s_and_b32 s6, s2, 3
    s_mul_i32 s6, s6, 15360
    s_lshl_b32 s7, s7, 8
    s_add_u32 s6, s6, s7
    v_add_u32 v4, s6, v4
    global_store_dword v4, v24, s[{P_WS}:{P_WS+1}] sc1
    """)
    p.end_cond()
    p(f"""
    {NM}_p0_nomod:
    s_waitcnt lgkmcnt(0)
    buffer_store_dwordx4 v[8:11], v2, s[8:11], 0 offen sc1
    buffer_store_dwordx4 v[12:15], v2, s[8:11], s50 offen sc1
    buffer_store_dwordx4 v[16:19], v2, s[8:11], s51 offen sc1
    """)
    mksrd(p, 12, P_WS, WS_CNT, C_N * 256)
    p(f"""
    s_cmp_lg_u32 s{S_WAVE}, 2
    s_cbranch_scc1 {NM}_p0_nozero
    """)
    p.begin_cond()
    p(f"""
    v_lshlrev_b32 v4, 12, v{V_L16}
    s_lshl_b32 s3, s2, 8
    v_mov_b32 v5, 0
    buffer_store_dword v5, v4, s[12:15], s3 offen sc1
    """)
    p.end_cond()
    p(f"""
    {NM}_p0_nozero:
    s_waitcnt vmcnt(0)
    s_barrier
    s_cmp_lg_u32 s{S_WAVE}, 0
    s_cbranch_scc1 {NM}_p0_nosig
    """)
    p.begin_cond()
    p("s_and_b32 s3, s2, 7")
    signal(p, 3, 4, 5, base=P_DBG, shift=5, add=0)
    p.end_cond()
    p(f"{NM}_p0_nosig:")
    stamp(p)
    prefill(p, NB1, 8)
    p1_setup(p)
    p(f"""
    s_cmp_lg_u32 s{S_WAVE}, 0
    s_cbranch_scc1 {NM}_p0_nopoll
    """)
    p.begin_cond()
    p("v_and_b32 v8, 7, v0\nv_lshlrev_b32 v8, 5, v8")
    poll(p, 8, 9, 32, base=P_DBG)
    p.end_cond()
    p(f"""{NM}_p0_nopoll:
    s_barrier""")
    stamp(p)


KOFF = 4096 + 8192
VOFF = 4096 + 2080 + 4 * 8192

def tile_addr(p, vl, vg, vtok, vrm):
    p(f"""
    v_lshrrev_b32 v{vg}, 4, v{vl}
    v_and_b32 v{vtok}, 15, v{vl}
    s_lshl_b32 s{S_T0}, s{S_RB}, 2
    s_add_u32 s{S_T0}, s{S_T0}, s{S_WAVE}
    s_lshl_b32 s{S_T0}, s{S_T0}, 4
    v_add_u32 v{vtok}, s{S_T0}, v{vtok}
    v_mul_u32_u24 v{vrm}, 1280, v{vtok}
    v_lshl_add_u32 v{vrm}, v{vg}, 3, v{vrm}
    s_mul_i32 s{S_T0}, s{S_CT}, 160
    v_add_u32 v{vrm}, s{S_T0}, v{vrm}
    """)


def p1_setup(p):
    p(f"""
    s_lshl_b32 s{S_T0}, s{S_QB}, 2
    s_add_u32 s{S_T0}, s{S_T0}, s{S_WAVE}
    s_mul_i32 s{S_T1}, s{S_T0}, 81920
    s_add_u32 s{S_T1}, s{S_T1}, {WS_XN}
    """)
    mksrd(p, S_XN, P_WS, f"s{S_T1}", 81920)
    p(f"""
    s_lshl_b32 s{S_T0}, s{S_T0}, 19
    s_lshl_b32 s{S_T1}, s{S_HEAD}, 14
    s_add_u32 s{S_T0}, s{S_T0}, s{S_T1}
    s_add_u32 s{S_T0}, s{S_T0}, {WS_O}
    """)
    mksrd(p, S_O, P_WS, f"s{S_T0}", 16384)
    p(f"s_lshl_b32 s{S_T0}, s{S_HEAD}, 19\ns_add_u32 s{S_T1}, s{S_T0}, {1536*256 - VOFF}")
    mksrd(p, S_VS, P_V, f"s{S_T1}", VOFF + 512 * 256)
    p(f"s_add_u32 s{S_T1}, s{S_T0}, {1536*256 - KOFF}")
    mksrd(p, S_KS, P_K, f"s{S_T1}", KOFF + 512 * 256)
    p(f"""
    v_and_b32 v2, 63, v0
    v_lshrrev_b32 v3, 5, v2
    v_mul_u32_u24 v3, 2080, v3
    v_bfe_u32 v4, v2, 2, 2
    v_lshl_add_u32 v3, v4, 8, v3
    v_bfe_u32 v5, v2, 4, 1
    v_lshl_add_u32 v3, v5, 5, v3
    v_and_b32 v5, 1, v2
    v_lshl_add_u32 v3, v5, 4, v3
    v_bfe_u32 v5, v2, 1, 1
    v_lshl_add_u32 v3, v5, 3, v3
    v_add_u32 v3, {RING0}, v3
    """)
    for dt in range(4):
        p(f"v_xor_b32 v5, {dt}, v4\nv_lshl_add_u32 v{V_AW+dt}, v5, 6, v3")
    p(f"""
    s_lshr_b32 s{S_T0}, s2, 1
    s_and_b32 s{S_T1}, s2, 1
    s_lshl_b32 s{S_T2}, s{S_T0}, 2
    s_add_u32 s{S_T2}, s{S_T2}, s{S_WAVE}
    s_mul_i32 s{S_JIN}, s{S_T2}, {8*1280}
    s_mul_i32 s{S_T2}, s{S_T1}, 640
    s_add_u32 s{S_JIN}, s{S_JIN}, s{S_T2}
    s_mul_i32 s{S_T0}, s2, 20
    s_add_u32 s{S_T0}, s{S_T0}, s{S_WAVE}
    s_lshl_b32 s{S_T0}, s{S_T0}, 10
    s_add_u32 s{S_T2}, s{S_T0}, {WS_WOF}
    """)
    mksrd(p, S_JA, P_WS, f"s{S_T2}", 4 * 4096 + 1024)
    p(f"s_add_u32 s{S_T2}, s{S_T0}, {WS_WDF}")
    mksrd(p, S_JB, P_WS, f"s{S_T2}", 4 * 4096 + 1024)
    p(f"""
    s_cmp_lt_u32 s2, 108
    s_cselect_b32 s{S_JB+2}, s{S_JB+2}, 0
    s_cselect_b32 s{S_JBN}, {SZ_WD}, 0
    """)
    p(f"""
    s_and_b32 s3, s2, 7
    s_lshr_b32 s{S_T0}, s2, 3
    s_mul_i32 s{S_WIN}, s3, 80
    s_and_b32 s{S_T1}, s{S_WAVE}, 1
    s_lshl_b32 s{S_T1}, s{S_T1}, 3
    s_add_u32 s{S_WIN}, s{S_WIN}, s{S_T1}
    s_mul_i32 s{S_WIN}, s{S_WIN}, 3456
    s_lshl_b32 s{S_T1}, s{S_T0}, 7
    s_add_u32 s{S_WIN}, s{S_WIN}, s{S_T1}
    s_lshl_b32 s{S_T0}, s{S_T0}, 2
    s_add_u32 s{S_T0}, s{S_T0}, s{S_WAVE}
    s_lshl_b32 s{S_T0}, s{S_T0}, 10
    s_mul_i32 s{S_WPO}, s3, {5*108*1024}
    s_add_u32 s{S_WPO}, s{S_WPO}, s{S_T0}
    s_add_u32 s{S_WPX}, s{S_T0}, {40*108*1024}
    s_lshr_b32 s{S_T2}, s3, 2
    s_lshl_b32 s{S_T2}, s{S_T2}, 9
    s_add_u32 s{S_WPX}, s{S_WPX}, s{S_T2}
    s_and_b32 s{S_T2}, s3, 3
    s_lshl_b32 s{S_T2}, s{S_T2}, 2
    s_add_u32 s{S_WPX}, s{S_WPX}, s{S_T2}
    """)
    p(f"""
    s_bfe_u32 s{S_RB}, s2, 0x20001
    s_lshl_b32 s{S_RB}, s{S_RB}, 3
    s_lshr_b32 s{S_T0}, s2, 5
    s_add_u32 s{S_RB}, s{S_RB}, s{S_T0}
    s_and_b32 s{S_CT}, s2, 1
    s_lshl_b32 s{S_CT}, s{S_CT}, 2
    s_bfe_u32 s{S_T0}, s2, 0x20003
    s_add_u32 s{S_CT}, s{S_CT}, s{S_T0}
    """)
    tile_addr(p, 2, 3, 4, 5)
    mksrd(p, S_G, P_X, None, SZ_X)
    for t in range(5):
        p(f"buffer_load_dwordx2 {a(A_XR+2*t,2)}, v5, s[{S_G}:{S_G+3}], 0 offen offset:{32*t} nt")
    p(f"""
    v_lshrrev_b32 v3, 5, v2
    v_lshlrev_b32 v3, 6, v3
    v_add_u32 v{V_CA}, {LDS_CONST}, v3
    v_lshlrev_b32 v6, 4, v0
    v_add_u32 v1, 2560, v6
    v_add_u32 v7, 40, v0
    v_mov_b32 v2, {fhex(QSCALE)}
    v_mov_b32 v3, 1.0
    s_mul_i32 s3, s3, 320
    s_add_u32 s3, s3, {3*2560 - 160*16}
    v_add_u32 v4, s3, v6
    v_add_u32 v5, 2560, v4
    v_subrev_u32 v8, 160, v0
    v_cmp_lt_u32 vcc, 159, v0
    v_cndmask_b32 v1, v1, v5, vcc
    v_cndmask_b32 v7, v7, v8, vcc
    v_cndmask_b32 v2, v2, v3, vcc
    v_cndmask_b32 v9, v6, v4, vcc
    s_mul_i32 s3, s{S_CT}, 320
    s_add_u32 s3, s3, {2*2560 - 180*16}
    v_add_u32 v4, s3, v6
    v_add_u32 v5, {3*2560}, v4
    v_cmp_lt_u32 vcc, 179, v0
    v_cndmask_b32 v6, v9, v4, vcc
    v_cndmask_b32 v1, v1, v5, vcc
    v_cndmask_b32 v3, v3, 0, vcc
    v_cmp_lt_u32 vcc, 199, v0
    v_cndmask_b32 v7, v7, v0, vcc
    v_lshrrev_b32 v4, 1, v7
    v_lshlrev_b32 v4, 6, v4
    v_and_b32 v5, 1, v7
    v_lshl_add_u32 v7, v5, 4, v4
    s_mov_b32 s{S_POS}, 0
    s_mov_b32 s{S_CM3}, {(-3*PAIR) & 0xffffffff}
    s_mov_b32 s{S_WR}, {LDS_JUNK}
    s_mov_b32 s{S_T1}, 0
    s_mov_b32 s{S_DOFF}, 0x40000000
    s_mov_b32 s{S_DSTEP}, 0
    s_mov_b32 s{S_CNT}, 0
    s_mov_b32 s{S_XOFF}, 0
    """)
    for i in range(128):
        p(f"v_accvgpr_write_b32 a{i}, 0")
    for i in range(40, 128):
        p(f"v_mov_b32 v{i}, 0")


def kv_switch(q):
    tl, t1, t2 = V_T, V_T + 1, V_T + 2
    lane_id(q, tl)
    q(f"""
    v_lshrrev_b32 v{t1}, 4, v{tl}
    v_and_b32 v{t2}, 15, v{tl}
    v_lshlrev_b32 v{tl}, 2, v{t1}
    v_xor_b32 v{t2}, v{tl}, v{t2}
    v_lshlrev_b32 v{t2}, 4, v{t2}
    v_lshl_add_u32 v{t2}, v{t1}, 8, v{t2}
    s_lshl_b32 s{S_T0}, s{S_WAVE}, 11
    s_add_u32 s{S_T0}, s{S_T0}, 4096
    v_add_u32 v{V_DMA}, s{S_T0}, v{t2}
    v_subrev_u32 v{V_DMA+1}, 16, v{V_DMA}
    v_mov_b32 v{V_DMA+2}, v{V_DMA}
    v_mov_b32 v{V_DMA+3}, v{V_DMA+1}
    s_mov_b32 s{S_DA}, s{S_KS}
    s_mov_b32 s{S_DA+1}, s{S_KS+1}
    s_mov_b32 s{S_DA+2}, s{S_KS+2}
    s_mov_b32 s{S_DB}, s{S_VS}
    s_mov_b32 s{S_DB+1}, s{S_VS+1}
    s_mov_b32 s{S_DB+2}, 0
    s_mov_b32 s{S_DOFF}, 0
    s_mov_b32 s{S_DSTEP}, 8192
    """)


def attn_body(p):
    M = qk_mfmas(0, 'negm') + pv_mfmas(0) + qk_mfmas(1, 'negm') + pv_mfmas(1)
    f1, f2 = {}, {}
    JF = '' if OPT.get('jobplain') else ' nt'
    put(f1, ["s_barrier"], [0])
    put(f1, v_reads(0), [1, 1, 2, 3, 4, 5, 6, 7, 8, 9, 10, 11, 12, 13, 13, 14])
    put(f1, [mksync(regs=[a(A_V, 16)])], [15])
    put(f1, [mksync(regs=[a(A_V + 16, 16)])], [22])
    put(f1, k_reads(0), [16, 17, 18, 19, 20, 21, 23, 24])
    dg = dma_pair_at()
    put(f1, dg[:6], [17, 18, 20, 23, 29, 30])
    put(f1, [f"s_mov_b32 m0, s{S_SWR}",
             f"buffer_load_dwordx4 v{V_WO}, s[{S_KS}:{S_KS+3}], s{S_WIN} offen nt lds",
             f"s_add_u32 m0, m0, s{S_SSTEP}",
             f"buffer_load_dwordx4 v{V_JO}, s[{S_XN}:{S_XN+3}], s{S_JIN} offen nt lds",
             f"s_add_u32 m0, m0, s{S_SSTEP}",
             f"buffer_load_dwordx4 v{V_JO}, s[{S_G}:{S_G+3}], s{S_JIN} offen nt lds"], [2, 3, 5, 6, 8, 9])
    put(f1, [f"ds_read_b64_tr_b16 {a(A_SF+2*i,2)}, v{V_SC} offset:{(i>>1)*20480+(i&1)*1024}" for i in range(4)], [25, 26, 27, 28])
    put(f1, [mksync(lgkm=0)], [31])
    put(f2, v_reads(SLOT), [0, 1, 2, 3, 4, 5, 6, 7, 8, 9, 10, 11, 12, 13, 13, 14])
    put(f2, [f"buffer_store_dwordx4 {a(A_SF,4)}, v{V_L16}, s[{S_JA}:{S_JA+3}], s{S_SOFF} offen sc1",
             f"buffer_store_dwordx4 {a(A_SF+4,4)}, v{V_L16}, s[{S_JB}:{S_JB+3}], s{S_SOFF} offen sc1"], [1, 4])
    put(f2, [f"s_lshl_b32 s{S_SOFF}, s{S_CNT}, 12",
             f"s_add_u32 s{S_JIN}, s{S_JIN}, 128", f"s_add_u32 s{S_WIN}, s{S_WIN}, {16*3456}", f"s_add_u32 s{S_SWR}, s{S_SWR}, 4096",
             f"s_cmp_lt_u32 s{S_CNT}, 4", f"s_cselect_b32 s{S_JIN}, s{S_JIN}, s{S_T1}", f"s_cselect_b32 s{S_WIN}, s{S_WIN}, s{S_T1}",
             f"s_cselect_b32 s{S_SWR}, s{S_SWR}, {IMG_A}", f"s_cselect_b32 s{S_SSTEP}, s{S_SSTEP}, 0"],
        [5, 2, 3, 6, 7, 7, 8, 8, 9])
    put(f2, [f"v_add_u32 v{V_SC}, 4096, v{V_SC}"], [14])
    put(f2, [mksync(regs=[a(A_V, 16)])], [15])
    put(f2, [mksync(regs=[a(A_V + 16, 16)])], [22])
    put(f2, k_reads(SLOT), [16, 17, 18, 19, 20, 21, 23, 24])
    put(f2, dg[6:], [0, 16, 18, 20, 25, 29])
    put(f2, pos_update_at(), [10, 11, 11, 11, 12, 12])
    put(f2, [f"v_add_u32 v{V_AV+i}, s{S_DELTA}, v{V_AV+i}" for i in range(4)], [17, 19, 21, 23])
    put(f2, [f"v_add_u32 v{V_AK+i}, s{S_DELTA}, v{V_AK+i}" for i in range(4)], [26, 27, 28, 29])
    put(f2, [f"s_add_u32 s{S_CNT}, s{S_CNT}, 1", f"s_cmp_lt_u32 s{S_CNT}, 7", mksync(dma_keep=8, lgkm=0)], [30, 30, 30])
    put(f2, [f"s_cbranch_scc1 {NM}_at"], [31])
    order_gap(f1); order_gap(f2)
    vb = OPT.get('verbose')
    p.extend(pack(M[:32], f1, softmax_stream(1, 1), verbose=vb and 'at1'))
    p.extend(pack(M[32:], f2, softmax_stream(0, 0), stop=31, verbose=vb and 'at2'))


def phase1(p, outl):
    vb = OPT.get('verbose')
    mksrd(p, S_G, P_WS, WS_MOD, 4 * 15360)
    for kq in range(4):
        p(f"s_mov_b32 s3, {kq*15360}")
        p(f"buffer_load_dwordx4 {v(8+4*kq,4)}, v6, s[{S_G}:{S_G+3}], s3 offen sc1")
        p(f"buffer_load_dwordx4 {v(24+4*kq,4)}, v1, s[{S_G}:{S_G+3}], s3 offen sc1")
    for t in range(8):
        p.extend(x_loads(t, (t % 2) * 2048))
        if t % 2 == 1:
            p(f"s_add_u32 s{S_XOFF}, s{S_XOFF}, 4096")
    mod_sum(p, 8, 4)
    mod_sum(p, 24, 4)
    for e in range(4):
        p(f"v_add_f32 v{24+e}, v3, v{24+e}")
        round_bf16(p, 24 + e, 24 + e)
        p(f"v_mul_f32 v{24+e}, v2, v{24+e}\nv_mul_f32 v{8+e}, v2, v{8+e}")
    p("ds_write_b128 v7, v[24:27]\nds_write_b128 v7, v[8:11] offset:32")
    p.sync(dma_keep=0, lgkm=0)
    p("s_barrier")
    p.extend(c_reads(0, 0))
    p.extend(a_reads(0, 0))
    p.extend(c_reads(1, 128))
    p.extend(a_reads(1, 1))
    for i in range(40):
        p(f"v_mov_b32 v{i}, 0")
    p.extend(h_valu(0, 0, 0))
    p.sync(regs=[a(A_K, 16), v(V_C + 16, 16), v(V_X + 8, 8)])
    stamp(p)
    p.begin_loop()
    p(f"{NM}_qp:")
    dg = dma_pair_qp()
    xadv = f"s_add_u32 s{S_XOFF}, s{S_XOFF}, 4096"
    for t in range(8):
        M = [f"v_mfma_f32_32x32x16_bf16 {v(acc(dt,qt),16)}, {a(A_K+16*(t%4)+4*dt,4)}, {v(V_H+8*(t%2)+4*qt,4)}, {v(acc(dt,qt),16)}"
             for dt in range(4) for qt in range(2)]
        f = {}
        ar = a_reads((t + 2) % 4, (t + 2) % 8)
        cr = c_reads(t % 2, (t + 2) * 128)
        sy = mksync(regs=[a(A_K + 16 * ((t + 1) % 4), 16), v(V_C + 16 * (t % 2), 16), v(V_X + 8 * ((t + 2) % 8), 8)],
                    dma_keep=8 if t == 5 else None)
        if t == 6:
            put(f, ["s_barrier"], [0])
            put(f, [f"v_add_u32 v{V_AW+i}, s{S_DELTA}, v{V_AW+i}" for i in range(4)], [0, 1, 2, 2])
            put(f, cr, [1, 1, 2, 2])
            put(f, x_loads(t, 0), [3, 5])
            put(f, ar, [3, 4, 4, 5, 6, 6, 7, 7])
            put(f, [sy], [7])
        else:
            put(f, cr, [0, 0, 1, 1])
            put(f, x_loads(t, (t % 2) * 2048), [2, 4])
            put(f, ar, [2, 3, 3, 4, 5, 5, 6, 7] if t != 7 else [2, 3, 3, 4, 5, 5, 6, 6])
            put(f, [sy], [7] if t != 7 else [6])
        if t == 0: put(f, dg[0:2], [5, 6])
        if t == 1: put(f, dg[2:4] + [xadv], [6, 7, 7])
        if t == 2: put(f, dg[4:7], [6, 7, 7])
        if t == 3: put(f, dg[7:8] + [xadv], [6, 7])
        if t == 4: put(f, dg[8:10] + pos_update(), [6, 7, 0, 1, 1])
        if t == 5: put(f, dg[10:12] + [xadv], [6, 7, 7])
        if t == 7:
            put(f, [f"v_add_u32 v{V_CA}, 1024, v{V_CA}", xadv, f"s_add_u32 s{S_CNT}, s{S_CNT}, 1"], [3, 5, 5])
            put(f, [f"s_cmp_lt_u32 s{S_CNT}, 2", f"s_cbranch_scc1 {NM}_qp"], [6, 7])
        order_gap(f)
        p.extend(pack(M, f, h_valu((t + 1) % 8, (t + 1) % 2, (t + 1) % 2), stop=7 if t == 7 else 8, verbose=vb and f'qp{t}'))
    p.begin_cond()
    p.extend(wr_update())
    p(f"""
    s_cmp_eq_u32 s{S_CNT}, 3
    s_cbranch_scc1 {NM}_switch
    s_cmp_eq_u32 s{S_CNT}, 2
    s_cbranch_scc1 {NM}_wq4
    s_cmp_lt_u32 s{S_CNT}, 5
    s_cbranch_scc1 {NM}_qp
    """)
    p.end_cond()
    p.end_loop(5)
    q = Prog()
    q(f"{NM}_switch:")
    kv_switch(q)
    q(f"""s_branch {NM}_qp
    {NM}_wq4:
    s_mov_b32 s{S_T1}, {SLOT}
    s_mov_b32 s{S_DOFF}, {8*64*8192}
    s_mov_b32 s{S_DSTEP}, {64*8192}
    s_branch {NM}_qp""")
    q.finalize()
    outl.append(q)
    stamp(p)
    T = V_H
    BASE = RING0 + PAIR
    lane_id(p, T)
    p(f"""
    v_bfe_u32 v{T+1}, v{T}, 3, 2
    v_mul_u32_u24 v{T+1}, {WBLK}, v{T+1}
    v_bfe_u32 v{T+2}, v{T}, 2, 1
    v_mul_u32_u24 v{T+2}, {PADI}, v{T+2}
    v_add_u32 v{T+1}, v{T+1}, v{T+2}
    v_add_u32 v{T+1}, {BASE}, v{T+1}
    v_and_b32 v{T+2}, 3, v{T}
    v_lshl_add_u32 v{T+1}, v{T+2}, 8, v{T+1}
    v_lshrrev_b32 v{T+3}, 5, v{T}
    v_lshl_add_u32 v{T+1}, v{T+3}, 4, v{T+1}
    """)
    for mm in range(4):
        p(f"v_xor_b32 v{T+4}, {mm}, v{T+2}\nv_lshl_add_u32 v{V_AK+mm}, v{T+4}, 6, v{T+1}")
    p.sync(lgkm=0)
    p.extend(k_reads(SLOT))
    p(f"""s_mov_b32 s{S_DB+2}, s{S_VS+2}
    s_add_u32 s{S_RDB}, s{S_WOFF}, {PAIR}
    s_mov_b32 s{S_CM3}, {(-2*PAIR) & 0xffffffff}
    s_mov_b32 s{S_SOFF}, 20480""")
    p.extend(dma_pair_at())
    p(f"""
    v_mul_u32_u24 v{T+1}, {PADI}, v{T+3}
    v_bfe_u32 v{T+2}, v{T}, 2, 2
    v_lshl_add_u32 v{T+1}, v{T+2}, 8, v{T+1}
    v_bfe_u32 v{T+4}, v{T}, 4, 1
    v_lshl_add_u32 v{T+1}, v{T+4}, 5, v{T+1}
    v_and_b32 v{T+4}, 3, v{T}
    v_lshl_add_u32 v{T+1}, v{T+4}, 3, v{T+1}
    v_add_u32 v{T+1}, {BASE}, v{T+1}
    """)
    for dt in range(4):
        p(f"v_xor_b32 v{T+5}, {dt}, v{T+2}\nv_lshl_add_u32 v{V_AV+dt}, v{T+5}, 6, v{T+1}")
    p(f"v_mov_b32 v{V_LS}, 0\nv_mov_b32 v{V_LS+1}, 0")
    for tile in range(8):
        for i in range(8):
            p(f"v_cvt_pk_bf16_f32 v{8*tile+i}, v{16*tile+2*i}, v{16*tile+2*i+1}")
    upd = lambda: pos_update_at() + [f"v_add_u32 v{V_AV+i}, s{S_DELTA}, v{V_AV+i}" for i in range(4)] + \
        [f"v_add_u32 v{V_AK+i}, s{S_DELTA}, v{V_AK+i}" for i in range(4)]
    p.extend(upd())
    mksrd(p, S_XN, P_WO, None, SZ_WO)
    mksrd(p, S_G, P_WD, None, f"s{S_JBN}")
    p(f"""s_cmp_lt_u32 s{S_WAVE}, 2
    s_cselect_b32 s{S_KS}, s{P_WG}, s{P_WU}
    s_cselect_b32 s{S_KS+1}, s{P_WG+1}, s{P_WU+1}
    s_cmp_lt_u32 s2, 216
    s_cselect_b32 s{S_KS+2}, {SZ_WG}, 0""")
    p.sync(dma_keep=8, lgkm=0)
    f = {}
    put(f, ["s_barrier"], [0])
    dg = dma_pair_at()
    put(f, dg, [0, 1, 3, 5, 7, 7, 8, 9, 10, 12, 14, 14])
    put(f, k_reads(0), [15] * 8)
    order_gap(f)
    p.extend(pack(qk_mfmas(0, 'zero'), f, [], verbose=vb and 'it-1'))
    for qt in range(2):
        S = V_S + 16 * qt
        m = V_NEGM + 16 * qt
        p(f"""v_max3_f32 v{m}, v{S}, v{S+1}, v{S+2}
        v_max3_f32 v{m+1}, v{S+3}, v{S+4}, v{S+5}
        v_max3_f32 v{m}, v{m}, v{S+6}, v{S+7}
        v_max3_f32 v{m+1}, v{m+1}, v{S+8}, v{S+9}
        v_max3_f32 v{m}, v{m}, v{S+10}, v{S+11}
        v_max3_f32 v{m+1}, v{m+1}, v{S+12}, v{S+13}
        v_max3_f32 v{m}, v{m}, v{S+14}, v{S+15}
        v_max_f32 v{m}, v{m}, v{m+1}
        v_mov_b32 v{m+1}, v{m}""")
    for qt in range(2):
        p(f"v_permlane32_swap_b32 v{V_NEGM+16*qt}, v{V_NEGM+16*qt+1}")
    for qt in range(2):
        m = V_NEGM + 16 * qt
        p(f"v_max_f32 v{m}, v{m}, v{m+1}\nv_sub_f32 v{m}, 0, v{m}")
    for qt in range(2):
        for i in range(1, 16):
            p(f"v_mov_b32 v{V_NEGM+16*qt+i}, v{V_NEGM+16*qt}")
    p(f"""
    v_lshrrev_b32 v{T+1}, 5, v{T}
    v_bfe_u32 v{T+3}, v{T}, 2, 3
    v_lshl_add_u32 v{T+1}, v{T+1}, 4, v{T+3}
    v_lshlrev_b32 v{T+1}, 7, v{T+1}
    v_lshl_add_u32 v{T+1}, v{T+4}, 3, v{T+1}
    s_lshl_b32 s{S_T0}, s{S_WAVE}, 5
    s_add_u32 s{S_T0}, s{S_T0}, {IMG_A - 4096}
    v_add_u32 v{V_SC}, s{S_T0}, v{T+1}
    v_lshrrev_b32 v{T+1}, 3, v{T}
    v_and_b32 v{T+3}, 7, v{T}
    v_lshlrev_b32 v{T+3}, 4, v{T+3}
    v_mul_u32_u24 v{V_JO}, 1280, v{T+1}
    v_add_u32 v{V_JO}, v{V_JO}, v{T+3}
    v_mul_u32_u24 v{V_WO}, 3456, v{T+1}
    v_add_u32 v{V_WO}, v{V_WO}, v{T+3}
    s_lshl_b32 s{S_SWR}, s{S_WAVE}, 10
    s_add_u32 s{S_SWR}, s{S_SWR}, {IMG_W}
    s_mov_b32 s{S_SSTEP}, 20480
    s_mov_b32 s{S_T1}, 0x40000000
    """)
    stamp(p)
    sub = [f"v_add_f32 v{V_S+16*qt+r}, v{V_NEGM+16*qt}, v{V_S+16*qt+r}" for ks in range(2) for qt in range(2) for r in range(8*ks, 8*ks+8)]
    sm = softmax_stream(0, 0)
    st = sub[:2]; k = 2
    for x in sm:
        st.append(x)
        if x.startswith('v_exp') and k < 32:
            st.append(sub[k]); k += 1
    p.sync(lgkm=0)
    f = {}
    put(f, k_reads(SLOT), [15] * 8)
    p.extend(pack(qk_mfmas(1, 'negm'), f, st, verbose=vb and 'it0'))
    p.extend(upd())
    p(f"s_mov_b32 s{S_CNT}, 0")
    p.sync(dma_keep=8, lgkm=0)
    p.begin_loop()
    p(f"{NM}_at:")
    attn_body(p)
    p.end_loop(7)
    p("s_barrier")
    p.extend(v_reads(0))
    p(f"s_and_b32 s3, s2, 7\ns_lshl_b32 s3, s3, 2\ns_add_u32 s3, s3, s{S_WAVE}")
    signal(p, 3, V_SC, V_JO)
    sm = softmax_stream(1, 1)
    p.extend(sm[:10])
    f = {}
    put(f, v_reads(SLOT, A_K), [i * 12 // 16 for i in range(16)])
    p.extend(pack(pv_mfmas(0), f, sm[10:], verbose=vb and 'it15'))
    if OPT.get('st15'): stamp(p)
    p.extend(pv_mfmas(1, A_K))
    stamp(p)
    T = V_S
    for qt in range(2):
        p(f"v_mov_b32 v{T+qt}, v{V_LS+qt}")
    for qt in range(2):
        p(f"v_permlane32_swap_b32 v{V_LS+qt}, v{T+qt}")
    for qt in range(2):
        p(f"v_add_f32 v{V_LS+qt}, v{V_LS+qt}, v{T+qt}")
    for qt in range(2):
        p(f"v_rcp_f32 v{V_LS+qt}, v{V_LS+qt}")
    lane_id(p, T + 2)
    p(f"""
    v_and_b32 v{T+3}, 15, v{T+2}
    v_lshlrev_b32 v{T+3}, 4, v{T+3}
    v_bfe_u32 v{T+4}, v{T+2}, 4, 1
    v_lshl_add_u32 v{T+3}, v{T+4}, 10, v{T+3}
    v_lshrrev_b32 v{T+4}, 5, v{T+2}
    v_lshl_add_u32 v{T+3}, v{T+4}, 8, v{T+3}
    """)
    for dt in range(4):
        p(f"s_mov_b32 s{S_OOFF+dt}, {dt*4096}")
    n = 0
    for dt in range(4):
        for qt in range(2):
            for h8 in range(2):
                B = 16 * (n % 4); n += 1
                o = oacc(dt, qt) + 8 * h8
                for i in range(8):
                    p(f"v_accvgpr_read_b32 v{B+i}, a{o+i}")
                for i in range(8):
                    p(f"v_mul_f32 v{B+i}, v{V_LS+qt}, v{B+i}")
                for i in range(4):
                    p(f"v_cvt_pk_bf16_f32 v{B+8+i}, v{B+2*i}, v{B+2*i+1}")
                p(f"buffer_store_dwordx4 {v(B+8,4)}, v{T+3}, s[{S_O}:{S_O+3}], s{S_OOFF+dt} offen offset:{qt*2048+h8*512} sc1")
    stamp(p)
    wp_job(p, T + 2)


def f1_signal(p):
    p(f"""s_waitcnt vmcnt(0)
    s_lshl_b32 s3, s{S_QB}, 2
    s_add_u32 s3, s3, s{S_WAVE}
    s_lshl_b32 s3, s3, 2
    s_lshr_b32 s{S_T0}, s{S_HEAD}, 3
    s_add_u32 s3, s3, s{S_T0}
    s_add_u32 s3, s3, {C_F1}""")
    signal(p, 3, 200, 201)
    stamp(p)


def wp_job(p, VL):
    p(f"""
    v_lshrrev_b32 v201, 5, v{VL}
    v_lshlrev_b32 v202, 6, v201
    v_lshlrev_b32 v203, 10, v201
    v_bfe_u32 v201, v{VL}, 2, 2
    v_lshl_add_u32 v203, v201, 7, v203
    v_bfe_u32 v201, v{VL}, 4, 1
    v_lshl_add_u32 v203, v201, 11, v203
    v_and_b32 v201, 3, v{VL}
    v_lshl_add_u32 v203, v201, 3, v203
    s_lshl_b32 s3, s{S_WAVE}, 5
    v_add_u32 v203, s3, v203
    s_mov_b32 s3, 0x3f803f80
    v_mov_b32 v204, 0
    v_mov_b32 v205, 0
    """)
    mksrd(p, S_G, P_WS, WS_WP, 41 * 108 * 1024)
    p(f"s_cmp_lt_u32 s2, 216\ns_cselect_b32 s{S_G+2}, s{S_G+2}, 0")
    CB, RW = 68, 180
    for s_ in range(5):
        for jj in range(2):
            p(f"ds_read_b64_tr_b16 {v(RW+4*s_+2*jj,2)}, v203 offset:{IMG_W+4096*s_+512*jj}")
        for i in range(4):
            p(f"ds_read_b128 {v(CB+16*s_+4*i,4)}, v202 offset:{LDS_TABW+128*s_+16*i}")
    for s_ in range(5):
        for d in range(4):
            w = RW + 4 * s_ + d
            c = CB + 16 * s_ + 2 * d
            p(f"""v_lshlrev_b32 v206, 16, v{w}
            v_and_b32 v207, 0xffff0000, v{w}
            v_fmac_f32 v205, v{c+8}, v206
            v_mul_f32 v206, v{c}, v206
            v_fmac_f32 v205, v{c+9}, v207
            v_mul_f32 v207, v{c+1}, v207
            v_cvt_pk_bf16_f32 v{w}, v206, v207
            v_dot2_f32_bf16 v204, v{w}, s3, v204""")
        if s_ == OPT.get('f1pos', 2):
            f1_signal(p)
            p("s_mov_b32 s3, 0x3f803f80")
    for s_ in range(5):
        p(f"buffer_store_dwordx4 {v(RW+4*s_,4)}, v{V_L16}, s[{S_G}:{S_G+3}], s{S_WPO} offen sc1")
        if s_ < 4: p(f"s_add_u32 s{S_WPO}, s{S_WPO}, {108*1024}")
    p(f"""
    v_mov_b32 v206, v204
    v_mov_b32 v207, v205
    v_permlane32_swap_b32 v204, v206
    v_permlane32_swap_b32 v205, v207
    v_add_f32 v204, v204, v206
    v_add_f32 v205, v205, v207
    v_cvt_pk_bf16_f32 v204, v204, v205
    s_mov_b32 exec_hi, 0
    {';' if OPT.get('nopart') else ''}buffer_store_dword v204, v{V_L16}, s[{S_G}:{S_G+3}], s{S_WPX} offen sc1
    s_mov_b32 exec_hi, -1
    """)


V_X1 = 240
V_RM = 250
V_TOK, V_G4 = 251, 252
V_GB = 220

def shard_addr(p, vd, cbase):
    p(f"v_and_b32 v{vd}, 0x1f0, v{V_L16}\nv_lshlrev_b32 v{vd}, 4, v{vd}\nv_add_u32 v{vd}, {WS_CNT + cbase*256}, v{vd}")

def skinny(p, mode):
    wo = mode == 'wo'
    NKS, PER, WS_B, WS_A, modrow = (128, 32, WS_O, WS_WOF, 2) if wo else (54, 14, WS_HH, WS_WDF, 5)
    W = 8 if wo else 14
    RB, DB = 4, 3
    S_B, S_A, S_X, S_GG = 8, 12, 16, 20
    S_TA, S_TB = 24, 38
    S_C2 = 52
    V_XR, V_L16B, V_T2 = 80, 90, 92
    V_G = 96 if wo else V_GB
    AST = 40960
    def afr(j, i, n=4):
        if wo: return a(20 * j + 4 * i, n)
        return a(20 * j + 4 * i, n) if j < 11 else v(160 + 20 * (j - 11) + 4 * i, n)
    def bfr(j, i, n=4):
        return a(160 + 16 * j + 4 * i, n) if wo else v(96 + 16 * j + 4 * i, n)
    S_WA, S_WB, S_AO, S_BO = 32, 33, 34, 35
    def bloads(j):
        so = S_BO if wo else S_TB + j
        return [f"buffer_load_dwordx4 {bfr(j%RB,i)}, v{V_L16}, s[{S_B}:{S_B+3}], s{so} offen offset:{1024*i} sc1" for i in range(4)]
    def aloads(j):
        so = S_AO if wo else S_TA + j
        L = [f"buffer_load_dwordx4 {afr(j%W,i)}, v{V_L16}, s[{S_A}:{S_A+3}], s{so} offen offset:{1024*i} sc1" for i in range(4)]
        L.append(f"buffer_load_dwordx4 {afr(j%W,4)}, v{V_L16B}, s[{S_A}:{S_A+3}], s{so} offen sc1")
        return L
    def off_calc(j, sw, so, stride, srdn):
        L = []
        if j % W == 0 and j > 0:
            L += [f"s_add_u32 s{sw}, s{sw}, 8", f"s_cmp_eq_u32 s{sw}, 32", f"s_cselect_b32 s{srdn+2}, 0, s{srdn+2}"]
        return L + [f"s_add_u32 s{so}, s{sw}, s{S_TA+j%W}", f"s_and_b32 s{so}, s{so}, 31", f"s_mul_i32 s{so}, s{so}, {stride}"]
    aoff = lambda j: off_calc(j, S_WA, S_AO, AST, S_A) if wo else []
    boff = lambda j: off_calc(j, S_WB, S_BO, 4096, S_B) if wo else []
    if wo:
        lane_id(p, V_T2)
        tile_addr(p, V_T2, V_G4, V_TOK, V_RM)
        p(f"v_lshrrev_b32 v{V_T2}, 1, v{V_G4}\nv_lshlrev_b32 v{V_T2}, 6, v{V_T2}\nv_and_b32 v{V_T2+1}, 1, v{V_G4}\nv_lshl_add_u32 v{V_T2}, v{V_T2+1}, 4, v{V_T2}")
        for t in range(5):
            p(f"ds_read_b128 {v(V_GB+4*t,4)}, v{V_T2} offset:{LDS_TABG+128*t}")
            p(f"ds_read_b128 {v(V_G+4*t,4)}, v{V_T2} offset:{LDS_TABG+128*t+32}")
        for i in range(10):
            p(f"v_accvgpr_read_b32 v{V_XR+i}, a{A_XR+i}")
        p.sync(lgkm=0)
        shard_addr(p, V_T2, C_WOF)
        if OPT.get('st2'): stamp(p)
        poll(p, V_T2, V_T2 + 1, 32)
        if OPT.get('st2'): stamp(p)
        p(f"s_and_b32 s3, s2, 7\ns_lshl_b32 s3, s3, 2\ns_add_u32 s3, s3, s{S_WAVE}\ns_add_u32 s3, s3, {C_WP}")
        signal(p, 3, V_T2, V_T2 + 1)
    p(f"""
    v_add_u32 v{V_L16B}, 4096, v{V_L16}
    s_mul_i32 s{S_T0}, s{S_RB}, {NKS}
    s_mul_i32 s{S_T2}, s{S_WAVE}, {PER}
    s_add_u32 s{S_T0}, s{S_T0}, s{S_T2}
    s_lshl_b32 s{S_T0}, s{S_T0}, 12
    s_add_u32 s{S_T0}, s{S_T0}, {WS_B}
    s_lshl_b32 s{S_T1}, s{S_T2}, 3
    s_add_u32 s{S_T1}, s{S_T1}, s{S_CT}
    s_mul_i32 s{S_T1}, s{S_T1}, 5120
    s_add_u32 s{S_T1}, s{S_T1}, {WS_A}
    s_sub_u32 s{S_T2}, {NKS}, s{S_T2}
    s_min_u32 s{S_T2}, s{S_T2}, {PER}
    """)
    mksrd(p, S_B, P_WS, f"s{S_T0}", 0)
    mksrd(p, S_A, P_WS, f"s{S_T1}", 0)
    p(f"""
    s_lshl_b32 s{S_B+2}, s{S_T2}, 12
    s_mul_i32 s{S_A+2}, s{S_T2}, {AST}
    s_sub_u32 s{S_A+2}, s{S_A+2}, {AST-5120}
    s_add_u32 s{S_T0}, s{S_CT}, s{S_RB}
    s_and_b32 s{S_T0}, s{S_T0}, 3
    """)
    if not OPT.get('rot'): p(f"s_mov_b32 s{S_T0}, 7")
    NA0 = 7 if wo else OPT.get('na0', 8)
    for j in range(W):
        p(f"s_cmp_eq_u32 s{S_T0}, {j & 3}")
        if wo:
            p(f"s_cselect_b32 s{S_TA+j}, {j + 8}, {j}")
        else:
            p(f"s_cselect_b32 s{S_T1}, {j + 4 if j + 4 < 14 else j & 3}, {j}\ns_lshl_b32 s{S_TB+j}, s{S_T1}, 12\ns_mul_i32 s{S_TA+j}, s{S_T1}, {AST}")
    if wo:
        p(f"s_mov_b32 s{S_WA}, 0\ns_mov_b32 s{S_WB}, 0")
    if not wo:
        mksrd(p, S_X, P_OUT, None, SZ_X)
    for j in range(NA0):
        p.extend(aoff(j) + aloads(j))
    for i in range(80):
        p(f"v_mov_b32 v{i}, 0")
    if OPT.get('st2'): stamp(p)
    if wo:
        p(f"""s_lshl_b32 s{S_T0}, s{S_RB}, 2
        s_add_u32 s{S_T0}, s{S_T0}, s{S_WAVE}
        s_lshl_b32 s{S_T0}, s{S_T0}, 8
        s_add_u32 s{S_T0}, s{S_T0}, {WS_CNT + C_F1*256}
        v_mov_b32 v{V_T2}, s{S_T0}""")
        poll(p, V_T2, V_T2 + 1, 8)
    else:
        p(f"""s_lshl_b32 s{S_T0}, s{S_RB}, 9
        s_add_u32 s{S_T0}, s{S_T0}, {WS_CNT + C_F3*256}
        v_and_b32 v{V_T2}, 1, v{V_G4}
        v_lshlrev_b32 v{V_T2}, 8, v{V_T2}
        v_add_u32 v{V_T2}, s{S_T0}, v{V_T2}""")
        poll(p, V_T2, V_T2 + 1, 16)
    stamp(p)
    for j in range(DB):
        p.extend(boff(j) + bloads(j))
    def step(t, f):
        M = [f"v_mfma_f32_16x16x32_bf16 {v(4*(5*rt+ct),4)}, {afr(t%W,ct)}, {bfr(t%RB,rt)}, {v(4*(5*rt+ct),4)}"
             for rt in range(4) for ct in range(5)]
        p.sync(regs=[afr(t % W, 0, 20), bfr(t % RB, 0, 16)])
        p.extend(pack(M, f, []))
    if wo:
        p(f"s_mov_b32 s{S_C2}, 0")
        p.begin_loop()
        p(f"{NM}_{mode}_loop:")
        for t in range(8):
            f = {}
            put(f, bloads(t + DB) + aloads(t + 7), [1, 3, 5, 7, 9, 11, 13, 15, 17])
            put(f, boff(t + DB), [0] * len(boff(t + DB)))
            put(f, aoff(t + 7), [2, 4, 4, 6, 6, 8][-len(aoff(t + 7)):])
            if t == 7: put(f, [f"s_add_u32 s{S_C2}, s{S_C2}, 1", f"s_cmp_lt_u32 s{S_C2}, 4", f"s_cbranch_scc1 {NM}_{mode}_loop"], [18, 18, 19])
            step(t, f)
        p.end_loop(4)
    else:
        for t in range(14):
            f = {}
            L = (bloads(t + DB) if t + DB < 14 else []) + (aloads(t + NA0) if t + NA0 < 14 else [])
            put(f, L, [1 + 2 * i for i in range(len(L))])
            step(t, f)
    stamp(p)
    p(f"""
    s_mul_i32 s{S_T0}, s{S_WAVE}, 20480
    v_add_u32 v{V_T2}, s{S_T0}, v{V_L16}
    s_mul_i32 s{S_T0}, s{S_WAVE}, 5120
    v_add_u32 v{V_T2+1}, s{S_T0}, v{V_L16}
    v_add_u32 v{V_T2+2}, {3*20480}, v{V_T2+1}
    s_barrier
    """)
    for rt in range(4):
        for ct in range(5):
            p(f"ds_write_b128 v{V_T2}, {v(4*(5*rt+ct),4)} offset:{(5*rt+ct)*1024}")
    p.sync(lgkm=0)
    p("s_barrier")
    for w in range(4):
        for ct in range(5):
            c = 4 * (5 * w + ct)
            p(f"ds_read_b128 {v(c,4)}, v{V_T2+1} offset:{w*20480+ct*1024}" if w < 3 else f"ds_read_b128 {v(c,4)}, v{V_T2+2} offset:{ct*1024}")
    for i in range(20): p(f"v_add_f32 v{i}, v{i}, v{20+i}")
    for i in range(20): p(f"v_add_f32 v{40+i}, v{40+i}, v{60+i}")
    for i in range(20): p(f"v_add_f32 v{i}, v{i}, v{40+i}")
    XR = V_XR if wo else V_X1
    for d in range(10):
        x0, x1 = 2 * d, 2 * d + 1
        p(f"""v_cvt_pk_bf16_f32 v{x0}, v{x0}, v{x1}
        v_and_b32 v{x1}, 0xffff0000, v{x0}
        v_lshlrev_b32 v{x0}, 16, v{x0}
        v_mul_f32 v{x0}, v{V_G+x0}, v{x0}
        v_mul_f32 v{x1}, v{V_G+x1}, v{x1}
        v_cvt_pk_bf16_f32 v{x0}, v{x0}, v{x1}
        v_and_b32 v{x1}, 0xffff0000, v{x0}
        v_lshlrev_b32 v{x0}, 16, v{x0}
        v_lshlrev_b32 v40, 16, v{XR+d}
        v_and_b32 v41, 0xffff0000, v{XR+d}
        v_add_f32 v{x0}, v40, v{x0}
        v_add_f32 v{x1}, v41, v{x1}
        v_cvt_pk_bf16_f32 v{20+d}, v{x0}, v{x1}""")
    if wo:
        for d in range(10):
            p(f"v_mov_b32 v{V_X1+d}, v{20+d}")
    for t in (0, 2):
        p(f"v_permlane16_swap_b32 v{20+2*t}, v{22+2*t}\nv_permlane16_swap_b32 v{21+2*t}, v{23+2*t}")
    if not wo:
        p(f"v_and_b32 v43, 1, v{V_G4}\nv_mul_u32_u24 v43, 24, v43\nv_add_u32 v42, v{V_RM}, v43")
        p(f"buffer_store_dwordx4 v[20:23], v42, s[{S_X}:{S_X+3}], 0 offen")
        p(f"buffer_store_dwordx4 v[24:27], v42, s[{S_X}:{S_X+3}], 0 offen offset:64")
        p(f"buffer_store_dwordx2 v[28:29], v{V_RM}, s[{S_X}:{S_X+3}], 0 offen offset:128")
        return
    S_O2, S_O3 = 24, 28
    mksrd(p, S_O2, P_WS, WS_X1F, 64 * 40 * 1024)
    mksrd(p, S_O3, P_WS, WS_STATS, 8 * 2048 * 8)
    p(f"""
    v_lshrrev_b32 v42, 5, v{V_TOK}
    v_mul_u32_u24 v42, 40960, v42
    v_and_b32 v43, 31, v{V_TOK}
    v_lshl_add_u32 v42, v43, 4, v42
    v_lshrrev_b32 v43, 1, v{V_G4}
    v_lshl_add_u32 v42, v43, 9, v42
    v_and_b32 v43, 1, v{V_G4}
    v_lshl_add_u32 v44, v43, 10, v42
    v_lshl_add_u32 v42, v43, 3, v42
    s_mul_i32 s{S_T0}, s{S_CT}, 5120
    s_add_u32 s{S_T1}, s{S_T0}, 4096
    buffer_store_dwordx4 v[20:23], v44, s[{S_O2}:{S_O2+3}], s{S_T0} offen sc1
    buffer_store_dwordx4 v[24:27], v44, s[{S_O2}:{S_O2+3}], s{S_T0} offen offset:2048 sc1
    buffer_store_dwordx2 v[28:29], v42, s[{S_O2}:{S_O2+3}], s{S_T1} offen sc1
    """)
    for d in range(10):
        p(f"v_lshlrev_b32 v{2*d}, 16, v{V_X1+d}\nv_and_b32 v{2*d+1}, 0xffff0000, v{V_X1+d}")
    def red4(r, t):
        p(f"""v_mov_b32 v{t}, v{r}
        v_permlane16_swap_b32 v{r}, v{t}
        v_add_f32 v{r}, v{r}, v{t}
        v_mov_b32 v{t}, v{r}
        v_permlane32_swap_b32 v{r}, v{t}
        v_add_f32 v{r}, v{r}, v{t}""")
    for c in range(4): p(f"v_add_f32 v{46+c}, v{c}, v{4+c}")
    for k in (8, 12, 16):
        for c in range(4): p(f"v_add_f32 v{46+c}, v{46+c}, v{k+c}")
    p("v_add_f32 v46, v46, v47\nv_add_f32 v48, v48, v49\nv_add_f32 v46, v46, v48")
    red4(46, 48)
    p(f"v_mul_f32 v48, {fhex(1.0/80)}, v46")
    for e in range(20): p(f"v_sub_f32 v{e}, v{e}, v48")
    for e in range(20):
        p(f"v_mul_f32 v{50+e}, v{e}, v{e}" if e < 4 else f"v_fmac_f32 v{50+e%4}, v{e}, v{e}")
    p("v_add_f32 v50, v50, v51\nv_add_f32 v52, v52, v53\nv_add_f32 v47, v50, v52")
    red4(47, 48)
    p(f"""
    v_lshlrev_b32 v48, 3, v{V_TOK}
    s_lshl_b32 s{S_T0}, s{S_CT}, 14
    s_mov_b64 exec, 0xffff
    buffer_store_dwordx2 v[46:47], v48, s[{S_O3}:{S_O3+3}], s{S_T0} offen sc1
    s_mov_b64 exec, -1
    s_lshl_b32 s3, s{S_RB}, 1
    s_lshr_b32 s{S_T0}, s{S_WAVE}, 1
    s_add_u32 s3, s3, s{S_T0}
    s_add_u32 s3, s3, {C_F2}
    s_waitcnt vmcnt(0)
    """)
    signal(p, 3, 0, 1)
    stamp(p)


K3_SLOT, K3_NS = 28672, 5
def phase3(p):
    S_A, S_B, S_STT, S_H = 8, 12, 16, 20
    S_R3, S_CG, S_AO, S_BO, S_C3, S_W3, S_RD, S_DL, S_LIM, S_AO2, S_TL, S_NEG = range(24, 36)
    V_RD, V_LN, V_ST, V_E, T = 113, 114, 116, 132, 136
    A_B, A_A = 0, 32
    def dma_group():
        L = [f"s_mov_b32 m0, s{S_W3}"]
        L += [f"buffer_load_dwordx4 v{V_L16}, s[{S_A}:{S_A+3}], s{S_AO} offen offset:{1024*i} sc1 lds" for i in range(4)]
        L += [f"s_add_u32 m0, s{S_W3}, 4096", f"s_add_u32 s{S_AO2}, s{S_AO}, 4096"]
        L += [f"buffer_load_dwordx4 v{V_L16}, s[{S_A}:{S_A+3}], s{S_AO2} offen offset:{1024*i} sc1 lds" for i in range(3)]
        L += [f"s_add_u32 s{S_AO}, s{S_AO}, {4*108*1024}", f"s_add_u32 s{S_W3}, s{S_W3}, {K3_SLOT}",
              f"s_cmp_ge_u32 s{S_W3}, s{S_LIM}", f"s_cselect_b32 s{S_T0}, {K3_NS*K3_SLOT}, 0", f"s_sub_u32 s{S_W3}, s{S_W3}, s{S_T0}"]
        return L
    def rd_adv():
        return [f"s_add_u32 s{S_RD}, s{S_RD}, 1", f"s_cmp_eq_u32 s{S_RD}, {K3_NS}",
                f"s_cselect_b32 s{S_DL}, s{S_NEG}, {K3_SLOT}", f"s_cselect_b32 s{S_RD}, 0, s{S_RD}"]
    def ard(buf, ks):
        return [f"ds_read_b128 {a(A_A+28*buf+4*i,4)}, v{V_RD} offset:{ks*7168+i*1024}" for i in range(7)]
    def b_load(r, imm):
        return f"buffer_load_dwordx4 {a(A_B+4*r,4)}, v{V_L16}, s[{S_B}:{S_B+3}], s{S_BO} offen offset:{imm} sc1"
    lane_id(p, V_LN)
    p(f"""
    v_mov_b32 v{V_RD}, v{V_L16}
    s_and_b32 s{S_R3}, s2, 1
    s_lshl_b32 s{S_R3}, s{S_R3}, 3
    s_lshr_b32 s{S_T0}, s2, 5
    s_add_u32 s{S_R3}, s{S_R3}, s{S_T0}
    s_bfe_u32 s{S_CG}, s2, 0x20001
    s_lshl_b32 s{S_CG}, s{S_CG}, 2
    s_bfe_u32 s{S_T0}, s2, 0x20003
    s_add_u32 s{S_CG}, s{S_CG}, s{S_T0}
    s_mul_i32 s{S_AO}, s{S_WAVE}, {108*1024}
    s_mul_i32 s{S_W3}, s{S_WAVE}, 7168
    s_mul_i32 s{S_CG}, s{S_CG}, 27
    s_lshr_b32 s{S_CG}, s{S_CG}, 2
    s_add_u32 s{S_LIM}, s{S_W3}, {K3_NS*K3_SLOT}
    s_mov_b32 s{S_RD}, 0
    s_mov_b32 s{S_BO}, 0
    s_lshl_b32 s{S_T0}, s{S_CG}, 10
    s_add_u32 s{S_T0}, s{S_T0}, {WS_WP}
    s_lshl_b32 s{S_TL}, s{S_R3}, 2
    s_add_u32 s{S_TL}, s{S_TL}, s{S_WAVE}
    s_mul_i32 s{S_T1}, s{S_TL}, 40960
    s_add_u32 s{S_T1}, s{S_T1}, {WS_X1F}
    s_mov_b32 s{S_NEG}, {(-(K3_NS-1)*K3_SLOT) & 0xffffffff}
    """)
    mksrd(p, S_A, P_WS, f"s{S_T0}", 40 * 108 * 1024 + 7168)
    mksrd(p, S_B, P_WS, f"s{S_T1}", 40960)
    shard_addr(p, T, C_WP)
    poll(p, T, T + 1, 32)
    p("s_barrier")
    for g in range(4):
        p.extend(dma_group())
    for i in range(112):
        p(f"v_mov_b32 v{i}, 0")
    mksrd(p, S_STT, P_WS, WS_STATS, 8 * 2048 * 8)
    p(f"""
    s_lshr_b32 s{S_T0}, s{S_TL}, 1
    s_mul_i32 s{S_T0}, s{S_T0}, {54*4096}
    s_and_b32 s{S_T1}, s{S_TL}, 1
    s_lshl_b32 s{S_T1}, s{S_T1}, 11
    s_add_u32 s{S_T0}, s{S_T0}, s{S_T1}
    s_add_u32 s{S_T0}, s{S_T0}, {WS_HH}
    """)
    mksrd(p, S_H, P_WS, f"s{S_T0}", 54 * 4096 - 2048)
    p(f"""s_lshl_b32 s{S_T0}, s{S_TL}, 8
    s_add_u32 s{S_T0}, s{S_T0}, {WS_CNT + C_F2*256}
    v_mov_b32 v{T}, s{S_T0}""")
    poll(p, T, T + 1, 16)
    stamp(p)
    for t in range(7):
        p(b_load(t, (t % 4) * 1024))
        if t % 4 == 3: p(f"s_add_u32 s{S_BO}, s{S_BO}, 4096")
    p(f"v_and_b32 v{T}, 31, v{V_LN}\nv_lshlrev_b32 v{T}, 3, v{T}\ns_lshl_b32 s{S_T0}, s{S_TL}, 8")
    for i in range(8):
        p(f"buffer_load_dwordx2 {v(V_ST+2*i,2)}, v{T}, s[{S_STT}:{S_STT+3}], s{S_T0} offen sc1")
        if i < 7: p(f"s_add_u32 s{S_T0}, s{S_T0}, 16384")
    p("s_barrier")
    p.extend(ard(0, 0))
    p(f"s_mov_b32 s{S_C3}, 0")
    p.sync(regs=[a(A_B, 4)], lgkm=0)
    p.begin_loop()
    p(f"{NM}_p3_loop:")
    for t in range(8):
        M = [f"v_mfma_f32_32x32x16_bf16 {v(16*i,16)}, {a(A_A+28*(t%2)+4*i,4)}, {a(A_B+4*t,4)}, {v(16*i,16)}" for i in range(7)]
        f = {}
        if t % 4 == 3:
            put(f, ["s_barrier", f"v_add_u32 v{V_RD}, s{S_DL}, v{V_RD}"], [0, 0])
            put(f, ard((t + 1) % 2, 0), [1, 1, 2, 2, 3, 3, 4])
        else:
            put(f, ard((t + 1) % 2, (t + 1) % 4), [0, 0, 1, 1, 2, 2, 3])
        put(f, [b_load((t + 7) % 8, ((t + 7) % 4) * 1024)], [4])
        if (t + 7) % 4 == 3: put(f, [f"s_add_u32 s{S_BO}, s{S_BO}, 4096"], [5])
        if t % 4 == 0:
            dg = dma_group()
            put(f, dg[:4], [2, 3, 5, 6])
        if t % 4 == 1:
            put(f, dg[4:9], [3, 3, 4, 5, 6])
        if t % 4 == 2:
            put(f, dg[9:], [3, 3, 4, 5, 5, 5])
            put(f, rd_adv(), [0, 1, 1, 1])
        sy = mksync(regs=[a(A_B + 4 * ((t + 1) % 8), 4)], dma_keep=21 if t % 4 == 2 else None, lgkm=0)
        if t == 7:
            put(f, [f"s_add_u32 s{S_C3}, s{S_C3}, 1", f"s_cmp_lt_u32 s{S_C3}, 5", sy, f"s_cbranch_scc1 {NM}_p3_loop"], [5, 5, 6, 6])
        else:
            put(f, [sy], [6])
        order_gap(f)
        p.extend(pack(M, f, []))
    p.end_loop(5)
    stamp(p)
    p(f"v_add_f32 v{T}, v{V_ST}, v{V_ST+2}\nv_add_f32 v{T+1}, v{V_ST+1}, v{V_ST+3}")
    for i in range(2, 8):
        p(f"v_add_f32 v{T}, v{T}, v{V_ST+2*i}\nv_add_f32 v{T+1}, v{T+1}, v{V_ST+2*i+1}")
    p(f"v_mul_f32 v{T}, {fhex(1.0/640)}, v{T}\ns_mov_b32 s{S_T0}, {fhex(1.0/80)}\nv_mov_b32 v{T+2}, 0")
    for i in range(8):
        p(f"v_fma_f32 v{T+3}, v{V_ST+2*i}, s{S_T0}, -v{T}\nv_fmac_f32 v{T+2}, v{T+3}, v{T+3}")
    p(f"v_fmac_f32 v{T+1}, {fhex(80.0)}, v{T+2}\nv_mul_f32 v{T+1}, {fhex(1.0/640)}, v{T+1}")
    round_bf16(p, T + 1, T + 1)
    p(f"v_add_f32 v{T+1}, {fhex(1e-5)}, v{T+1}")
    round_bf16(p, T + 1, T + 1)
    p(f"""v_sqrt_f32 v{T+1}, v{T+1}
    v_sub_f32 v{T}, 0, v{T}
    v_cvt_pk_bf16_f32 v{V_E}, v{T}, v{T+1}
    v_mov_b32 v{V_E+1}, v{V_E}
    v_mov_b32 v{V_E+2}, v{V_E}
    v_mov_b32 v{V_E+3}, v{V_E}
    v_and_b32 v{T+1}, 0xffff0000, v{V_E}
    v_rcp_f32 v{T+1}, v{T+1}""")
    for i in range(7):
        p(f"v_mfma_f32_32x32x16_bf16 {v(16*i,16)}, {a(A_A+4*i,4)}, {v(V_E,4)}, {v(16*i,16)}")
    p(f"""v_mul_f32 v{T+1}, v{T+1}, v{T+1}
    v_and_b32 v{T+2}, 15, v{V_LN}
    v_lshlrev_b32 v{T+2}, 4, v{T+2}
    v_bfe_u32 v{T+3}, v{V_LN}, 4, 1
    v_lshl_add_u32 v{T+2}, v{T+3}, 10, v{T+2}
    v_lshrrev_b32 v{T+3}, 5, v{V_LN}
    v_lshl_add_u32 v{T+2}, v{T+3}, 8, v{T+2}""")
    for i in range(7):
        b = 16 * i
        p(f"""s_add_u32 s{S_T0}, s{S_CG}, {i}
        s_lshr_b32 s{S_T1}, s{S_T0}, 1
        s_lshl_b32 s{S_T1}, s{S_T1}, 12
        s_and_b32 s{S_T0}, s{S_T0}, 1
        s_lshl_b32 s{S_T0}, s{S_T0}, 9
        s_add_u32 s{S_T0}, s{S_T0}, s{S_T1}""")
        for r in range(8): p(f"v_mul_f32 v{b+r}, v{T+1}, v{b+r}")
        for r in range(8): p(f"v_mul_f32 v{b+r}, v{b+r}, v{b+8+r}")
        for d in range(4): p(f"v_cvt_pk_bf16_f32 v{b+8+d}, v{b+2*d}, v{b+2*d+1}")
        p(f"buffer_store_dwordx4 {v(b+8,4)}, v{T+2}, s[{S_H}:{S_H+3}], s{S_T0} offen sc1")
    p(f"s_add_u32 s3, s{S_TL}, {C_F3}\ns_waitcnt vmcnt(0)")
    signal(p, 3, 0, 1)
    stamp(p)


def gen_mega(opt=None):
    global nstamp, npoll
    nstamp = 0; npoll = 0
    OPT.clear(); OPT.update(opt or {})
    p = Prog()
    outl = []
    p(f"s_cmp_ge_u32 s2, 256\ns_cbranch_scc1 {NM}_end")
    stamp(p)
    phase0(p)
    phase1(p, outl)
    skinny(p, 'wo')
    phase3(p)
    skinny(p, 'down')
    if OPT.get('stamps'):
        p("s_waitcnt vmcnt(0)")
        p(f"{TIMER()} s[{S_ST}:{S_ST+1}]\ns_waitcnt lgkmcnt(0)")
        p(f"s_lshl_b32 s3, s2, 2\ns_add_u32 s3, s3, s{S_WAVE}\ns_lshl_b32 s3, s3, 7\ns_add_u32 s3, s3, {WS_STAMP}\nv_mov_b32 v0, s3")
        p(f"v_accvgpr_write_b32 a{224+nstamp}, s{S_ST}")
        for i in range(8):
            p(f"global_store_dwordx4 v0, a[{224+4*i}:{227+4*i}], s[{P_WS}:{P_WS+1}] offset:{16*i}")
    p(f"{NM}_end:\ns_endpgm")
    p.finalize(verbose=OPT.get('nopverbose'))
    for q in outl:
        p.items += q.items
    p(f'{NM}_codeend:')
    return p


NAME = 'adaLN_cond__sliding_block_cached__glu_gated_bilinear__prompt'
def build_file(out, opt=None):
    p = gen_mega(opt)
    head = open('cdna_kernels/' + NAME + '.s.ref').read().split('; Override launch')[0]
    kn = NAME + '_kernel'
    c, d = kernel_text(kn, p, force_vgpr=512)
    if (opt or {}).get('list'):
        launch = f"; @launch kernel={kn} grid=(256,1,1) block=(256,1,1) lds={LDS_TOTAL}\n"
    else:
        launch = f"; @launch grid=(256,1,1) block=(256,1,1) lds={LDS_TOTAL}\n"
    open(out, 'w').write(head + launch + '.amdgcn_target "amdgcn-amd-amdhsa--gfx950"\n' + c + d)
    return p

if __name__ == '__main__':
    opt = {k: 1 for k in sys.argv[2:]}
    p = build_file(sys.argv[1], opt)
    print(p.stats(), p.maxregs(), 'stamps', nstamp)
```

```python
from common import *
import math, sys

OPT = {}
NM = 'L'

P_X, P_K, P_V, P_WQ, P_WO, P_BX, P_WG, P_WU, P_WD, P_C, P_WMOD, P_OUT, P_DBG, P_WS = range(64, 92, 2)
S_WAVE, S_T0, S_T1, S_T2 = 60, 61, 62, 63
S_EX = 92
S_SPIN = 94
S_ST = 96

C_WOF, C_WP, C_F1, C_F2, C_F3, C_N = 0, 32, 64, 192, 256, 320
SPIN_MAX = 1 << 16

SLOT, WBLK, PADI = 16768, 4192, 1040
PAIR = 2 * SLOT
LDS_TOTAL = 163840
RING0 = LDS_TOTAL - 4 * PAIR
LDS_TABW = 0
LDS_TABG = 640
LDS_CONST = 1280
LDS_JUNK = LDS_CONST + 10240
IMG_W, IMG_A, IMG_B = 1280, 1280 + 20480, 1280 + 40960
QSCALE = LOG2E / math.sqrt(128.0)

nstamp = 0
def TIMER(): return "s_memtime" if OPT.get("cyc") else "s_memrealtime"
def stamp(p):
    global nstamp
    if OPT.get('stamps'):
        p(f"{TIMER()} s[{S_ST}:{S_ST+1}]\ns_waitcnt lgkmcnt(0)\nv_accvgpr_write_b32 a{224+nstamp}, s{S_ST}")
        nstamp += 1
        assert nstamp <= 28

def lane_id(p, r):
    p(f"v_mbcnt_lo_u32_b32 v{r}, -1, 0")
    p(f"v_mbcnt_hi_u32_b32 v{r}, -1, v{r}")

def mksrd(p, d, ptr, off, size):
    if off is None or off == 0:
        p(f"s_mov_b32 s{d}, s{ptr}\ns_mov_b32 s{d+1}, s{ptr+1}")
    else:
        p(f"s_add_u32 s{d}, s{ptr}, {off}\ns_addc_u32 s{d+1}, s{ptr+1}, 0")
    p(f"s_mov_b32 s{d+2}, {size}\ns_mov_b32 s{d+3}, 0x00020000")

def signal(p, sidx, va, vb, base=P_WS, shift=8, add=WS_CNT):
    p(f"""s_lshl_b32 s{S_T2}, s{sidx}, {shift}
    s_add_u32 s{S_T2}, s{S_T2}, {add}
    v_mov_b32 v{va}, s{S_T2}
    v_mov_b32 v{vb}, 1
    s_mov_b64 exec, 1
    global_atomic_add v{va}, v{vb}, s[{base}:{base+1}] sc1
    s_mov_b64 exec, -1""")

npoll = 0
def poll(p, va, vd, expect, base=P_WS):
    global npoll
    npoll += 1
    p(f"""s_mov_b32 s{S_SPIN}, 0
    {NM}_poll{npoll}:
    global_load_dword v{vd}, v{va}, s[{base}:{base+1}] sc1
    s_add_u32 s{S_SPIN}, s{S_SPIN}, 1
    s_waitcnt vmcnt(0)
    v_cmp_gt_u32 vcc, {expect}, v{vd}
    s_cmp_gt_u32 s{S_SPIN}, {SPIN_MAX}
    s_cbranch_scc1 {NM}_pdone{npoll}
    s_cbranch_vccnz {NM}_poll{npoll}
    {NM}_pdone{npoll}:""")

def dpp_ror_add(p, r, n):
    p(f"v_add_f32_dpp v{r}, v{r}, v{r} row_ror:{n} row_mask:0xf bank_mask:0xf")

def mod_loads(p, srdn, row, vaddr, dst, n4, imms, soff=None):
    for kq in range(4):
        mksrd(p, srdn, P_WS, WS_MOD + kq * 15360 + row * 2560, 2560)
        for i in range(n4):
            p(f"buffer_load_dwordx4 {v(dst+4*(n4*kq+i),4)}, v{vaddr}, s[{srdn}:{srdn+3}], {soff or 0} offen offset:{imms[i]} sc1")

def mod_sum(p, dst, n):
    for e in range(n):
        p(f"v_add_f32 v{dst+e}, v{dst+e}, v{dst+n+e}")
        p(f"v_add_f32 v{dst+2*n+e}, v{dst+2*n+e}, v{dst+3*n+e}")
    for e in range(n):
        p(f"v_add_f32 v{dst+e}, v{dst+e}, v{dst+2*n+e}")
    for e in range(0, n, 2):
        p(f"v_cvt_pk_bf16_f32 v{dst+e}, v{dst+e}, v{dst+e+1}")
        p(f"v_and_b32 v{dst+e+1}, 0xffff0000, v{dst+e}")
        p(f"v_lshlrev_b32 v{dst+e}, 16, v{dst+e}")

V_Q, V_S, V_X, V_C, V_H, V_T, V_AW, V_DMA, V_CA, V_L16, V_LS = 0, 64, 128, 192, 224, 240, 244, 248, 252, 253, 254
V_NEGM, V_AK, V_AV = 192, 240, 244
V_P = [224, 128]
A_O, A_K, A_V = 0, 128, 160
S_KS, S_VS, S_XN, S_O, S_G = 8, 12, 16, 20, 24
S_DA, S_DB = 28, 32
S_DOFF, S_DSTEP, S_XOFF, S_CNT, S_WR, S_DELTA, S_POS, S_WOFF, S_CM3, S_HEAD, S_QB, S_DMASK = range(36, 48)
S_RDB, S_SOFF, S_SWR, S_SSTEP = S_DSTEP, 4, S_XOFF, S_DMASK
S_JA, S_JB = 48, 52
S_JIN = 58
S_JBN = 59
S_WPO = 5
S_WIN = 6
S_WPX = 7
S_RB, S_CT = 56, 57
S_OOFF = 98
V_SC, V_JO, V_WO = 144, 145, 146
A_SF = 192
A_XR = 200

def acc(dt, qt): return 16 * (2 * dt + qt)
def qfrag(qt, m): return V_Q + 8 * (2 * (m >> 1) + qt) + 4 * (m & 1)
def oacc(dt, qt): return A_O + 16 * (2 * dt + qt)

def dma4():
    L = []
    for i in range(4):
        srdn = S_DA if i < 2 else S_DB
        off = f" offset:{i*PADI}" if i else ""
        L.append(f"buffer_load_dwordx4 v{V_DMA+i}, s[{srdn}:{srdn+3}], s{S_DOFF} offen{off} nt lds")
    return L

def dma_pair_qp():
    adv = [f"s_add_u32 s{S_DOFF}, s{S_DOFF}, s{S_DSTEP}"]
    return [f"s_mov_b32 m0, s{S_WR}"] + dma4() + adv + [f"s_add_u32 m0, m0, s{S_T1}"] + dma4() + adv

def dma_pair_at():
    adv = [f"s_add_u32 s{S_DOFF}, s{S_DOFF}, 8192"]
    return [f"s_mov_b32 m0, s{S_WR}"] + dma4() + adv + [f"s_add_u32 m0, m0, {SLOT}"] + dma4() + adv

def pos_update():
    return [f"s_add_u32 s{S_POS}, s{S_POS}, 1",
            f"s_and_b32 s{S_POS}, s{S_POS}, 3",
            f"s_cselect_b32 s{S_DELTA}, {PAIR}, s{S_CM3}"]
def wr_update():
    return [f"s_xor_b32 s{S_WR}, s{S_POS}, 2",
            f"s_mul_i32 s{S_WR}, s{S_WR}, {PAIR}",
            f"s_add_u32 s{S_WR}, s{S_WR}, s{S_WOFF}"]
def pos_update_at():
    return [f"s_add_u32 s{S_POS}, s{S_POS}, 1",
            f"s_cmp_eq_u32 s{S_POS}, 4",
            f"s_cselect_b32 s{S_POS}, 1, s{S_POS}",
            f"s_cselect_b32 s{S_DELTA}, s{S_CM3}, {PAIR}",
            f"s_mov_b32 s{S_WR}, s{S_RDB}",
            f"s_add_u32 s{S_RDB}, s{S_RDB}, s{S_DELTA}"]

def a_reads(buf, kp):
    L = []
    for dt in range(4):
        for jj in range(2):
            r = A_K + 16 * buf + 4 * dt + 2 * jj
            L.append(f"ds_read_b64_tr_b16 a[{r}:{r+1}], v{V_AW+dt} offset:{(kp//4)*SLOT + (kp%4)*WBLK + jj*PADI}")
    return L

def c_reads(buf, off):
    return [f"ds_read_b128 {v(V_C+16*buf+4*i,4)}, v{V_CA} offset:{off+16*i}" for i in range(4)]

def h_valu(xr, cbuf, hbuf):
    L = []
    n = 0
    for qt in range(2):
        for d in range(4):
            x = V_X + 8 * xr + 4 * qt + d
            ca = V_C + 16 * cbuf + 2 * d
            t0 = V_T + 2 * (n % 2); n += 1
            L.append(f"v_fma_mix_f32 v{t0}, v{x}, v{ca}, v{ca+8} op_sel_hi:[1,0,0]")
            L.append(f"v_fma_mix_f32 v{t0+1}, v{x}, v{ca+1}, v{ca+9} op_sel:[1,0,0] op_sel_hi:[1,0,0]")
            L.append(f"v_cvt_pk_bf16_f32 v{V_H+8*hbuf+4*qt+d}, v{t0}, v{t0+1}")
    return L

def x_loads(xr, imm):
    return [f"buffer_load_dwordx4 {v(V_X+8*xr+4*qt,4)}, v{V_L16}, s[{S_XN}:{S_XN+3}], s{S_XOFF} offen offset:{imm+1024*qt} sc1"
            for qt in range(2)]

def k_reads(slotimm):
    return [f"ds_read_b128 {a(A_K+4*m,4)}, v{V_AK+(m>>1)} offset:{slotimm+(m&1)*32}" for m in range(8)]

def v_reads(slotimm, dst=A_V):
    L = []
    for ks in range(2):
        for dt in range(4):
            for jj in range(2):
                r = dst + 16 * ks + 4 * dt + 2 * jj
                L.append(f"ds_read_b64_tr_b16 a[{r}:{r+1}], v{V_AV+dt} offset:{slotimm + 2080 + (2*ks+jj)*WBLK}")
    return L

def qk_mfmas(sbuf, cinit):
    L = []
    for m in range(8):
        for qt in range(2):
            d = V_S + 32 * sbuf + 16 * qt
            c = ('0' if cinit == 'zero' else v(V_NEGM + 16 * qt, 16)) if m == 0 else v(d, 16)
            L.append(f"v_mfma_f32_32x32x16_bf16 {v(d,16)}, {a(A_K+4*m,4)}, {v(qfrag(qt,m),4)}, {c}")
    return L

def pv_mfmas(pbuf, src=A_V):
    L = []
    for ks in range(2):
        for dt in range(4):
            for qt in range(2):
                o = oacc(dt, qt)
                L.append(f"v_mfma_f32_32x32x16_bf16 {a(o,16)}, {a(src+16*ks+4*dt,4)}, {v(V_P[pbuf]+8*qt+4*ks,4)}, {a(o,16)}")
    return L

def softmax_stream(sbuf, pbuf):
    elems = [(qt, r) for ks in range(2) for qt in range(2) for r in range(8 * ks, 8 * ks + 8)]
    L = []
    def post(i):
        qt, r = elems[i]
        x = V_S + 32 * sbuf + 16 * qt + r
        L.append(f"v_add_f32 v{V_LS+qt}, v{V_LS+qt}, v{x}")
        if r % 2 == 1:
            L.append(f"v_cvt_pk_bf16_f32 v{V_P[pbuf]+8*qt+r//2}, v{x-1}, v{x}")
    for i, (qt, r) in enumerate(elems):
        x = V_S + 32 * sbuf + 16 * qt + r
        L.append(f"v_exp_f32 v{x}, v{x}")
        if i >= 1: post(i - 1)
    post(31)
    return L

def put(fixed, items, positions):
    assert len(items) == len(positions), (len(items), len(positions))
    for it, g in zip(items, positions):
        fixed.setdefault(g, []).append(it)

def order_gap(fixed):
    def key(x):
        if not isinstance(x, str): return 1
        if x.startswith('buffer_') or x.startswith('ds_') or x.startswith('global_'): return 0
        if x.startswith('s_'): return 1
        return 2
    for g in fixed:
        fixed[g].sort(key=key)

def prefill(p, lo, hi):
    for i in range(lo, hi):
        p(f"""s_add_u32 s{S_T0}, s{S_QB}, {i}
        s_and_b32 s{S_T0}, s{S_T0}, 7
        s_lshl_b32 s{S_DOFF}, s{S_T0}, 19
        s_mul_i32 s{S_T0}, s{S_T0}, {SLOT}
        s_add_u32 m0, s{S_T0}, s{S_WOFF}""")
        p.extend(dma4())


def phase0(p):
    p(f"""
    s_load_dwordx16 s[64:79], s[0:1], 0
    s_load_dwordx8 s[80:87], s[0:1], 64
    s_load_dwordx4 s[88:91], s[0:1], 96
    v_lshrrev_b32 v1, 6, v0
    v_readfirstlane_b32 s{S_WAVE}, v1
    """)
    if not OPT.get('nocodepf'):
        p(f"""
        s_getpc_b64 s[4:5]
        {NM}_pc:
        s_lshr_b32 s3, s2, 3
        s_lshl_b32 s3, s3, 11
        v_lshlrev_b32 v1, 3, v0
        v_add_u32 v1, s3, v1
        v_min_u32 v1, {NM}_codeend-{NM}_pc-8, v1
        global_load_dwordx2 v[126:127], v1, s[4:5]
        """)
    p(f"""
    s_and_b32 s{S_HEAD}, s2, 7
    s_lshl_b32 s{S_HEAD}, s{S_HEAD}, 2
    s_bfe_u32 s{S_T0}, s2, 0x20003
    s_add_u32 s{S_HEAD}, s{S_HEAD}, s{S_T0}
    s_lshr_b32 s{S_QB}, s2, 5
    s_mul_i32 s{S_WOFF}, s{S_WAVE}, {WBLK}
    s_add_u32 s{S_WOFF}, s{S_WOFF}, {RING0}
    """)
    p(f"""
    s_lshl_b32 s3, s2, 3
    v_lshrrev_b32 v1, 5, v0
    v_add_u32 v3, s3, v1
    v_and_b32 v2, 31, v0
    v_mul_u32_u24 v3, 1280, v3
    v_lshl_add_u32 v3, v2, 3, v3
    """)
    p(f"""
    s_and_b32 s6, s2, 3
    s_mul_i32 s6, s6, 160
    s_lshr_b32 s7, s2, 2
    s_lshl_b32 s3, s7, 7
    s_cmp_ge_u32 s2, 240
    s_cselect_b32 s3, 0x40000000, s3
    v_lshrrev_b32 v4, 3, v0
    v_add_u32 v4, s6, v4
    v_mul_u32_u24 v5, 7680, v4
    v_and_b32 v6, 7, v0
    v_lshlrev_b32 v6, 4, v6
    v_add3_u32 v5, v5, v6, s3
    v_lshlrev_b32 v4, 1, v4
    """)
    p(f"""
    v_and_b32 v7, 63, v0
    v_lshlrev_b32 v{V_L16}, 4, v7
    v_lshrrev_b32 v98, 4, v7
    v_and_b32 v99, 15, v7
    v_lshlrev_b32 v100, 2, v98
    v_xor_b32 v99, v100, v99
    v_lshlrev_b32 v99, 4, v99
    v_lshl_add_u32 v99, v98, 13, v99
    s_lshl_b32 s{S_T0}, s{S_WAVE}, 17
    v_add_u32 v{V_DMA}, s{S_T0}, v99
    """)
    for i in range(1, 4):
        p(f"v_add_u32 v{V_DMA+i}, {i*(4*8192-PADI)}, v{V_DMA}")
    for i in range(5):
        p(f"s_mov_b32 s{50+i}, {i*32*7680}")
    p("s_waitcnt lgkmcnt(0)")
    mksrd(p, 8, P_X, None, SZ_X)
    mksrd(p, 12, P_C, None, SZ_C)
    mksrd(p, 16, P_WMOD, None, SZ_WMOD)
    for i in range(5):
        p(f"buffer_load_dwordx2 {v(8+2*i,2)}, v3, s[8:11], 0 offen offset:{i*256} nt")
    for i in range(5):
        p(f"buffer_load_ushort v{52+i}, v4, s[12:15], 0 offen offset:{i*64}")
    for i in range(5):
        p(f"buffer_load_dwordx4 {v(60+4*i,4)}, v5, s[16:19], s{50+i} offen nt")
    p(f"""
    s_lshl_b32 s{S_T0}, s{S_HEAD}, 8
    s_add_u32 s{S_DA}, s{P_WQ}, s{S_T0}
    s_addc_u32 s{S_DA+1}, s{P_WQ+1}, 0
    s_sub_u32 s{S_DA+2}, {SZ_WQ}, s{S_T0}
    s_mov_b32 s{S_DA+3}, 0x00020000
    s_mov_b32 s{S_DB}, s{S_DA}
    s_mov_b32 s{S_DB+1}, s{S_DA+1}
    s_mov_b32 s{S_DB+2}, s{S_DA+2}
    s_mov_b32 s{S_DB+3}, 0x00020000
    """)
    NB1 = OPT.get('nb1', 2)
    prefill(p, 0, NB1)
    p(f"""
    v_lshrrev_b32 v6, 1, v2
    v_lshlrev_b32 v6, 7, v6
    v_lshl_add_u32 v6, v1, 4, v6
    v_and_b32 v7, 1, v2
    v_lshl_add_u32 v6, v7, 3, v6
    v_add_u32 v6, {LDS_CONST}, v6
    """)
    for i in range(10):
        p(f"v_lshlrev_b32 v{20+2*i}, 16, v{8+i}")
        p(f"v_and_b32 v{21+2*i}, 0xffff0000, v{8+i}")
    def reduce32(r, t):
        for n in (1, 2, 4, 8):
            dpp_ror_add(p, r, n)
        p(f"v_mov_b32 v{t}, v{r}\nv_permlane16_swap_b32 v{r}, v{t}\nv_add_f32 v{r}, v{r}, v{t}")
    for c in range(4):
        p(f"v_add_f32 v{40+c}, v{20+c}, v{24+c}")
    for k in (28, 32, 36):
        for c in range(4):
            p(f"v_add_f32 v{40+c}, v{40+c}, v{k+c}")
    p("v_add_f32 v40, v40, v41\nv_add_f32 v42, v42, v43\nv_add_f32 v40, v40, v42")
    reduce32(40, 41)
    p(f"v_mul_f32 v40, {fhex(1.0/640)}, v40")
    for e in range(20):
        p(f"v_sub_f32 v{44 + e%4}, v{20+e}, v40")
        p(f"v_mul_f32 v{48+e%4}, v{44+e%4}, v{44+e%4}" if e < 4 else f"v_fmac_f32 v{48+e%4}, v{44+e%4}, v{44+e%4}")
    p("v_add_f32 v48, v48, v49\nv_add_f32 v50, v50, v51\nv_add_f32 v48, v48, v50")
    reduce32(48, 49)
    p(f"v_mul_f32 v48, {fhex(1.0/640)}, v48")
    round_bf16(p, 48, 48)
    p(f"v_add_f32 v48, {fhex(1e-5)}, v48")
    round_bf16(p, 48, 48)
    p("v_sqrt_f32 v48, v48")
    round_bf16(p, 48, 48)
    p("v_rcp_f32 v48, v48")
    round_bf16(p, 40, 40)
    for i in range(10):
        x0, x1 = 20 + 2 * i, 21 + 2 * i
        p(f"""v_sub_f32 v{x0}, v{x0}, v40
        v_sub_f32 v{x1}, v{x1}, v40
        v_cvt_pk_bf16_f32 v{x0}, v{x0}, v{x1}
        v_and_b32 v{x1}, 0xffff0000, v{x0}
        v_lshlrev_b32 v{x0}, 16, v{x0}
        v_mul_f32 v{x0}, v{x0}, v48
        v_mul_f32 v{x1}, v{x1}, v48
        v_cvt_pk_bf16_f32 v{x0}, v{x0}, v{x1}
        v_and_b32 v{x1}, 0xffff0000, v{x0}
        v_lshlrev_b32 v{x0}, 16, v{x0}
        v_cvt_pk_f16_f32 v{8+i}, v{x0}, v{x1}""")
        if i % 2 == 1:
            p(f"ds_write_b64 v6, {v(8+i-1,2)} offset:{(i//2)*2048}")
    p(f"s_mov_b32 s3, {fhex(-LOG2E)}")
    for i in range(5):
        p(f"v_lshlrev_b32 v{52+i}, 16, v{52+i}\nv_mul_f32 v{80+i}, s3, v{52+i}\nv_exp_f32 v{80+i}, v{80+i}")
    for i in range(5):
        p(f"v_add_f32 v{80+i}, 1.0, v{80+i}\nv_rcp_f32 v{80+i}, v{80+i}")
    for i in range(5):
        p(f"v_mul_f32 v{80+i}, v{52+i}, v{80+i}")
        round_bf16(p, 80 + i, 80 + i)
    for i in range(5):
        for d in range(4):
            w = 60 + 4 * i + d
            op = 'v_mul_f32' if i == 0 else 'v_fmac_f32'
            p(f"v_lshlrev_b32 v96, 16, v{w}\nv_and_b32 v97, 0xffff0000, v{w}")
            p(f"{op} v{88+2*d}, v{80+i}, v96\n{op} v{89+2*d}, v{80+i}, v97")
    for e in range(8):
        dpp_ror_add(p, 88 + e, 8)
    p(f"""
    v_lshrrev_b32 v1, 4, v0
    v_lshlrev_b32 v1, 8, v1
    v_and_b32 v2, 7, v0
    v_lshl_add_u32 v1, v2, 5, v1
    v_add_u32 v1, {LDS_JUNK}, v1
    v_and_b32 v2, 8, v0
    v_cmp_eq_u32 vcc, 0, v2
    s_and_saveexec_b64 s[{S_EX}:{S_EX+1}], vcc
    ds_write_b128 v1, v[88:91]
    ds_write_b128 v1, v[92:95] offset:16
    s_mov_b64 exec, s[{S_EX}:{S_EX+1}]
    v_lshlrev_b32 v1, 4, v0
    v_add_u32 v1, {LDS_CONST}, v1
    """)
    p(f"""
    s_lshr_b32 s3, s2, 3
    s_mul_i32 s3, s3, 81920
    s_bfe_u32 s6, s2, 0x10002
    s_lshl_b32 s6, s6, 10
    s_add_u32 s3, s3, s6
    s_and_b32 s6, s2, 3
    s_lshl_b32 s6, s6, 7
    s_add_u32 s3, s3, s6
    s_add_u32 s3, s3, {WS_XN}
    v_lshrrev_b32 v2, 4, v0
    v_lshlrev_b32 v2, 11, v2
    v_bfe_u32 v3, v0, 3, 1
    v_lshl_add_u32 v2, v3, 9, v2
    v_and_b32 v3, 7, v0
    v_lshl_add_u32 v2, v3, 4, v2
    s_mov_b32 s50, 32768
    s_mov_b32 s51, 65536
    """)
    mksrd(p, 8, P_WS, 's3', 40 * 2048 - 1024)
    p.sync(lgkm=0)
    p("s_barrier")
    for i in range(3):
        p(f"ds_read_b128 {v(8+4*i,4)}, v1 offset:{4096*i}")
    p(f"""
    s_cmp_lg_u32 s{S_WAVE}, 3
    s_cbranch_scc1 {NM}_p0_nomod
    """)
    p.begin_cond()
    p(f"""
    s_cmp_ge_u32 s2, 240
    s_cbranch_scc1 {NM}_p0_nomod
    v_lshrrev_b32 v4, 2, v{V_L16}
    v_add_u32 v5, {LDS_JUNK}, v4
    """)
    for i in range(16):
        p(f"ds_read_b32 v{24+i}, v5 offset:{256*i}")
    for st in (8, 4, 2, 1):
        for i in range(st):
            p(f"v_add_f32 v{24+i}, v{24+i}, v{24+i+st}")
    p(f"""
    s_and_b32 s6, s2, 3
    s_mul_i32 s6, s6, 15360
    s_lshl_b32 s7, s7, 8
    s_add_u32 s6, s6, s7
    v_add_u32 v4, s6, v4
    global_store_dword v4, v24, s[{P_WS}:{P_WS+1}] sc1
    """)
    p.end_cond()
    p(f"""
    {NM}_p0_nomod:
    s_waitcnt lgkmcnt(0)
    buffer_store_dwordx4 v[8:11], v2, s[8:11], 0 offen sc1
    buffer_store_dwordx4 v[12:15], v2, s[8:11], s50 offen sc1
    buffer_store_dwordx4 v[16:19], v2, s[8:11], s51 offen sc1
    """)
    mksrd(p, 12, P_WS, WS_CNT, C_N * 256)
    p(f"""
    s_cmp_lg_u32 s{S_WAVE}, 2
    s_cbranch_scc1 {NM}_p0_nozero
    """)
    p.begin_cond()
    p(f"""
    v_lshlrev_b32 v4, 12, v{V_L16}
    s_lshl_b32 s3, s2, 8
    v_mov_b32 v5, 0
    buffer_store_dword v5, v4, s[12:15], s3 offen sc1
    """)
    p.end_cond()
    p(f"""
    {NM}_p0_nozero:
    s_waitcnt vmcnt(0)
    s_barrier
    s_cmp_lg_u32 s{S_WAVE}, 0
    s_cbranch_scc1 {NM}_p0_nosig
    """)
    p.begin_cond()
    p("s_and_b32 s3, s2, 7")
    signal(p, 3, 4, 5, base=P_DBG, shift=5, add=0)
    p.end_cond()
    p(f"{NM}_p0_nosig:")
    stamp(p)
    prefill(p, NB1, 8)
    p1_setup(p)
    p(f"""
    s_cmp_lg_u32 s{S_WAVE}, 0
    s_cbranch_scc1 {NM}_p0_nopoll
    """)
    p.begin_cond()
    p("v_and_b32 v8, 7, v0\nv_lshlrev_b32 v8, 5, v8")
    poll(p, 8, 9, 32, base=P_DBG)
    p.end_cond()
    p(f"""{NM}_p0_nopoll:
    s_barrier""")
    stamp(p)


KOFF = 4096 + 8192
VOFF = 4096 + 2080 + 4 * 8192

def tile_addr(p, vl, vg, vtok, vrm):
    p(f"""
    v_lshrrev_b32 v{vg}, 4, v{vl}
    v_and_b32 v{vtok}, 15, v{vl}
    s_lshl_b32 s{S_T0}, s{S_RB}, 2
    s_add_u32 s{S_T0}, s{S_T0}, s{S_WAVE}
    s_lshl_b32 s{S_T0}, s{S_T0}, 4
    v_add_u32 v{vtok}, s{S_T0}, v{vtok}
    v_mul_u32_u24 v{vrm}, 1280, v{vtok}
    v_lshl_add_u32 v{vrm}, v{vg}, 3, v{vrm}
    s_mul_i32 s{S_T0}, s{S_CT}, 160
    v_add_u32 v{vrm}, s{S_T0}, v{vrm}
    """)


def p1_setup(p):
    p(f"""
    s_lshl_b32 s{S_T0}, s{S_QB}, 2
    s_add_u32 s{S_T0}, s{S_T0}, s{S_WAVE}
    s_mul_i32 s{S_T1}, s{S_T0}, 81920
    s_add_u32 s{S_T1}, s{S_T1}, {WS_XN}
    """)
    mksrd(p, S_XN, P_WS, f"s{S_T1}", 81920)
    p(f"""
    s_lshl_b32 s{S_T0}, s{S_T0}, 19
    s_lshl_b32 s{S_T1}, s{S_HEAD}, 14
    s_add_u32 s{S_T0}, s{S_T0}, s{S_T1}
    s_add_u32 s{S_T0}, s{S_T0}, {WS_O}
    """)
    mksrd(p, S_O, P_WS, f"s{S_T0}", 16384)
    p(f"s_lshl_b32 s{S_T0}, s{S_HEAD}, 19\ns_add_u32 s{S_T1}, s{S_T0}, {1536*256 - VOFF}")
    mksrd(p, S_VS, P_V, f"s{S_T1}", VOFF + 512 * 256)
    p(f"s_add_u32 s{S_T1}, s{S_T0}, {1536*256 - KOFF}")
    mksrd(p, S_KS, P_K, f"s{S_T1}", KOFF + 512 * 256)
    p(f"""
    v_and_b32 v2, 63, v0
    v_lshrrev_b32 v3, 5, v2
    v_mul_u32_u24 v3, 2080, v3
    v_bfe_u32 v4, v2, 2, 2
    v_lshl_add_u32 v3, v4, 8, v3
    v_bfe_u32 v5, v2, 4, 1
    v_lshl_add_u32 v3, v5, 5, v3
    v_and_b32 v5, 1, v2
    v_lshl_add_u32 v3, v5, 4, v3
    v_bfe_u32 v5, v2, 1, 1
    v_lshl_add_u32 v3, v5, 3, v3
    v_add_u32 v3, {RING0}, v3
    """)
    for dt in range(4):
        p(f"v_xor_b32 v5, {dt}, v4\nv_lshl_add_u32 v{V_AW+dt}, v5, 6, v3")
    p(f"""
    s_lshr_b32 s{S_T0}, s2, 1
    s_and_b32 s{S_T1}, s2, 1
    s_lshl_b32 s{S_T2}, s{S_T0}, 2
    s_add_u32 s{S_T2}, s{S_T2}, s{S_WAVE}
    s_mul_i32 s{S_JIN}, s{S_T2}, {8*1280}
    s_mul_i32 s{S_T2}, s{S_T1}, 640
    s_add_u32 s{S_JIN}, s{S_JIN}, s{S_T2}
    s_mul_i32 s{S_T0}, s2, 20
    s_add_u32 s{S_T0}, s{S_T0}, s{S_WAVE}
    s_lshl_b32 s{S_T0}, s{S_T0}, 10
    s_add_u32 s{S_T2}, s{S_T0}, {WS_WOF}
    """)
    mksrd(p, S_JA, P_WS, f"s{S_T2}", 4 * 4096 + 1024)
    p(f"s_add_u32 s{S_T2}, s{S_T0}, {WS_WDF}")
    mksrd(p, S_JB, P_WS, f"s{S_T2}", 4 * 4096 + 1024)
    p(f"""
    s_cmp_lt_u32 s2, 108
    s_cselect_b32 s{S_JB+2}, s{S_JB+2}, 0
    s_cselect_b32 s{S_JBN}, {SZ_WD}, 0
    """)
    p(f"""
    s_and_b32 s3, s2, 7
    s_lshr_b32 s{S_T0}, s2, 3
    s_mul_i32 s{S_WIN}, s3, 80
    s_and_b32 s{S_T1}, s{S_WAVE}, 1
    s_lshl_b32 s{S_T1}, s{S_T1}, 3
    s_add_u32 s{S_WIN}, s{S_WIN}, s{S_T1}
    s_mul_i32 s{S_WIN}, s{S_WIN}, 3456
    s_lshl_b32 s{S_T1}, s{S_T0}, 7
    s_add_u32 s{S_WIN}, s{S_WIN}, s{S_T1}
    s_lshl_b32 s{S_T0}, s{S_T0}, 2
    s_add_u32 s{S_T0}, s{S_T0}, s{S_WAVE}
    s_lshl_b32 s{S_T0}, s{S_T0}, 10
    s_mul_i32 s{S_WPO}, s3, {5*108*1024}
    s_add_u32 s{S_WPO}, s{S_WPO}, s{S_T0}
    s_add_u32 s{S_WPX}, s{S_T0}, {40*108*1024}
    s_lshr_b32 s{S_T2}, s3, 2
    s_lshl_b32 s{S_T2}, s{S_T2}, 9
    s_add_u32 s{S_WPX}, s{S_WPX}, s{S_T2}
    s_and_b32 s{S_T2}, s3, 3
    s_lshl_b32 s{S_T2}, s{S_T2}, 2
    s_add_u32 s{S_WPX}, s{S_WPX}, s{S_T2}
    """)
    p(f"""
    s_bfe_u32 s{S_RB}, s2, 0x20001
    s_lshl_b32 s{S_RB}, s{S_RB}, 3
    s_lshr_b32 s{S_T0}, s2, 5
    s_add_u32 s{S_RB}, s{S_RB}, s{S_T0}
    s_and_b32 s{S_CT}, s2, 1
    s_lshl_b32 s{S_CT}, s{S_CT}, 2
    s_bfe_u32 s{S_T0}, s2, 0x20003
    s_add_u32 s{S_CT}, s{S_CT}, s{S_T0}
    """)
    tile_addr(p, 2, 3, 4, 5)
    mksrd(p, S_G, P_X, None, SZ_X)
    for t in range(5):
        p(f"buffer_load_dwordx2 {a(A_XR+2*t,2)}, v5, s[{S_G}:{S_G+3}], 0 offen offset:{32*t} nt")
    p(f"""
    v_lshrrev_b32 v3, 5, v2
    v_lshlrev_b32 v3, 6, v3
    v_add_u32 v{V_CA}, {LDS_CONST}, v3
    v_lshlrev_b32 v6, 4, v0
    v_add_u32 v1, 2560, v6
    v_add_u32 v7, 40, v0
    v_mov_b32 v2, {fhex(QSCALE)}
    v_mov_b32 v3, 1.0
    s_mul_i32 s3, s3, 320
    s_add_u32 s3, s3, {3*2560 - 160*16}
    v_add_u32 v4, s3, v6
    v_add_u32 v5, 2560, v4
    v_subrev_u32 v8, 160, v0
    v_cmp_lt_u32 vcc, 159, v0
    v_cndmask_b32 v1, v1, v5, vcc
    v_cndmask_b32 v7, v7, v8, vcc
    v_cndmask_b32 v2, v2, v3, vcc
    v_cndmask_b32 v9, v6, v4, vcc
    s_mul_i32 s3, s{S_CT}, 320
    s_add_u32 s3, s3, {2*2560 - 180*16}
    v_add_u32 v4, s3, v6
    v_add_u32 v5, {3*2560}, v4
    v_cmp_lt_u32 vcc, 179, v0
    v_cndmask_b32 v6, v9, v4, vcc
    v_cndmask_b32 v1, v1, v5, vcc
    v_cndmask_b32 v3, v3, 0, vcc
    v_cmp_lt_u32 vcc, 199, v0
    v_cndmask_b32 v7, v7, v0, vcc
    v_lshrrev_b32 v4, 1, v7
    v_lshlrev_b32 v4, 6, v4
    v_and_b32 v5, 1, v7
    v_lshl_add_u32 v7, v5, 4, v4
    s_mov_b32 s{S_POS}, 0
    s_mov_b32 s{S_CM3}, {(-3*PAIR) & 0xffffffff}
    s_mov_b32 s{S_WR}, {LDS_JUNK}
    s_mov_b32 s{S_T1}, 0
    s_mov_b32 s{S_DOFF}, 0x40000000
    s_mov_b32 s{S_DSTEP}, 0
    s_mov_b32 s{S_CNT}, 0
    s_mov_b32 s{S_XOFF}, 0
    """)
    for i in range(128):
        p(f"v_accvgpr_write_b32 a{i}, 0")
    for i in range(40, 128):
        p(f"v_mov_b32 v{i}, 0")


def kv_switch(q):
    tl, t1, t2 = V_T, V_T + 1, V_T + 2
    lane_id(q, tl)
    q(f"""
    v_lshrrev_b32 v{t1}, 4, v{tl}
    v_and_b32 v{t2}, 15, v{tl}
    v_lshlrev_b32 v{tl}, 2, v{t1}
    v_xor_b32 v{t2}, v{tl}, v{t2}
    v_lshlrev_b32 v{t2}, 4, v{t2}
    v_lshl_add_u32 v{t2}, v{t1}, 8, v{t2}
    s_lshl_b32 s{S_T0}, s{S_WAVE}, 11
    s_add_u32 s{S_T0}, s{S_T0}, 4096
    v_add_u32 v{V_DMA}, s{S_T0}, v{t2}
    v_subrev_u32 v{V_DMA+1}, 16, v{V_DMA}
    v_mov_b32 v{V_DMA+2}, v{V_DMA}
    v_mov_b32 v{V_DMA+3}, v{V_DMA+1}
    s_mov_b32 s{S_DA}, s{S_KS}
    s_mov_b32 s{S_DA+1}, s{S_KS+1}
    s_mov_b32 s{S_DA+2}, s{S_KS+2}
    s_mov_b32 s{S_DB}, s{S_VS}
    s_mov_b32 s{S_DB+1}, s{S_VS+1}
    s_mov_b32 s{S_DB+2}, 0
    s_mov_b32 s{S_DOFF}, 0
    s_mov_b32 s{S_DSTEP}, 8192
    """)


def attn_body(p):
    M = qk_mfmas(0, 'negm') + pv_mfmas(0) + qk_mfmas(1, 'negm') + pv_mfmas(1)
    f1, f2 = {}, {}
    JF = '' if OPT.get('jobplain') else ' nt'
    put(f1, ["s_barrier"], [0])
    put(f1, v_reads(0), [1, 1, 2, 3, 4, 5, 6, 7, 8, 9, 10, 11, 12, 13, 13, 14])
    put(f1, [mksync(regs=[a(A_V, 16)])], [15])
    put(f1, [mksync(regs=[a(A_V + 16, 16)])], [22])
    put(f1, k_reads(0), [16, 17, 18, 19, 20, 21, 23, 24])
    dg = dma_pair_at()
    put(f1, dg[:6], [17, 18, 20, 23, 29, 30])
    put(f1, [f"s_mov_b32 m0, s{S_SWR}",
             f"buffer_load_dwordx4 v{V_WO}, s[{S_KS}:{S_KS+3}], s{S_WIN} offen nt lds",
             f"s_add_u32 m0, m0, s{S_SSTEP}",
             f"buffer_load_dwordx4 v{V_JO}, s[{S_XN}:{S_XN+3}], s{S_JIN} offen nt lds",
             f"s_add_u32 m0, m0, s{S_SSTEP}",
             f"buffer_load_dwordx4 v{V_JO}, s[{S_G}:{S_G+3}], s{S_JIN} offen nt lds"], [2, 3, 5, 6, 8, 9])
    put(f1, [f"ds_read_b64_tr_b16 {a(A_SF+2*i,2)}, v{V_SC} offset:{(i>>1)*20480+(i&1)*1024}" for i in range(4)], [25, 26, 27, 28])
    put(f1, [mksync(lgkm=0)], [31])
    put(f2, v_reads(SLOT), [0, 1, 2, 3, 4, 5, 6, 7, 8, 9, 10, 11, 12, 13, 13, 14])
    put(f2, [f"buffer_store_dwordx4 {a(A_SF,4)}, v{V_L16}, s[{S_JA}:{S_JA+3}], s{S_SOFF} offen sc1",
             f"buffer_store_dwordx4 {a(A_SF+4,4)}, v{V_L16}, s[{S_JB}:{S_JB+3}], s{S_SOFF} offen sc1"], [1, 4])
    put(f2, [f"s_lshl_b32 s{S_SOFF}, s{S_CNT}, 12",
             f"s_add_u32 s{S_JIN}, s{S_JIN}, 128", f"s_add_u32 s{S_WIN}, s{S_WIN}, {16*3456}", f"s_add_u32 s{S_SWR}, s{S_SWR}, 4096",
             f"s_cmp_lt_u32 s{S_CNT}, 4", f"s_cselect_b32 s{S_JIN}, s{S_JIN}, s{S_T1}", f"s_cselect_b32 s{S_WIN}, s{S_WIN}, s{S_T1}",
             f"s_cselect_b32 s{S_SWR}, s{S_SWR}, {IMG_A}", f"s_cselect_b32 s{S_SSTEP}, s{S_SSTEP}, 0"],
        [5, 2, 3, 6, 7, 7, 8, 8, 9])
    put(f2, [f"v_add_u32 v{V_SC}, 4096, v{V_SC}"], [14])
    put(f2, [mksync(regs=[a(A_V, 16)])], [15])
    put(f2, [mksync(regs=[a(A_V + 16, 16)])], [22])
    put(f2, k_reads(SLOT), [16, 17, 18, 19, 20, 21, 23, 24])
    put(f2, dg[6:], [0, 16, 18, 20, 25, 29])
    put(f2, pos_update_at(), [10, 11, 11, 11, 12, 12])
    put(f2, [f"v_add_u32 v{V_AV+i}, s{S_DELTA}, v{V_AV+i}" for i in range(4)], [17, 19, 21, 23])
    put(f2, [f"v_add_u32 v{V_AK+i}, s{S_DELTA}, v{V_AK+i}" for i in range(4)], [26, 27, 28, 29])
    put(f2, [f"s_add_u32 s{S_CNT}, s{S_CNT}, 1", f"s_cmp_lt_u32 s{S_CNT}, 7", mksync(dma_keep=8, lgkm=0)], [30, 30, 30])
    put(f2, [f"s_cbranch_scc1 {NM}_at"], [31])
    order_gap(f1); order_gap(f2)
    vb = OPT.get('verbose')
    p.extend(pack(M[:32], f1, softmax_stream(1, 1), verbose=vb and 'at1'))
    p.extend(pack(M[32:], f2, softmax_stream(0, 0), stop=31, verbose=vb and 'at2'))


def phase1(p, outl):
    vb = OPT.get('verbose')
    mksrd(p, S_G, P_WS, WS_MOD, 4 * 15360)
    for kq in range(4):
        p(f"s_mov_b32 s3, {kq*15360}")
        p(f"buffer_load_dwordx4 {v(8+4*kq,4)}, v6, s[{S_G}:{S_G+3}], s3 offen sc1")
        p(f"buffer_load_dwordx4 {v(24+4*kq,4)}, v1, s[{S_G}:{S_G+3}], s3 offen sc1")
    for t in range(8):
        p.extend(x_loads(t, (t % 2) * 2048))
        if t % 2 == 1:
            p(f"s_add_u32 s{S_XOFF}, s{S_XOFF}, 4096")
    mod_sum(p, 8, 4)
    mod_sum(p, 24, 4)
    for e in range(4):
        p(f"v_add_f32 v{24+e}, v3, v{24+e}")
        round_bf16(p, 24 + e, 24 + e)
        p(f"v_mul_f32 v{24+e}, v2, v{24+e}\nv_mul_f32 v{8+e}, v2, v{8+e}")
    p("ds_write_b128 v7, v[24:27]\nds_write_b128 v7, v[8:11] offset:32")
    p.sync(dma_keep=0, lgkm=0)
    p("s_barrier")
    p.extend(c_reads(0, 0))
    p.extend(a_reads(0, 0))
    p.extend(c_reads(1, 128))
    p.extend(a_reads(1, 1))
    for i in range(40):
        p(f"v_mov_b32 v{i}, 0")
    p.extend(h_valu(0, 0, 0))
    p.sync(regs=[a(A_K, 16), v(V_C + 16, 16), v(V_X + 8, 8)])
    stamp(p)
    p.begin_loop()
    p(f"{NM}_qp:")
    dg = dma_pair_qp()
    xadv = f"s_add_u32 s{S_XOFF}, s{S_XOFF}, 4096"
    for t in range(8):
        M = [f"v_mfma_f32_32x32x16_bf16 {v(acc(dt,qt),16)}, {a(A_K+16*(t%4)+4*dt,4)}, {v(V_H+8*(t%2)+4*qt,4)}, {v(acc(dt,qt),16)}"
             for dt in range(4) for qt in range(2)]
        f = {}
        ar = a_reads((t + 2) % 4, (t + 2) % 8)
        cr = c_reads(t % 2, (t + 2) * 128)
        sy = mksync(regs=[a(A_K + 16 * ((t + 1) % 4), 16), v(V_C + 16 * (t % 2), 16), v(V_X + 8 * ((t + 2) % 8), 8)],
                    dma_keep=8 if t == 5 else None)
        if t == 6:
            put(f, ["s_barrier"], [0])
            put(f, [f"v_add_u32 v{V_AW+i}, s{S_DELTA}, v{V_AW+i}" for i in range(4)], [0, 1, 2, 2])
            put(f, cr, [1, 1, 2, 2])
            put(f, x_loads(t, 0), [3, 5])
            put(f, ar, [3, 4, 4, 5, 6, 6, 7, 7])
            put(f, [sy], [7])
        else:
            put(f, cr, [0, 0, 1, 1])
            put(f, x_loads(t, (t % 2) * 2048), [2, 4])
            put(f, ar, [2, 3, 3, 4, 5, 5, 6, 7] if t != 7 else [2, 3, 3, 4, 5, 5, 6, 6])
            put(f, [sy], [7] if t != 7 else [6])
        if t == 0: put(f, dg[0:2], [5, 6])
        if t == 1: put(f, dg[2:4] + [xadv], [6, 7, 7])
        if t == 2: put(f, dg[4:7], [6, 7, 7])
        if t == 3: put(f, dg[7:8] + [xadv], [6, 7])
        if t == 4: put(f, dg[8:10] + pos_update(), [6, 7, 0, 1, 1])
        if t == 5: put(f, dg[10:12] + [xadv], [6, 7, 7])
        if t == 7:
            put(f, [f"v_add_u32 v{V_CA}, 1024, v{V_CA}", xadv, f"s_add_u32 s{S_CNT}, s{S_CNT}, 1"], [3, 5, 5])
            put(f, [f"s_cmp_lt_u32 s{S_CNT}, 2", f"s_cbranch_scc1 {NM}_qp"], [6, 7])
        order_gap(f)
        p.extend(pack(M, f, h_valu((t + 1) % 8, (t + 1) % 2, (t + 1) % 2), stop=7 if t == 7 else 8, verbose=vb and f'qp{t}'))
    p.begin_cond()
    p.extend(wr_update())
    p(f"""
    s_cmp_eq_u32 s{S_CNT}, 3
    s_cbranch_scc1 {NM}_switch
    s_cmp_eq_u32 s{S_CNT}, 2
    s_cbranch_scc1 {NM}_wq4
    s_cmp_lt_u32 s{S_CNT}, 5
    s_cbranch_scc1 {NM}_qp
    """)
    p.end_cond()
    p.end_loop(5)
    q = Prog()
    q(f"{NM}_switch:")
    kv_switch(q)
    q(f"""s_branch {NM}_qp
    {NM}_wq4:
    s_mov_b32 s{S_T1}, {SLOT}
    s_mov_b32 s{S_DOFF}, {8*64*8192}
    s_mov_b32 s{S_DSTEP}, {64*8192}
    s_branch {NM}_qp""")
    q.finalize()
    outl.append(q)
    stamp(p)
    T = V_H
    BASE = RING0 + PAIR
    lane_id(p, T)
    p(f"""
    v_bfe_u32 v{T+1}, v{T}, 3, 2
    v_mul_u32_u24 v{T+1}, {WBLK}, v{T+1}
    v_bfe_u32 v{T+2}, v{T}, 2, 1
    v_mul_u32_u24 v{T+2}, {PADI}, v{T+2}
    v_add_u32 v{T+1}, v{T+1}, v{T+2}
    v_add_u32 v{T+1}, {BASE}, v{T+1}
    v_and_b32 v{T+2}, 3, v{T}
    v_lshl_add_u32 v{T+1}, v{T+2}, 8, v{T+1}
    v_lshrrev_b32 v{T+3}, 5, v{T}
    v_lshl_add_u32 v{T+1}, v{T+3}, 4, v{T+1}
    """)
    for mm in range(4):
        p(f"v_xor_b32 v{T+4}, {mm}, v{T+2}\nv_lshl_add_u32 v{V_AK+mm}, v{T+4}, 6, v{T+1}")
    p.sync(lgkm=0)
    p.extend(k_reads(SLOT))
    p(f"""s_mov_b32 s{S_DB+2}, s{S_VS+2}
    s_add_u32 s{S_RDB}, s{S_WOFF}, {PAIR}
    s_mov_b32 s{S_CM3}, {(-2*PAIR) & 0xffffffff}
    s_mov_b32 s{S_SOFF}, 20480""")
    p.extend(dma_pair_at())
    p(f"""
    v_mul_u32_u24 v{T+1}, {PADI}, v{T+3}
    v_bfe_u32 v{T+2}, v{T}, 2, 2
    v_lshl_add_u32 v{T+1}, v{T+2}, 8, v{T+1}
    v_bfe_u32 v{T+4}, v{T}, 4, 1
    v_lshl_add_u32 v{T+1}, v{T+4}, 5, v{T+1}
    v_and_b32 v{T+4}, 3, v{T}
    v_lshl_add_u32 v{T+1}, v{T+4}, 3, v{T+1}
    v_add_u32 v{T+1}, {BASE}, v{T+1}
    """)
    for dt in range(4):
        p(f"v_xor_b32 v{T+5}, {dt}, v{T+2}\nv_lshl_add_u32 v{V_AV+dt}, v{T+5}, 6, v{T+1}")
    p(f"v_mov_b32 v{V_LS}, 0\nv_mov_b32 v{V_LS+1}, 0")
    for tile in range(8):
        for i in range(8):
            p(f"v_cvt_pk_bf16_f32 v{8*tile+i}, v{16*tile+2*i}, v{16*tile+2*i+1}")
    upd = lambda: pos_update_at() + [f"v_add_u32 v{V_AV+i}, s{S_DELTA}, v{V_AV+i}" for i in range(4)] + \
        [f"v_add_u32 v{V_AK+i}, s{S_DELTA}, v{V_AK+i}" for i in range(4)]
    p.extend(upd())
    mksrd(p, S_XN, P_WO, None, SZ_WO)
    mksrd(p, S_G, P_WD, None, f"s{S_JBN}")
    p(f"""s_cmp_lt_u32 s{S_WAVE}, 2
    s_cselect_b32 s{S_KS}, s{P_WG}, s{P_WU}
    s_cselect_b32 s{S_KS+1}, s{P_WG+1}, s{P_WU+1}
    s_cmp_lt_u32 s2, 216
    s_cselect_b32 s{S_KS+2}, {SZ_WG}, 0""")
    p.sync(dma_keep=8, lgkm=0)
    f = {}
    put(f, ["s_barrier"], [0])
    dg = dma_pair_at()
    put(f, dg, [0, 1, 3, 5, 7, 7, 8, 9, 10, 12, 14, 14])
    put(f, k_reads(0), [15] * 8)
    order_gap(f)
    p.extend(pack(qk_mfmas(0, 'zero'), f, [], verbose=vb and 'it-1'))
    for qt in range(2):
        S = V_S + 16 * qt
        m = V_NEGM + 16 * qt
        p(f"""v_max3_f32 v{m}, v{S}, v{S+1}, v{S+2}
        v_max3_f32 v{m+1}, v{S+3}, v{S+4}, v{S+5}
        v_max3_f32 v{m}, v{m}, v{S+6}, v{S+7}
        v_max3_f32 v{m+1}, v{m+1}, v{S+8}, v{S+9}
        v_max3_f32 v{m}, v{m}, v{S+10}, v{S+11}
        v_max3_f32 v{m+1}, v{m+1}, v{S+12}, v{S+13}
        v_max3_f32 v{m}, v{m}, v{S+14}, v{S+15}
        v_max_f32 v{m}, v{m}, v{m+1}
        v_mov_b32 v{m+1}, v{m}""")
    for qt in range(2):
        p(f"v_permlane32_swap_b32 v{V_NEGM+16*qt}, v{V_NEGM+16*qt+1}")
    for qt in range(2):
        m = V_NEGM + 16 * qt
        p(f"v_max_f32 v{m}, v{m}, v{m+1}\nv_sub_f32 v{m}, 0, v{m}")
    for qt in range(2):
        for i in range(1, 16):
            p(f"v_mov_b32 v{V_NEGM+16*qt+i}, v{V_NEGM+16*qt}")
    p(f"""
    v_lshrrev_b32 v{T+1}, 5, v{T}
    v_bfe_u32 v{T+3}, v{T}, 2, 3
    v_lshl_add_u32 v{T+1}, v{T+1}, 4, v{T+3}
    v_lshlrev_b32 v{T+1}, 7, v{T+1}
    v_lshl_add_u32 v{T+1}, v{T+4}, 3, v{T+1}
    s_lshl_b32 s{S_T0}, s{S_WAVE}, 5
    s_add_u32 s{S_T0}, s{S_T0}, {IMG_A - 4096}
    v_add_u32 v{V_SC}, s{S_T0}, v{T+1}
    v_lshrrev_b32 v{T+1}, 3, v{T}
    v_and_b32 v{T+3}, 7, v{T}
    v_lshlrev_b32 v{T+3}, 4, v{T+3}
    v_mul_u32_u24 v{V_JO}, 1280, v{T+1}
    v_add_u32 v{V_JO}, v{V_JO}, v{T+3}
    v_mul_u32_u24 v{V_WO}, 3456, v{T+1}
    v_add_u32 v{V_WO}, v{V_WO}, v{T+3}
    s_lshl_b32 s{S_SWR}, s{S_WAVE}, 10
    s_add_u32 s{S_SWR}, s{S_SWR}, {IMG_W}
    s_mov_b32 s{S_SSTEP}, 20480
    s_mov_b32 s{S_T1}, 0x40000000
    """)
    stamp(p)
    sub = [f"v_add_f32 v{V_S+16*qt+r}, v{V_NEGM+16*qt}, v{V_S+16*qt+r}" for ks in range(2) for qt in range(2) for r in range(8*ks, 8*ks+8)]
    sm = softmax_stream(0, 0)
    st = sub[:2]; k = 2
    for x in sm:
        st.append(x)
        if x.startswith('v_exp') and k < 32:
            st.append(sub[k]); k += 1
    p.sync(lgkm=0)
    f = {}
    put(f, k_reads(SLOT), [15] * 8)
    p.extend(pack(qk_mfmas(1, 'negm'), f, st, verbose=vb and 'it0'))
    p.extend(upd())
    p(f"s_mov_b32 s{S_CNT}, 0")
    p.sync(dma_keep=8, lgkm=0)
    p.begin_loop()
    p(f"{NM}_at:")
    attn_body(p)
    p.end_loop(7)
    p("s_barrier")
    p.extend(v_reads(0))
    p(f"s_and_b32 s3, s2, 7\ns_lshl_b32 s3, s3, 2\ns_add_u32 s3, s3, s{S_WAVE}")
    signal(p, 3, V_SC, V_JO)
    sm = softmax_stream(1, 1)
    p.extend(sm[:10])
    f = {}
    put(f, v_reads(SLOT, A_K), [i * 12 // 16 for i in range(16)])
    p.extend(pack(pv_mfmas(0), f, sm[10:], verbose=vb and 'it15'))
    if OPT.get('st15'): stamp(p)
    p.extend(pv_mfmas(1, A_K))
    stamp(p)
    T = V_S
    for qt in range(2):
        p(f"v_mov_b32 v{T+qt}, v{V_LS+qt}")
    for qt in range(2):
        p(f"v_permlane32_swap_b32 v{V_LS+qt}, v{T+qt}")
    for qt in range(2):
        p(f"v_add_f32 v{V_LS+qt}, v{V_LS+qt}, v{T+qt}")
    for qt in range(2):
        p(f"v_rcp_f32 v{V_LS+qt}, v{V_LS+qt}")
    lane_id(p, T + 2)
    p(f"""
    v_and_b32 v{T+3}, 15, v{T+2}
    v_lshlrev_b32 v{T+3}, 4, v{T+3}
    v_bfe_u32 v{T+4}, v{T+2}, 4, 1
    v_lshl_add_u32 v{T+3}, v{T+4}, 10, v{T+3}
    v_lshrrev_b32 v{T+4}, 5, v{T+2}
    v_lshl_add_u32 v{T+3}, v{T+4}, 8, v{T+3}
    """)
    for dt in range(4):
        p(f"s_mov_b32 s{S_OOFF+dt}, {dt*4096}")
    n = 0
    for dt in range(4):
        for qt in range(2):
            for h8 in range(2):
                B = 16 * (n % 4); n += 1
                o = oacc(dt, qt) + 8 * h8
                for i in range(8):
                    p(f"v_accvgpr_read_b32 v{B+i}, a{o+i}")
                for i in range(8):
                    p(f"v_mul_f32 v{B+i}, v{V_LS+qt}, v{B+i}")
                for i in range(4):
                    p(f"v_cvt_pk_bf16_f32 v{B+8+i}, v{B+2*i}, v{B+2*i+1}")
                p(f"buffer_store_dwordx4 {v(B+8,4)}, v{T+3}, s[{S_O}:{S_O+3}], s{S_OOFF+dt} offen offset:{qt*2048+h8*512} sc1")
    stamp(p)
    wp_job(p, T + 2)


def f1_signal(p):
    p(f"""s_waitcnt vmcnt(0)
    s_lshl_b32 s3, s{S_QB}, 2
    s_add_u32 s3, s3, s{S_WAVE}
    s_lshl_b32 s3, s3, 2
    s_lshr_b32 s{S_T0}, s{S_HEAD}, 3
    s_add_u32 s3, s3, s{S_T0}
    s_add_u32 s3, s3, {C_F1}""")
    signal(p, 3, 200, 201)
    stamp(p)


def wp_job(p, VL):
    p(f"""
    v_lshrrev_b32 v201, 5, v{VL}
    v_lshlrev_b32 v202, 6, v201
    v_lshlrev_b32 v203, 10, v201
    v_bfe_u32 v201, v{VL}, 2, 2
    v_lshl_add_u32 v203, v201, 7, v203
    v_bfe_u32 v201, v{VL}, 4, 1
    v_lshl_add_u32 v203, v201, 11, v203
    v_and_b32 v201, 3, v{VL}
    v_lshl_add_u32 v203, v201, 3, v203
    s_lshl_b32 s3, s{S_WAVE}, 5
    v_add_u32 v203, s3, v203
    s_mov_b32 s3, 0x3f803f80
    v_mov_b32 v204, 0
    v_mov_b32 v205, 0
    """)
    mksrd(p, S_G, P_WS, WS_WP, 41 * 108 * 1024)
    p(f"s_cmp_lt_u32 s2, 216\ns_cselect_b32 s{S_G+2}, s{S_G+2}, 0")
    CB, RW = 68, 180
    for s_ in range(5):
        for jj in range(2):
            p(f"ds_read_b64_tr_b16 {v(RW+4*s_+2*jj,2)}, v203 offset:{IMG_W+4096*s_+512*jj}")
        for i in range(4):
            p(f"ds_read_b128 {v(CB+16*s_+4*i,4)}, v202 offset:{LDS_TABW+128*s_+16*i}")
    for s_ in range(5):
        for d in range(4):
            w = RW + 4 * s_ + d
            c = CB + 16 * s_ + 2 * d
            p(f"""v_lshlrev_b32 v206, 16, v{w}
            v_and_b32 v207, 0xffff0000, v{w}
            v_fmac_f32 v205, v{c+8}, v206
            v_mul_f32 v206, v{c}, v206
            v_fmac_f32 v205, v{c+9}, v207
            v_mul_f32 v207, v{c+1}, v207
            v_cvt_pk_bf16_f32 v{w}, v206, v207
            v_dot2_f32_bf16 v204, v{w}, s3, v204""")
        if s_ == OPT.get('f1pos', 2):
            f1_signal(p)
            p("s_mov_b32 s3, 0x3f803f80")
    for s_ in range(5):
        p(f"buffer_store_dwordx4 {v(RW+4*s_,4)}, v{V_L16}, s[{S_G}:{S_G+3}], s{S_WPO} offen sc1")
        if s_ < 4: p(f"s_add_u32 s{S_WPO}, s{S_WPO}, {108*1024}")
    p(f"""
    v_mov_b32 v206, v204
    v_mov_b32 v207, v205
    v_permlane32_swap_b32 v204, v206
    v_permlane32_swap_b32 v205, v207
    v_add_f32 v204, v204, v206
    v_add_f32 v205, v205, v207
    v_cvt_pk_bf16_f32 v204, v204, v205
    s_mov_b32 exec_hi, 0
    {';' if OPT.get('nopart') else ''}buffer_store_dword v204, v{V_L16}, s[{S_G}:{S_G+3}], s{S_WPX} offen sc1
    s_mov_b32 exec_hi, -1
    """)


V_X1 = 240
V_RM = 250
V_TOK, V_G4 = 251, 252
V_GB = 220

def shard_addr(p, vd, cbase):
    p(f"v_and_b32 v{vd}, 0x1f0, v{V_L16}\nv_lshlrev_b32 v{vd}, 4, v{vd}\nv_add_u32 v{vd}, {WS_CNT + cbase*256}, v{vd}")

def skinny(p, mode):
    wo = mode == 'wo'
    NKS, PER, WS_B, WS_A, modrow = (128, 32, WS_O, WS_WOF, 2) if wo else (54, 14, WS_HH, WS_WDF, 5)
    W = 8 if wo else 14
    RB, DB = 4, 3
    S_B, S_A, S_X, S_GG = 8, 12, 16, 20
    S_TA, S_TB = 24, 38
    S_C2 = 52
    V_XR, V_L16B, V_T2 = 80, 90, 92
    V_G = 96 if wo else V_GB
    AST = 40960
    def afr(j, i, n=4):
        if wo: return a(20 * j + 4 * i, n)
        return a(20 * j + 4 * i, n) if j < 11 else v(160 + 20 * (j - 11) + 4 * i, n)
    def bfr(j, i, n=4):
        return a(160 + 16 * j + 4 * i, n) if wo else v(96 + 16 * j + 4 * i, n)
    S_WA, S_WB, S_AO, S_BO = 32, 33, 34, 35
    def bloads(j):
        so = S_BO if wo else S_TB + j
        return [f"buffer_load_dwordx4 {bfr(j%RB,i)}, v{V_L16}, s[{S_B}:{S_B+3}], s{so} offen offset:{1024*i} sc1" for i in range(4)]
    def aloads(j):
        so = S_AO if wo else S_TA + j
        L = [f"buffer_load_dwordx4 {afr(j%W,i)}, v{V_L16}, s[{S_A}:{S_A+3}], s{so} offen offset:{1024*i} sc1" for i in range(4)]
        L.append(f"buffer_load_dwordx4 {afr(j%W,4)}, v{V_L16B}, s[{S_A}:{S_A+3}], s{so} offen sc1")
        return L
    def off_calc(j, sw, so, stride, srdn):
        L = []
        if j % W == 0 and j > 0:
            L += [f"s_add_u32 s{sw}, s{sw}, 8", f"s_cmp_eq_u32 s{sw}, 32", f"s_cselect_b32 s{srdn+2}, 0, s{srdn+2}"]
        return L + [f"s_add_u32 s{so}, s{sw}, s{S_TA+j%W}", f"s_and_b32 s{so}, s{so}, 31", f"s_mul_i32 s{so}, s{so}, {stride}"]
    aoff = lambda j: off_calc(j, S_WA, S_AO, AST, S_A) if wo else []
    boff = lambda j: off_calc(j, S_WB, S_BO, 4096, S_B) if wo else []
    if wo:
        lane_id(p, V_T2)
        tile_addr(p, V_T2, V_G4, V_TOK, V_RM)
        p(f"v_lshrrev_b32 v{V_T2}, 1, v{V_G4}\nv_lshlrev_b32 v{V_T2}, 6, v{V_T2}\nv_and_b32 v{V_T2+1}, 1, v{V_G4}\nv_lshl_add_u32 v{V_T2}, v{V_T2+1}, 4, v{V_T2}")
        for t in range(5):
            p(f"ds_read_b128 {v(V_GB+4*t,4)}, v{V_T2} offset:{LDS_TABG+128*t}")
            p(f"ds_read_b128 {v(V_G+4*t,4)}, v{V_T2} offset:{LDS_TABG+128*t+32}")
        for i in range(10):
            p(f"v_accvgpr_read_b32 v{V_XR+i}, a{A_XR+i}")
        p.sync(lgkm=0)
        shard_addr(p, V_T2, C_WOF)
        if OPT.get('st2'): stamp(p)
        poll(p, V_T2, V_T2 + 1, 32)
        if OPT.get('st2'): stamp(p)
        p(f"s_and_b32 s3, s2, 7\ns_lshl_b32 s3, s3, 2\ns_add_u32 s3, s3, s{S_WAVE}\ns_add_u32 s3, s3, {C_WP}")
        signal(p, 3, V_T2, V_T2 + 1)
    p(f"""
    v_add_u32 v{V_L16B}, 4096, v{V_L16}
    s_mul_i32 s{S_T0}, s{S_RB}, {NKS}
    s_mul_i32 s{S_T2}, s{S_WAVE}, {PER}
    s_add_u32 s{S_T0}, s{S_T0}, s{S_T2}
    s_lshl_b32 s{S_T0}, s{S_T0}, 12
    s_add_u32 s{S_T0}, s{S_T0}, {WS_B}
    s_lshl_b32 s{S_T1}, s{S_T2}, 3
    s_add_u32 s{S_T1}, s{S_T1}, s{S_CT}
    s_mul_i32 s{S_T1}, s{S_T1}, 5120
    s_add_u32 s{S_T1}, s{S_T1}, {WS_A}
    s_sub_u32 s{S_T2}, {NKS}, s{S_T2}
    s_min_u32 s{S_T2}, s{S_T2}, {PER}
    """)
    mksrd(p, S_B, P_WS, f"s{S_T0}", 0)
    mksrd(p, S_A, P_WS, f"s{S_T1}", 0)
    p(f"""
    s_lshl_b32 s{S_B+2}, s{S_T2}, 12
    s_mul_i32 s{S_A+2}, s{S_T2}, {AST}
    s_sub_u32 s{S_A+2}, s{S_A+2}, {AST-5120}
    s_add_u32 s{S_T0}, s{S_CT}, s{S_RB}
    s_and_b32 s{S_T0}, s{S_T0}, 3
    """)
    if not OPT.get('rot'): p(f"s_mov_b32 s{S_T0}, 7")
    NA0 = 7 if wo else OPT.get('na0', 8)
    for j in range(W):
        p(f"s_cmp_eq_u32 s{S_T0}, {j & 3}")
        if wo:
            p(f"s_cselect_b32 s{S_TA+j}, {j + 8}, {j}")
        else:
            p(f"s_cselect_b32 s{S_T1}, {j + 4 if j + 4 < 14 else j & 3}, {j}\ns_lshl_b32 s{S_TB+j}, s{S_T1}, 12\ns_mul_i32 s{S_TA+j}, s{S_T1}, {AST}")
    if wo:
        p(f"s_mov_b32 s{S_WA}, 0\ns_mov_b32 s{S_WB}, 0")
    if not wo:
        mksrd(p, S_X, P_OUT, None, SZ_X)
    for j in range(NA0):
        p.extend(aoff(j) + aloads(j))
    for i in range(80):
        p(f"v_mov_b32 v{i}, 0")
    if OPT.get('st2'): stamp(p)
    if wo:
        p(f"""s_lshl_b32 s{S_T0}, s{S_RB}, 2
        s_add_u32 s{S_T0}, s{S_T0}, s{S_WAVE}
        s_lshl_b32 s{S_T0}, s{S_T0}, 8
        s_add_u32 s{S_T0}, s{S_T0}, {WS_CNT + C_F1*256}
        v_mov_b32 v{V_T2}, s{S_T0}""")
        poll(p, V_T2, V_T2 + 1, 8)
    else:
        p(f"""s_lshl_b32 s{S_T0}, s{S_RB}, 9
        s_add_u32 s{S_T0}, s{S_T0}, {WS_CNT + C_F3*256}
        v_and_b32 v{V_T2}, 1, v{V_G4}
        v_lshlrev_b32 v{V_T2}, 8, v{V_T2}
        v_add_u32 v{V_T2}, s{S_T0}, v{V_T2}""")
        poll(p, V_T2, V_T2 + 1, 16)
    stamp(p)
    for j in range(DB):
        p.extend(boff(j) + bloads(j))
    def step(t, f):
        M = [f"v_mfma_f32_16x16x32_bf16 {v(4*(5*rt+ct),4)}, {afr(t%W,ct)}, {bfr(t%RB,rt)}, {v(4*(5*rt+ct),4)}"
             for rt in range(4) for ct in range(5)]
        p.sync(regs=[afr(t % W, 0, 20), bfr(t % RB, 0, 16)])
        p.extend(pack(M, f, []))
    if wo:
        p(f"s_mov_b32 s{S_C2}, 0")
        p.begin_loop()
        p(f"{NM}_{mode}_loop:")
        for t in range(8):
            f = {}
            put(f, bloads(t + DB) + aloads(t + 7), [1, 3, 5, 7, 9, 11, 13, 15, 17])
            put(f, boff(t + DB), [0] * len(boff(t + DB)))
            put(f, aoff(t + 7), [2, 4, 4, 6, 6, 8][-len(aoff(t + 7)):])
            if t == 7: put(f, [f"s_add_u32 s{S_C2}, s{S_C2}, 1", f"s_cmp_lt_u32 s{S_C2}, 4", f"s_cbranch_scc1 {NM}_{mode}_loop"], [18, 18, 19])
            step(t, f)
        p.end_loop(4)
    else:
        for t in range(14):
            f = {}
            L = (bloads(t + DB) if t + DB < 14 else []) + (aloads(t + NA0) if t + NA0 < 14 else [])
            put(f, L, [1 + 2 * i for i in range(len(L))])
            step(t, f)
    stamp(p)
    p(f"""
    s_mul_i32 s{S_T0}, s{S_WAVE}, 20480
    v_add_u32 v{V_T2}, s{S_T0}, v{V_L16}
    s_mul_i32 s{S_T0}, s{S_WAVE}, 5120
    v_add_u32 v{V_T2+1}, s{S_T0}, v{V_L16}
    v_add_u32 v{V_T2+2}, {3*20480}, v{V_T2+1}
    s_barrier
    """)
    for rt in range(4):
        for ct in range(5):
            p(f"ds_write_b128 v{V_T2}, {v(4*(5*rt+ct),4)} offset:{(5*rt+ct)*1024}")
    p.sync(lgkm=0)
    p("s_barrier")
    for w in range(4):
        for ct in range(5):
            c = 4 * (5 * w + ct)
            p(f"ds_read_b128 {v(c,4)}, v{V_T2+1} offset:{w*20480+ct*1024}" if w < 3 else f"ds_read_b128 {v(c,4)}, v{V_T2+2} offset:{ct*1024}")
    for i in range(20): p(f"v_add_f32 v{i}, v{i}, v{20+i}")
    for i in range(20): p(f"v_add_f32 v{40+i}, v{40+i}, v{60+i}")
    for i in range(20): p(f"v_add_f32 v{i}, v{i}, v{40+i}")
    XR = V_XR if wo else V_X1
    for d in range(10):
        x0, x1 = 2 * d, 2 * d + 1
        p(f"""v_cvt_pk_bf16_f32 v{x0}, v{x0}, v{x1}
        v_and_b32 v{x1}, 0xffff0000, v{x0}
        v_lshlrev_b32 v{x0}, 16, v{x0}
        v_mul_f32 v{x0}, v{V_G+x0}, v{x0}
        v_mul_f32 v{x1}, v{V_G+x1}, v{x1}
        v_cvt_pk_bf16_f32 v{x0}, v{x0}, v{x1}
        v_and_b32 v{x1}, 0xffff0000, v{x0}
        v_lshlrev_b32 v{x0}, 16, v{x0}
        v_lshlrev_b32 v40, 16, v{XR+d}
        v_and_b32 v41, 0xffff0000, v{XR+d}
        v_add_f32 v{x0}, v40, v{x0}
        v_add_f32 v{x1}, v41, v{x1}
        v_cvt_pk_bf16_f32 v{20+d}, v{x0}, v{x1}""")
    if wo:
        for d in range(10):
            p(f"v_mov_b32 v{V_X1+d}, v{20+d}")
    for t in (0, 2):
        p(f"v_permlane16_swap_b32 v{20+2*t}, v{22+2*t}\nv_permlane16_swap_b32 v{21+2*t}, v{23+2*t}")
    if not wo:
        p(f"v_and_b32 v43, 1, v{V_G4}\nv_mul_u32_u24 v43, 24, v43\nv_add_u32 v42, v{V_RM}, v43")
        p(f"buffer_store_dwordx4 v[20:23], v42, s[{S_X}:{S_X+3}], 0 offen")
        p(f"buffer_store_dwordx4 v[24:27], v42, s[{S_X}:{S_X+3}], 0 offen offset:64")
        p(f"buffer_store_dwordx2 v[28:29], v{V_RM}, s[{S_X}:{S_X+3}], 0 offen offset:128")
        return
    S_O2, S_O3 = 24, 28
    mksrd(p, S_O2, P_WS, WS_X1F, 64 * 40 * 1024)
    mksrd(p, S_O3, P_WS, WS_STATS, 8 * 2048 * 8)
    p(f"""
    v_lshrrev_b32 v42, 5, v{V_TOK}
    v_mul_u32_u24 v42, 40960, v42
    v_and_b32 v43, 31, v{V_TOK}
    v_lshl_add_u32 v42, v43, 4, v42
    v_lshrrev_b32 v43, 1, v{V_G4}
    v_lshl_add_u32 v42, v43, 9, v42
    v_and_b32 v43, 1, v{V_G4}
    v_lshl_add_u32 v44, v43, 10, v42
    v_lshl_add_u32 v42, v43, 3, v42
    s_mul_i32 s{S_T0}, s{S_CT}, 5120
    s_add_u32 s{S_T1}, s{S_T0}, 4096
    buffer_store_dwordx4 v[20:23], v44, s[{S_O2}:{S_O2+3}], s{S_T0} offen sc1
    buffer_store_dwordx4 v[24:27], v44, s[{S_O2}:{S_O2+3}], s{S_T0} offen offset:2048 sc1
    buffer_store_dwordx2 v[28:29], v42, s[{S_O2}:{S_O2+3}], s{S_T1} offen sc1
    """)
    for d in range(10):
        p(f"v_lshlrev_b32 v{2*d}, 16, v{V_X1+d}\nv_and_b32 v{2*d+1}, 0xffff0000, v{V_X1+d}")
    def red4(r, t):
        p(f"""v_mov_b32 v{t}, v{r}
        v_permlane16_swap_b32 v{r}, v{t}
        v_add_f32 v{r}, v{r}, v{t}
        v_mov_b32 v{t}, v{r}
        v_permlane32_swap_b32 v{r}, v{t}
        v_add_f32 v{r}, v{r}, v{t}""")
    for c in range(4): p(f"v_add_f32 v{46+c}, v{c}, v{4+c}")
    for k in (8, 12, 16):
        for c in range(4): p(f"v_add_f32 v{46+c}, v{46+c}, v{k+c}")
    p("v_add_f32 v46, v46, v47\nv_add_f32 v48, v48, v49\nv_add_f32 v46, v46, v48")
    red4(46, 48)
    p(f"v_mul_f32 v48, {fhex(1.0/80)}, v46")
    for e in range(20): p(f"v_sub_f32 v{e}, v{e}, v48")
    for e in range(20):
        p(f"v_mul_f32 v{50+e}, v{e}, v{e}" if e < 4 else f"v_fmac_f32 v{50+e%4}, v{e}, v{e}")
    p("v_add_f32 v50, v50, v51\nv_add_f32 v52, v52, v53\nv_add_f32 v47, v50, v52")
    red4(47, 48)
    p(f"""
    v_lshlrev_b32 v48, 3, v{V_TOK}
    s_lshl_b32 s{S_T0}, s{S_CT}, 14
    s_mov_b64 exec, 0xffff
    buffer_store_dwordx2 v[46:47], v48, s[{S_O3}:{S_O3+3}], s{S_T0} offen sc1
    s_mov_b64 exec, -1
    s_lshl_b32 s3, s{S_RB}, 1
    s_lshr_b32 s{S_T0}, s{S_WAVE}, 1
    s_add_u32 s3, s3, s{S_T0}
    s_add_u32 s3, s3, {C_F2}
    s_waitcnt vmcnt(0)
    """)
    signal(p, 3, 0, 1)
    stamp(p)


K3_SLOT, K3_NS = 28672, 5
def phase3(p):
    S_A, S_B, S_STT, S_H = 8, 12, 16, 20
    S_R3, S_CG, S_AO, S_BO, S_C3, S_W3, S_RD, S_DL, S_LIM, S_AO2, S_TL, S_NEG = range(24, 36)
    V_RD, V_LN, V_ST, V_E, T = 113, 114, 116, 132, 136
    A_B, A_A = 0, 32
    def dma_group():
        L = [f"s_mov_b32 m0, s{S_W3}"]
        L += [f"buffer_load_dwordx4 v{V_L16}, s[{S_A}:{S_A+3}], s{S_AO} offen offset:{1024*i} sc1 lds" for i in range(4)]
        L += [f"s_add_u32 m0, s{S_W3}, 4096", f"s_add_u32 s{S_AO2}, s{S_AO}, 4096"]
        L += [f"buffer_load_dwordx4 v{V_L16}, s[{S_A}:{S_A+3}], s{S_AO2} offen offset:{1024*i} sc1 lds" for i in range(3)]
        L += [f"s_add_u32 s{S_AO}, s{S_AO}, {4*108*1024}", f"s_add_u32 s{S_W3}, s{S_W3}, {K3_SLOT}",
              f"s_cmp_ge_u32 s{S_W3}, s{S_LIM}", f"s_cselect_b32 s{S_T0}, {K3_NS*K3_SLOT}, 0", f"s_sub_u32 s{S_W3}, s{S_W3}, s{S_T0}"]
        return L
    def rd_adv():
        return [f"s_add_u32 s{S_RD}, s{S_RD}, 1", f"s_cmp_eq_u32 s{S_RD}, {K3_NS}",
                f"s_cselect_b32 s{S_DL}, s{S_NEG}, {K3_SLOT}", f"s_cselect_b32 s{S_RD}, 0, s{S_RD}"]
    def ard(buf, ks):
        return [f"ds_read_b128 {a(A_A+28*buf+4*i,4)}, v{V_RD} offset:{ks*7168+i*1024}" for i in range(7)]
    def b_load(r, imm):
        return f"buffer_load_dwordx4 {a(A_B+4*r,4)}, v{V_L16}, s[{S_B}:{S_B+3}], s{S_BO} offen offset:{imm} sc1"
    lane_id(p, V_LN)
    p(f"""
    v_mov_b32 v{V_RD}, v{V_L16}
    s_and_b32 s{S_R3}, s2, 1
    s_lshl_b32 s{S_R3}, s{S_R3}, 3
    s_lshr_b32 s{S_T0}, s2, 5
    s_add_u32 s{S_R3}, s{S_R3}, s{S_T0}
    s_bfe_u32 s{S_CG}, s2, 0x20001
    s_lshl_b32 s{S_CG}, s{S_CG}, 2
    s_bfe_u32 s{S_T0}, s2, 0x20003
    s_add_u32 s{S_CG}, s{S_CG}, s{S_T0}
    s_mul_i32 s{S_AO}, s{S_WAVE}, {108*1024}
    s_mul_i32 s{S_W3}, s{S_WAVE}, 7168
    s_mul_i32 s{S_CG}, s{S_CG}, 27
    s_lshr_b32 s{S_CG}, s{S_CG}, 2
    s_add_u32 s{S_LIM}, s{S_W3}, {K3_NS*K3_SLOT}
    s_mov_b32 s{S_RD}, 0
    s_mov_b32 s{S_BO}, 0
    s_lshl_b32 s{S_T0}, s{S_CG}, 10
    s_add_u32 s{S_T0}, s{S_T0}, {WS_WP}
    s_lshl_b32 s{S_TL}, s{S_R3}, 2
    s_add_u32 s{S_TL}, s{S_TL}, s{S_WAVE}
    s_mul_i32 s{S_T1}, s{S_TL}, 40960
    s_add_u32 s{S_T1}, s{S_T1}, {WS_X1F}
    s_mov_b32 s{S_NEG}, {(-(K3_NS-1)*K3_SLOT) & 0xffffffff}
    """)
    mksrd(p, S_A, P_WS, f"s{S_T0}", 40 * 108 * 1024 + 7168)
    mksrd(p, S_B, P_WS, f"s{S_T1}", 40960)
    shard_addr(p, T, C_WP)
    poll(p, T, T + 1, 32)
    p("s_barrier")
    for g in range(4):
        p.extend(dma_group())
    for i in range(112):
        p(f"v_mov_b32 v{i}, 0")
    mksrd(p, S_STT, P_WS, WS_STATS, 8 * 2048 * 8)
    p(f"""
    s_lshr_b32 s{S_T0}, s{S_TL}, 1
    s_mul_i32 s{S_T0}, s{S_T0}, {54*4096}
    s_and_b32 s{S_T1}, s{S_TL}, 1
    s_lshl_b32 s{S_T1}, s{S_T1}, 11
    s_add_u32 s{S_T0}, s{S_T0}, s{S_T1}
    s_add_u32 s{S_T0}, s{S_T0}, {WS_HH}
    """)
    mksrd(p, S_H, P_WS, f"s{S_T0}", 54 * 4096 - 2048)
    p(f"""s_lshl_b32 s{S_T0}, s{S_TL}, 8
    s_add_u32 s{S_T0}, s{S_T0}, {WS_CNT + C_F2*256}
    v_mov_b32 v{T}, s{S_T0}""")
    poll(p, T, T + 1, 16)
    stamp(p)
    for t in range(7):
        p(b_load(t, (t % 4) * 1024))
        if t % 4 == 3: p(f"s_add_u32 s{S_BO}, s{S_BO}, 4096")
    p(f"v_and_b32 v{T}, 31, v{V_LN}\nv_lshlrev_b32 v{T}, 3, v{T}\ns_lshl_b32 s{S_T0}, s{S_TL}, 8")
    for i in range(8):
        p(f"buffer_load_dwordx2 {v(V_ST+2*i,2)}, v{T}, s[{S_STT}:{S_STT+3}], s{S_T0} offen sc1")
        if i < 7: p(f"s_add_u32 s{S_T0}, s{S_T0}, 16384")
    p("s_barrier")
    p.extend(ard(0, 0))
    p(f"s_mov_b32 s{S_C3}, 0")
    p.sync(regs=[a(A_B, 4)], lgkm=0)
    p.begin_loop()
    p(f"{NM}_p3_loop:")
    for t in range(8):
        M = [f"v_mfma_f32_32x32x16_bf16 {v(16*i,16)}, {a(A_A+28*(t%2)+4*i,4)}, {a(A_B+4*t,4)}, {v(16*i,16)}" for i in range(7)]
        f = {}
        if t % 4 == 3:
            put(f, ["s_barrier", f"v_add_u32 v{V_RD}, s{S_DL}, v{V_RD}"], [0, 0])
            put(f, ard((t + 1) % 2, 0), [1, 1, 2, 2, 3, 3, 4])
        else:
            put(f, ard((t + 1) % 2, (t + 1) % 4), [0, 0, 1, 1, 2, 2, 3])
        put(f, [b_load((t + 7) % 8, ((t + 7) % 4) * 1024)], [4])
        if (t + 7) % 4 == 3: put(f, [f"s_add_u32 s{S_BO}, s{S_BO}, 4096"], [5])
        if t % 4 == 0:
            dg = dma_group()
            put(f, dg[:4], [2, 3, 5, 6])
        if t % 4 == 1:
            put(f, dg[4:9], [3, 3, 4, 5, 6])
        if t % 4 == 2:
            put(f, dg[9:], [3, 3, 4, 5, 5, 5])
            put(f, rd_adv(), [0, 1, 1, 1])
        sy = mksync(regs=[a(A_B + 4 * ((t + 1) % 8), 4)], dma_keep=21 if t % 4 == 2 else None, lgkm=0)
        if t == 7:
            put(f, [f"s_add_u32 s{S_C3}, s{S_C3}, 1", f"s_cmp_lt_u32 s{S_C3}, 5", sy, f"s_cbranch_scc1 {NM}_p3_loop"], [5, 5, 6, 6])
        else:
            put(f, [sy], [6])
        order_gap(f)
        p.extend(pack(M, f, []))
    p.end_loop(5)
    stamp(p)
    p(f"v_add_f32 v{T}, v{V_ST}, v{V_ST+2}\nv_add_f32 v{T+1}, v{V_ST+1}, v{V_ST+3}")
    for i in range(2, 8):
        p(f"v_add_f32 v{T}, v{T}, v{V_ST+2*i}\nv_add_f32 v{T+1}, v{T+1}, v{V_ST+2*i+1}")
    p(f"v_mul_f32 v{T}, {fhex(1.0/640)}, v{T}\ns_mov_b32 s{S_T0}, {fhex(1.0/80)}\nv_mov_b32 v{T+2}, 0")
    for i in range(8):
        p(f"v_fma_f32 v{T+3}, v{V_ST+2*i}, s{S_T0}, -v{T}\nv_fmac_f32 v{T+2}, v{T+3}, v{T+3}")
    p(f"v_fmac_f32 v{T+1}, {fhex(80.0)}, v{T+2}\nv_mul_f32 v{T+1}, {fhex(1.0/640)}, v{T+1}")
    round_bf16(p, T + 1, T + 1)
    p(f"v_add_f32 v{T+1}, {fhex(1e-5)}, v{T+1}")
    round_bf16(p, T + 1, T + 1)
    p(f"""v_sqrt_f32 v{T+1}, v{T+1}
    v_sub_f32 v{T}, 0, v{T}
    v_cvt_pk_bf16_f32 v{V_E}, v{T}, v{T+1}
    v_mov_b32 v{V_E+1}, v{V_E}
    v_mov_b32 v{V_E+2}, v{V_E}
    v_mov_b32 v{V_E+3}, v{V_E}
    v_and_b32 v{T+1}, 0xffff0000, v{V_E}
    v_rcp_f32 v{T+1}, v{T+1}""")
    for i in range(7):
        p(f"v_mfma_f32_32x32x16_bf16 {v(16*i,16)}, {a(A_A+4*i,4)}, {v(V_E,4)}, {v(16*i,16)}")
    p(f"""v_mul_f32 v{T+1}, v{T+1}, v{T+1}
    v_and_b32 v{T+2}, 15, v{V_LN}
    v_lshlrev_b32 v{T+2}, 4, v{T+2}
    v_bfe_u32 v{T+3}, v{V_LN}, 4, 1
    v_lshl_add_u32 v{T+2}, v{T+3}, 10, v{T+2}
    v_lshrrev_b32 v{T+3}, 5, v{V_LN}
    v_lshl_add_u32 v{T+2}, v{T+3}, 8, v{T+2}""")
    for i in range(7):
        b = 16 * i
        p(f"""s_add_u32 s{S_T0}, s{S_CG}, {i}
        s_lshr_b32 s{S_T1}, s{S_T0}, 1
        s_lshl_b32 s{S_T1}, s{S_T1}, 12
        s_and_b32 s{S_T0}, s{S_T0}, 1
        s_lshl_b32 s{S_T0}, s{S_T0}, 9
        s_add_u32 s{S_T0}, s{S_T0}, s{S_T1}""")
        for r in range(8): p(f"v_mul_f32 v{b+r}, v{T+1}, v{b+r}")
        for r in range(8): p(f"v_mul_f32 v{b+r}, v{b+r}, v{b+8+r}")
        for d in range(4): p(f"v_cvt_pk_bf16_f32 v{b+8+d}, v{b+2*d}, v{b+2*d+1}")
        p(f"buffer_store_dwordx4 {v(b+8,4)}, v{T+2}, s[{S_H}:{S_H+3}], s{S_T0} offen sc1")
    p(f"s_add_u32 s3, s{S_TL}, {C_F3}\ns_waitcnt vmcnt(0)")
    signal(p, 3, 0, 1)
    stamp(p)


def gen_mega(opt=None):
    global nstamp, npoll
    nstamp = 0; npoll = 0
    OPT.clear(); OPT.update(opt or {})
    p = Prog()
    outl = []
    p(f"s_cmp_ge_u32 s2, 256\ns_cbranch_scc1 {NM}_end")
    stamp(p)
    phase0(p)
    phase1(p, outl)
    skinny(p, 'wo')
    phase3(p)
    skinny(p, 'down')
    if OPT.get('stamps'):
        p("s_waitcnt vmcnt(0)")
        p(f"{TIMER()} s[{S_ST}:{S_ST+1}]\ns_waitcnt lgkmcnt(0)")
        p(f"s_lshl_b32 s3, s2, 2\ns_add_u32 s3, s3, s{S_WAVE}\ns_lshl_b32 s3, s3, 7\ns_add_u32 s3, s3, {WS_STAMP}\nv_mov_b32 v0, s3")
        p(f"v_accvgpr_write_b32 a{224+nstamp}, s{S_ST}")
        for i in range(8):
            p(f"global_store_dwordx4 v0, a[{224+4*i}:{227+4*i}], s[{P_WS}:{P_WS+1}] offset:{16*i}")
    if OPT.get('dbgout'):
        p(f"s_cmp_lg_u32 s2, 77\ns_cbranch_scc1 {NM}_end\ns_cmp_lg_u32 s{S_WAVE}, 0\ns_cbranch_scc1 {NM}_end")
        p("v_accvgpr_read_b32 v1, a224\nv_mov_b32 v0, 0")
        sel = [1, 2, 3, 4, 5, 6, 8, 9, 10, 11, 12, 13, 15, 17]
        for n_, k_ in enumerate(sel):
            w_ = n_ + 1 if n_ < 7 else n_ + 2
            p(f"v_accvgpr_read_b32 v2, a{224+k_}\nv_sub_u32 v2, v2, v1\nglobal_store_dword v0, v2, s[{P_DBG}:{P_DBG+1}] offset:{4*w_}")
    p(f"{NM}_end:\ns_endpgm")
    p.finalize(verbose=OPT.get('nopverbose'))
    for q in outl:
        p.items += q.items
    p(f'{NM}_codeend:')
    return p


NAME = 'adaLN_cond__sliding_block_cached__glu_gated_bilinear__prompt'
def build_file(out, opt=None):
    p = gen_mega(opt)
    head = open('cdna_kernels/' + NAME + '.s.ref').read().split('; Override launch')[0]
    kn = NAME + '_kernel'
    c, d = kernel_text(kn, p, force_vgpr=512)
    if (opt or {}).get('list'):
        launch = f"; @launch kernel={kn} grid=(256,1,1) block=(256,1,1) lds={LDS_TOTAL}\n"
    else:
        launch = f"; @launch grid=(256,1,1) block=(256,1,1) lds={LDS_TOTAL}\n"
    open(out, 'w').write(head + launch + '.amdgcn_target "amdgcn-amd-amdhsa--gfx950"\n' + c + d)
    return p

if __name__ == '__main__':
    opt = {k: 1 for k in sys.argv[2:]}
    p = build_file(sys.argv[1], opt)
    print(p.stats(), p.maxregs(), 'stamps', nstamp)
```

```python
import re

def v(i, n=1):
    return f"v{i}" if n == 1 else f"v[{i}:{i+n-1}]"
def a(i, n=1):
    return f"a{i}" if n == 1 else f"a[{i}:{i+n-1}]"
def s(i, n=1):
    return f"s{i}" if n == 1 else f"s[{i}:{i+n-1}]"

_REG = re.compile(r'^(-|\|)?(abs\()?([vas])(\d+|\[(\d+):(\d+)\])\)?\|?$')

def parse_reg(tok):
    tok = tok.strip()
    if tok in ('vcc', 'exec', 'm0', 'scc'):
        return [tok]
    if tok in ('vcc_lo', 'vcc_hi'):
        return ['vcc']
    if tok in ('exec_lo', 'exec_hi'):
        return ['exec']
    m = _REG.match(tok)
    if not m:
        return []
    cls = m.group(3)
    if m.group(5) is not None:
        return [(cls, i) for i in range(int(m.group(5)), int(m.group(6)) + 1)]
    return [(cls, int(m.group(4)))]

TRANS = ('v_exp_f32', 'v_log_f32', 'v_rcp_f32', 'v_rsq_f32', 'v_sqrt_f32', 'v_sin_f32', 'v_cos_f32',
         'v_rcp_iflag_f32')

class Ins:
    __slots__ = ('text', 'op', 'dst', 'src', 'kind', 'passes', 'srcA', 'srcB', 'srcC', 'tag',
                 'need', 'wide', 'dpp', 'comment', 'pos', 'nops', 'cost', 'cond')

    def __init__(self, text, tag=None, need=None):
        self.text = text
        self.tag = tag
        self.need = need
        self.passes = 0
        self.cond = None
        self.srcA = self.srcB = self.srcC = ()
        self.wide = False
        self.dpp = False
        body = text.split(';')[0].strip()
        parts = body.split(None, 1)
        self.op = op = parts[0]
        ops = []
        if len(parts) > 1:
            depth = 0; cur = ''
            for ch in parts[1]:
                if ch in '[(':
                    depth += 1
                if ch in '])':
                    depth -= 1
                if ch == ',' and depth == 0:
                    ops.append(cur.strip()); cur = ''
                else:
                    cur += ch
            ops.append(cur.strip())
        mods = ''
        if ops:
            last = ops[-1].split(None, 1)
            if len(last) > 1:
                ops[-1] = last[0]; mods = last[1]
        R = [parse_reg(o) for o in ops]
        flat = lambda L: [r for x in L for r in x]
        dst = []; src = []
        if op.endswith(':') or op.startswith('.'):
            kind = 'label'
        elif op.startswith('v_mfma'):
            kind = 'mfma'
            dst = R[0]; self.srcA = tuple(R[1]); self.srcB = tuple(R[2]); self.srcC = tuple(R[3])
            src = R[1] + R[2] + R[3]
            self.passes = 8 if '32x32x16' in op else 4
            assert '32x32x16' in op or '16x16x32' in op
        elif op.startswith('buffer_load') or op.startswith('global_load') :
            if ' lds' in (' ' + mods) or 'load_lds' in op:
                kind = 'dma'; src = flat(R) + ['m0']
            else:
                kind = 'vload'; dst = R[0]; src = flat(R[1:])
        elif op.startswith('buffer_store') or op.startswith('global_store'):
            kind = 'vstore'; src = flat(R)
            self.wide = 'x3' in op or 'x4' in op
            self.srcA = tuple(R[0] if op.startswith('buffer') else R[1])
        elif op.startswith('global_atomic') or op.startswith('buffer_atomic'):
            if 'sc0' in mods and op.startswith('global'):
                kind = 'vload'; dst = R[0]; src = flat(R[1:])
            elif 'sc0' in mods:
                kind = 'vload'; dst = R[0]; src = flat(R)
            else:
                kind = 'vstore'; src = flat(R)
        elif op in ('buffer_wbl2', 'buffer_inv'):
            kind = 'vstore'
        elif op.startswith('ds_read') or op.startswith('ds_bpermute') or op.startswith('ds_swizzle') or op.startswith('ds_permute'):
            kind = 'dsread'; dst = R[0]; src = flat(R[1:])
        elif op.startswith('ds_write') or op.startswith('ds_add') or op.startswith('ds_max') or op.startswith('ds_or'):
            kind = 'dswrite'; src = flat(R)
        elif op.startswith('s_load') or op.startswith('s_memtime') or op.startswith('s_memrealtime'):
            kind = 'smem'; dst = R[0]; src = flat(R[1:])
        elif op == 's_waitcnt':
            kind = 'wait'
        elif op == 'waittag':
            kind = 'waittag'
        elif op == 's_nop':
            kind = 'nop'
        elif op == 's_barrier':
            kind = 'barrier'
        elif op.startswith('s_cbranch') or op == 's_branch' or op == 's_endpgm':
            kind = 'branch'
            if 'vcc' in op: src = ['vcc']
            if 'exec' in op: src = ['exec']
            if 'scc' in op: src = ['scc']
        elif op.startswith('s_cmp') or op.startswith('s_bitcmp'):
            kind = 'salu'; dst = ['scc']; src = flat(R)
        elif op in ('s_setprio', 's_sleep', 's_setreg_imm32_b32'):
            kind = 'salu'
        elif op.startswith('s_'):
            kind = 'salu'; dst = R[0] + ['scc']; src = flat(R[1:])
            if 'saveexec' in op:
                dst = dst + ['exec']; src = src + ['exec']
            if op.startswith('s_addc') or op.startswith('s_cselect') or op.startswith('s_subb'):
                src = src + ['scc']
            if op.startswith('s_addk') or op.startswith('s_mulk'):
                src = src + R[0]
            if op.startswith('s_mov') or op.startswith('s_getreg') or op.startswith('s_mul_') or op.startswith('s_cselect'):
                dst = R[0]
        elif op.startswith('v_'):
            kind = 'trans' if op.replace('_e32', '').replace('_e64', '') in TRANS else 'valu'
            if op.startswith('v_cmp'):
                dst = R[0]; src = flat(R[1:])
            elif '_co_' in op:
                dst = R[0] + R[1]; src = flat(R[2:])
            elif op.startswith('v_permlane') and 'swap' in op:
                dst = R[0] + R[1]; src = R[0] + R[1]
            elif op.startswith('v_div_scale'):
                dst = R[0] + R[1]; src = flat(R[2:])
            else:
                dst = R[0]; src = flat(R[1:])
                if op.startswith('v_fmac') or op.startswith('v_dot2c') or op.startswith('v_writelane') or op.startswith('v_mac'):
                    src = src + R[0]
                if op.startswith('v_div_fmas'):
                    src = src + ['vcc']
                if op.startswith('v_cndmask') and len(ops) == 3:
                    src = src + ['vcc']
            if '_dpp' in op or 'row_' in mods or 'quad_perm' in mods:
                self.dpp = True
                src = src + R[0]
        else:
            raise ValueError('unknown instruction: ' + text)
        self.kind = kind
        self.dst = tuple(dst)
        self.src = tuple(src)

    def states(self):
        if self.kind in ('label', 'waittag'):
            return 0
        if self.kind == 'nop':
            return int(self.text.split()[1], 0) + 1
        return 1


def mksync(regs=(), dma_keep=None, lgkm=None):
    rs = []
    for r in regs:
        rs += parse_reg(r)
    return Ins('waittag', need=dict(regs=rs, dma_keep=dma_keep, lgkm=lgkm))


class Loop:
    def __init__(self, body, n):
        self.body = body
        self.n = n


class Prog:
    def __init__(self):
        self.items = []
        self.cur = self.items
        self.cond = None
        self._nc = 0

    def begin_cond(self):
        self._nc += 1
        self.cond = self._nc

    def end_cond(self):
        self.cond = None

    def __call__(self, text, tag=None):
        for line in text.split('\n'):
            line = line.strip()
            if not line or line.startswith(';'):
                continue
            ins = Ins(line, tag=tag); ins.cond = self.cond
            self.cur.append(ins)

    def add(self, ins):
        if isinstance(ins, str):
            self(ins)
        else:
            ins.cond = self.cond
            self.cur.append(ins)

    def extend(self, lst):
        for i in lst:
            self.add(i)

    def sync(self, regs=(), dma_keep=None, lgkm=None):
        self.add(mksync(regs, dma_keep, lgkm))

    def begin_loop(self):
        self.cur = []

    def end_loop(self, n):
        self.items.append(Loop(self.cur, n))
        self.cur = self.items

    def _trace(self, maxrep=4):
        for it in self.items:
            if isinstance(it, Loop):
                for rep in range(min(it.n, maxrep)):
                    for ins in it.body:
                        yield ins
            else:
                yield it

    def _flat(self):
        for it in self.items:
            if isinstance(it, Loop):
                yield from it.body
            else:
                yield it

    def resolve_waits(self):
        waits = {}
        def simulate(existing, record):
            vmq = []
            lgq = []
            def younger(q, i, c):
                return sum(1 for e in q[i + 1:] if e[2] is None or e[2] == c)
            def apply(q, n, c):
                q[:] = [e for i, e in enumerate(q) if not (younger(q, i, c) >= n and (c is None or e[2] == c))]
            for ins in self._trace():
                vm_need = None; lg_need = None
                c = ins.cond
                if ins.kind == 'wait':
                    m = re.search(r'vmcnt\((\d+)\)', ins.text)
                    if m: apply(vmq, int(m.group(1)), c)
                    m = re.search(r'lgkmcnt\((\d+)\)', ins.text)
                    if m: apply(lgq, int(m.group(1)), c)
                    continue
                touched = set(ins.src) | set(ins.dst)
                if ins.kind == 'waittag':
                    touched = set(ins.need['regs'])
                    keep = ins.need['dma_keep']
                    if keep is not None:
                        idx = [i for i, e in enumerate(vmq) if e[1] == 'dma']
                        if len(idx) > keep:
                            vm_need = younger(vmq, idx[len(idx) - keep - 1], c)
                    if ins.need['lgkm'] is not None and len(lgq) > ins.need['lgkm']:
                        lg_need = ins.need['lgkm']
                vtouched = set(ins.src) if ins.kind == 'vload' else touched
                for i, e in enumerate(vmq):
                    if e[0] & vtouched:
                        n = younger(vmq, i, c)
                        vm_need = n if vm_need is None else min(vm_need, n)
                for i, e in enumerate(lgq):
                    if e[0] & touched:
                        n = younger(lgq, i, c)
                        if any(x[1] for x in lgq):
                            n = 0
                        lg_need = n if lg_need is None else min(lg_need, n)
                if vm_need is not None: vm_need = min(vm_need, 63)
                if lg_need is not None: lg_need = min(lg_need, 15)
                if record is not None and (vm_need is not None or lg_need is not None):
                    o = record.get(id(ins), (None, None))
                    mn = lambda x, y: y if x is None else (x if y is None else min(x, y))
                    record[id(ins)] = (mn(o[0], vm_need), mn(o[1], lg_need))
                w = existing.get(id(ins)) if existing is not None else (vm_need, lg_need)
                if existing is not None:
                    ew = w or (None, None)
                    if vm_need is not None:
                        assert ew[0] is not None and ew[0] <= vm_need, ('vm wait insufficient', ins.text)
                    if lg_need is not None:
                        assert ew[1] is not None and ew[1] <= lg_need, ('lgkm wait insufficient', ins.text)
                if w:
                    if w[0] is not None: apply(vmq, w[0], c)
                    if w[1] is not None: apply(lgq, w[1], c)
                if ins.kind in ('vload', 'vstore', 'dma'):
                    vmq.append((set(ins.dst), 'dma' if ins.kind == 'dma' else ins.tag, c))
                    assert len(vmq) <= 63, 'more than 63 VMEM ops outstanding at ' + ins.text
                elif ins.kind in ('dsread', 'dswrite'):
                    lgq.append((set(ins.dst), False, c))
                elif ins.kind == 'smem':
                    lgq.append((set(ins.dst), True, c))
        simulate(None, waits)
        for _ in range(3):
            w2 = {}
            simulate(waits, w2)
            neww = {}
            for k, val in waits.items():
                if k in w2:
                    neww[k] = (val[0] if w2[k][0] is not None else None, val[1] if w2[k][1] is not None else None)
            if neww == waits:
                break
            waits = neww
        simulate(waits, None)
        return waits

    def apply_waits(self):
        waits = self.resolve_waits()
        def rebuild(lst):
            out = []
            for ins in lst:
                if isinstance(ins, Loop):
                    ins.body = rebuild(ins.body); out.append(ins); continue
                w = waits.get(id(ins))
                if w and (w[0] is not None or w[1] is not None):
                    t = 's_waitcnt'
                    if w[0] is not None: t += f' vmcnt({w[0]})'
                    if w[1] is not None: t += f' lgkmcnt({w[1]})'
                    wi = Ins(t); wi.cond = ins.cond; out.append(wi)
                if ins.kind != 'waittag':
                    out.append(ins)
            return out
        self.items = rebuild(self.items)
        self.cur = self.items

    def required_gap(self, p, c):
        need = 0
        pk, ck = p.kind, c.kind
        pd = set(p.dst)
        isvalu_p = pk in ('valu', 'trans')
        isvalu_c = ck in ('valu', 'trans')
        csrc = set(c.src); cdst = set(c.dst)
        if isvalu_p:
            pv = {r for r in pd if isinstance(r, tuple) and r[0] in 'va'}
            ps = {r for r in pd if (isinstance(r, tuple) and r[0] == 's') or r == 'vcc'}
            if ck == 'mfma' and pv & csrc: need = max(need, 2)
            if isvalu_c:
                if c.op.startswith('v_permlane') and pv & csrc: need = max(need, 2)
                if c.dpp and pv & csrc: need = max(need, 2)
                if (c.op.startswith('v_readlane') or c.op.startswith('v_readfirstlane')) and pv & csrc: need = max(need, 1)
                if pk == 'trans' and ck != 'trans' and pv & csrc: need = max(need, 1)
                if pk == 'trans' and ck == 'trans' and pv & csrc: need = max(need, 1)
                if ps & csrc:
                    need = max(need, 4 if (c.op.startswith('v_readlane') or c.op.startswith('v_writelane') or c.op.startswith('v_div_fmas')) else 2)
                if ('sdwa' in p.op and 'dst_sel:DWORD' not in p.text) and pv & (csrc | cdst): need = max(need, 1)
            if p.op.startswith('v_dot') and pv & (csrc | cdst) and c.op != p.op: need = max(need, 3)
            if ck in ('vload', 'vstore', 'dma') and ps & csrc: need = max(need, 5)
            if pk == 'trans' and ck in ('vstore', 'dswrite', 'dsread', 'vload', 'dma') and pv & csrc: need = max(need, 1)
            if ck == 'branch' and 'vcc' in ps and 'vcc' in csrc: need = max(need, 5)
            if ck == 'salu' and ps & csrc: need = max(need, 1)
            if 'exec' in pd: need = max(need, 5)
        if pk == 'mfma':
            P = p.passes
            if ck == 'mfma':
                C = set(c.srcC)
                if pd & C:
                    if not (tuple(p.dst) == tuple(c.srcC) and p.passes == c.passes):
                        need = max(need, P + 2)
                if pd & (set(c.srcA) | set(c.srcB)): need = max(need, P + 4)
                if pd & cdst and not (pd & C):
                    if tuple(p.dst) != tuple(c.dst): need = max(need, P + 2)
            elif isvalu_c or ck in ('vload', 'vstore', 'dma', 'dsread', 'dswrite'):
                if pd & (csrc | cdst): need = max(need, P + 4)
                if isvalu_c and set(p.srcC) & cdst: need = max(need, P - 1)
        if pk == 'salu' and 'm0' in pd and ck == 'dma': need = max(need, 1)
        if pk == 'vstore' and p.wide and set(p.srcA) & cdst:
            need = max(need, 2 if isvalu_c else 1)
        if pk == 'salu' and 'exec' in pd and c.dpp: need = max(need, 1)
        return need

    def apply_nops(self, verbose=False):
        WIN = 24
        extra = {}
        changed = True
        while changed:
            changed = False
            hist = []
            pos = 0
            uhist = []; upos = 0
            for ins in self._trace():
                if ins.kind == 'label':
                    continue
                pos += extra.get(id(ins), 0)
                short = 0
                cands = hist[-WIN:]
                if ins.cond is None:
                    cands = cands + [(q_, pos - (upos + extra.get(id(ins), 0) - up_)) for (q_, up_) in uhist[-WIN:]]
                for (p, ppos) in cands:
                    gap = pos - ppos
                    if gap >= 20: continue
                    need = self.required_gap(p, ins)
                    if need > gap:
                        short = max(short, need - gap)
                if short:
                    extra[id(ins)] = extra.get(id(ins), 0) + short
                    pos += short
                    changed = True
                pos += ins.states()
                hist.append((ins, pos))
                if ins.cond is None:
                    upos += extra.get(id(ins), 0) + ins.states()
                    uhist.append((ins, upos))
        total = 0
        def rebuild(lst):
            nonlocal total
            out = []
            for ins in lst:
                if isinstance(ins, Loop):
                    ins.body = rebuild(ins.body); out.append(ins); continue
                n = extra.get(id(ins), 0)
                if n and verbose:
                    print(f'  nop x{n} before: {ins.text}')
                total += n
                while n > 0:
                    k = min(n, 16)
                    out.append(Ins(f's_nop {k-1}'))
                    n -= k
                out.append(ins)
            return out
        self.items = rebuild(self.items)
        self.cur = self.items
        return total

    def finalize(self, verbose=False):
        self.apply_waits()
        n = self.apply_nops(verbose)
        return n

    def text(self):
        out = []
        for ins in self._flat():
            if ins.kind == 'label':
                out.append(ins.text)
            else:
                out.append('    ' + ins.text)
        return '\n'.join(out) + '\n'

    def stats(self):
        from collections import Counter
        c = Counter()
        for it in self.items:
            if isinstance(it, Loop):
                for ins in it.body: c[ins.kind] += it.n
            else:
                c[it.kind] += 1
        return dict(c)

    def maxregs(self):
        mv = ma = ms = -1
        for ins in self._flat():
            for r in list(ins.dst) + list(ins.src):
                if isinstance(r, tuple):
                    if r[0] == 'v': mv = max(mv, r[1])
                    if r[0] == 'a': ma = max(ma, r[1])
                    if r[0] == 's': ms = max(ms, r[1])
        return mv + 1, ma + 1, ms + 1


def interleave(backbone, fillers):
    out = []
    for m, f in zip(backbone, fillers):
        out.append(m)
        out.extend(f)
    return out


def kernel_text(name, prog, lds_static=0, force_vgpr=None):
    nv, na, ns = prog.maxregs()
    acc = max(4, (nv + 3) // 4 * 4)
    nfv = acc + na if na > 0 else max(nv, 1)
    if force_vgpr:
        nfv = max(nfv, force_vgpr)
    if na == 0:
        acc = min(256, (nfv + 3) // 4 * 4)
    code = f""".text
.globl {name}
.p2align 8
.type {name},@function
{name}:
{prog.text()}"""
    desc = f""".section .rodata,"a"
.p2align 6
.amdhsa_kernel {name}
  .amdhsa_next_free_vgpr {nfv}
  .amdhsa_next_free_sgpr {max(ns, 8)}
  .amdhsa_accum_offset {acc}
  .amdhsa_group_segment_fixed_size 0
  .amdhsa_kernarg_size 112
  .amdhsa_user_sgpr_count 2
  .amdhsa_user_sgpr_kernarg_segment_ptr 1
  .amdhsa_system_sgpr_workgroup_id_x 1
  .amdhsa_float_denorm_mode_32 3
  .amdhsa_float_denorm_mode_16_64 3
.end_amdhsa_kernel
"""
    return code, desc


def icost(x):
    if not isinstance(x, str):
        return 4
    op = x.split()[0]
    if op.startswith('buffer_') or op.startswith('global_'): return 8
    if op.startswith('ds_'): return 5
    if op == 's_barrier': return 18
    if op.startswith('s_cbranch'): return 22
    if op.replace('_e32', '').replace('_e64', '') in TRANS: return 8
    return 4

def gcost(L):
    nl = sum(1 for x in L if isinstance(x, str) and x.startswith('ds_'))
    c = sum(icost(x) for x in L if not (isinstance(x, str) and x.startswith('ds_')))
    return c + (0 if nl == 0 else 4 + 6 * (nl - 1))

def pack(M, fixed, stream, budget=24, start=0, stop=None, verbose=None):
    n = len(M)
    stop = n if stop is None else stop
    gaps = [list(fixed.get(g, [])) for g in range(n)]
    base = [gcost(gaps[g]) for g in range(n)]
    m = len(stream)
    pre = [0]
    for x in stream: pre.append(pre[-1] + icost(x))
    INF = float('inf')
    best = [0] + [INF] * m
    back = []
    for g in range(start, stop):
        nb = [INF] * (m + 1); bk = [0] * (m + 1)
        for j in range(m + 1):
            for i in range(max(0, j - 24), j + 1):
                if best[i] == INF: continue
                c = base[g] + pre[j] - pre[i]
                val = best[i] + max(0, c - budget) * 10000 + c * c
                if val < nb[j]: nb[j] = val; bk[j] = i
        best = nb; back.append(bk)
    j = m
    for g in range(stop - 1, start - 1, -1):
        i = back[g - start][j]
        gaps[g] += stream[i:j]
        j = i
    if verbose:
        est = sum(max(budget, gcost(gaps[g])) + 8 for g in range(n))
        print(f'  pack[{verbose}]: {n} MFMA, est {est} cyc ({est/n:.2f}/MFMA), gap costs', [gcost(gaps[g]) for g in range(n)])
    return interleave(M, gaps)


import subprocess, tempfile, os
_NOPROMO = ('v_readfirstlane', 'v_permlane', 'v_accvgpr', 'v_nop', 'v_add_co', 'v_addc_co', 'v_sub_co', 'v_dot2c', 'v_mbcnt')
def _sizes(prog):
    with tempfile.TemporaryDirectory() as d:
        open(d + '/a.s', 'w').write('.amdgcn_target "amdgcn-amd-amdhsa--gfx950"\n.text\n' + prog.text())
        r = subprocess.run(['clang', '-x', 'assembler', '-target', 'amdgcn-amd-amdhsa', '-mcpu=gfx950', '-c', d + '/a.s', '-o', d + '/a.o'], capture_output=True, text=True)
        assert r.returncode == 0, r.stderr[:2000]
        out = subprocess.run(['llvm-objdump', '-d', '--mcpu=gfx950', d + '/a.o'], capture_output=True, text=True).stdout
    sz = []
    for line in out.splitlines():
        m = re.search(r'// [0-9A-F]{12}: ((?:[0-9A-F]{8} ?)+)', line)
        if m: sz.append(4 * len(m.group(1).split()))
    return sz

def align_pass(prog, cmis=0.8, cpro=0.02):
    ins = [x for x in prog._flat() if x.kind != 'label']
    sz = _sizes(prog)
    assert len(sz) == len(ins), (len(sz), len(ins))
    INF = 1e18
    best = [0.0, INF]; back = []
    for x, s_ in zip(ins, sz):
        promo = s_ == 4 and x.kind in ('valu', 'trans') and not x.op.startswith(_NOPROMO) and not x.dpp and not x.op.endswith('_e64')
        mk = re.match(r'^s_add_u32 (\w+), (\w+), (\d+)$', x.text.strip())
        nxt = ins[len(back) + 1] if len(back) + 1 < len(ins) else None
        demo = s_ == 8 and mk and mk.group(1) == mk.group(2) and int(mk.group(3)) < 32768 and not (nxt and 'scc' in nxt.src)
        nb = [INF, INF]; bk = [None, None]
        for par in (0, 1):
            if best[par] >= INF: continue
            opts = [(s_, 0.0, False)] + ([(8, cpro, True)] if promo else []) + ([(4, cpro, 'k')] if demo else [])
            for size, c, pr in opts:
                cost = best[par] + c + (cmis if (size >= 8 and par) else 0)
                np_ = (par + size // 4) & 1
                if cost < nb[np_]: nb[np_] = cost; bk[np_] = (par, pr)
        best = nb; back.append(bk)
    par = 0 if best[0] <= best[1] else 1
    n = 0
    for x, bk in zip(reversed(ins), reversed(back)):
        par, pr = bk[par]
        if pr == 'k':
            mk = re.match(r'^s_add_u32 (\w+), (\w+), (\d+)$', x.text.strip())
            x.text = f"s_addk_i32 {mk.group(1)}, {mk.group(3)}"
        elif pr:
            x.text = x.text.replace(x.op, x.op + '_e64', 1); n += 1
    return n
```

```python
from common import *
import math, sys, re

OPT = {}
NM = 'L'

P_X, P_K, P_V, P_WQ, P_WO, P_BX, P_WG, P_WU, P_WD, P_C, P_WMOD, P_OUT, P_DBG, P_WS = range(64, 92, 2)
S_WAVE, S_T0, S_T1, S_T2 = 60, 61, 62, 63
S_EX = 92
S_SPIN = 94
S_ST = 96

C_WP, C_F1, C_F2, C_F3, C_G, C_N = 0, 32, 160, 224, 288, 544
C_B0 = 768
SPIN_MAX = 1 << 16

SLOT, WBLK, PADI = 16768, 4192, 1040
PAIR = 2 * SLOT
LDS_TOTAL = 163840
RING0 = LDS_TOTAL - 4 * PAIR
LDS_TABW = 0
LDS_TABG = 640
LDS_CONST = 1280
LDS_JUNK = LDS_CONST + 10240
IMG_W, IMG_B, IMG_A = 1280, 1280 + 20480, 1280 + 40960
POS = lambda i: RING0 + i * PAIR
WO_PIECE = [[5, 6, 7, 8], [19, 20, 21, 22], [9, 10, 11, 23], [24, 25, 26, 27], [28, 29, 30, 31],
            [0, 1, 2, 3], [12, 13, 14, 15], [16, 17, 18, 4]]
QSCALE = LOG2E / math.sqrt(128.0)

nstamp = 0
def TIMER(): return "s_memtime" if OPT.get("cyc") else "s_memrealtime"
def stamp(p):
    global nstamp
    if OPT.get('stamps'):
        p(f"{TIMER()} s[{S_ST}:{S_ST+1}]\ns_waitcnt lgkmcnt(0)\nv_accvgpr_write_b32 a{224+nstamp}, s{S_ST}")
        nstamp += 1
        assert nstamp <= 31

def lane_id(p, r):
    p(f"v_mbcnt_lo_u32_b32 v{r}, -1, 0")
    p(f"v_mbcnt_hi_u32_b32 v{r}, -1, v{r}")

def mksrd(p, d, ptr, off, size):
    if off is None or off == 0:
        p(f"s_mov_b32 s{d}, s{ptr}\ns_mov_b32 s{d+1}, s{ptr+1}")
    else:
        p(f"s_add_u32 s{d}, s{ptr}, {off}\ns_addc_u32 s{d+1}, s{ptr+1}, 0")
    p(f"s_mov_b32 s{d+2}, {size}\ns_mov_b32 s{d+3}, 0x00020000")

def signal(p, sidx, va, vb, base=P_WS, shift=8, add=WS_CNT):
    p(f"""s_lshl_b32 s{S_T2}, s{sidx}, {shift}
    s_add_u32 s{S_T2}, s{S_T2}, {add}
    v_mov_b32 v{va}, s{S_T2}
    v_mov_b32 v{vb}, 1
    s_mov_b64 exec, 1
    global_atomic_add v{va}, v{vb}, s[{base}:{base+1}] sc1
    s_mov_b64 exec, -1""")

npoll = 0
def poll(p, va, vd, expect, base=P_WS, slp=None):
    global npoll
    npoll += 1
    p(f"""s_mov_b32 s{S_SPIN}, 0
    {NM}_poll{npoll}:
    global_load_dword v{vd}, v{va}, s[{base}:{base+1}] sc1
    s_add_u32 s{S_SPIN}, s{S_SPIN}, 1
    s_waitcnt vmcnt(0)
    v_cmp_gt_u32 vcc, {expect}, v{vd}
    s_cmp_gt_u32 s{S_SPIN}, {SPIN_MAX}
    s_cbranch_scc1 {NM}_pdone{npoll}""")
    slp = OPT.get('slp', 4) if slp is None else slp
    if slp:
        p(f"s_cbranch_vccz {NM}_pdone{npoll}\ns_sleep {slp}\ns_branch {NM}_poll{npoll}")
    else:
        p(f"s_cbranch_vccnz {NM}_poll{npoll}")
    p(f"{NM}_pdone{npoll}:")

def dpp_ror_add(p, r, n):
    p(f"v_add_f32_dpp v{r}, v{r}, v{r} row_ror:{n} row_mask:0xf bank_mask:0xf")

def mod_loads(p, srdn, row, vaddr, dst, n4, imms, soff=None):
    for kq in range(4):
        mksrd(p, srdn, P_WS, WS_MOD + kq * 15360 + row * 2560, 2560)
        for i in range(n4):
            p(f"buffer_load_dwordx4 {v(dst+4*(n4*kq+i),4)}, v{vaddr}, s[{srdn}:{srdn+3}], {soff or 0} offen offset:{imms[i]} sc1")

def mod_sum(p, dst, n):
    for e in range(n):
        p(f"v_add_f32 v{dst+e}, v{dst+e}, v{dst+n+e}")
        p(f"v_add_f32 v{dst+2*n+e}, v{dst+2*n+e}, v{dst+3*n+e}")
    for e in range(n):
        p(f"v_add_f32 v{dst+e}, v{dst+e}, v{dst+2*n+e}")
    for e in range(0, n, 2):
        p(f"v_cvt_pk_bf16_f32 v{dst+e}, v{dst+e}, v{dst+e+1}")
        p(f"v_and_b32 v{dst+e+1}, 0xffff0000, v{dst+e}")
        p(f"v_lshlrev_b32 v{dst+e}, 16, v{dst+e}")

V_Q, V_S, V_X, V_C, V_H, V_T, V_AW, V_DMA, V_CA, V_L16, V_LS = 0, 64, 128, 192, 224, 240, 244, 248, 252, 253, 254
V_NEGM, V_AK, V_AV = 192, 240, 244
V_P = [224, 128]
A_O, A_K, A_V = 0, 128, 160
S_KS, S_VS, S_XN, S_O, S_G = 8, 12, 16, 20, 24
S_DA, S_DB = 28, 32
S_DOFF, S_DSTEP, S_XOFF, S_CNT, S_WR, S_DELTA, S_POS, S_WOFF, S_CM3, S_HEAD, S_QB, S_DMASK = range(36, 48)
S_RDB, S_SOFF, S_SWR = S_DSTEP, 4, S_XOFF
S_PW, S_WOO, S_KQ, S_W5 = 48, 49, 50, 51
S_JB = 52
S_JIN = 58
S_JBN = 59
S_WPO = 5
S_WIN = 6
S_WPX = 7
S_Q2, S_CT = 56, 57
S_OOFF = 98
V_SC, V_JO, V_WO, V_PW, V_WD = 144, 145, 146, 147, 148
A_SF = 192
A_SV = 210
A_FF = 216
S_GI, S_FO = 47, 46
A_XR = 200

def acc(dt, qt): return 16 * (2 * dt + qt)
def qfrag(qt, m): return V_Q + 8 * (2 * (m >> 1) + qt) + 4 * (m & 1)
def oacc(dt, qt): return A_O + 16 * (2 * dt + qt)

def dma4():
    L = []
    for i in range(4):
        srdn = S_DA if i < 2 else S_DB
        off = f" offset:{i*PADI}" if i else ""
        L.append(f"buffer_load_dwordx4 v{V_DMA+i}, s[{srdn}:{srdn+3}], s{S_DOFF} offen{off} nt lds")
    return L

def dma_pair_qp():
    adv = [f"s_add_u32 s{S_DOFF}, s{S_DOFF}, s{S_DSTEP}"]
    return [f"s_mov_b32 m0, s{S_WR}"] + dma4() + adv + [f"s_add_u32 m0, m0, {SLOT}"] + dma4() + adv

def dma_pair_at():
    adv = [f"s_add_u32 s{S_DOFF}, s{S_DOFF}, 8192"]
    return [f"s_mov_b32 m0, s{S_WR}"] + dma4() + adv + [f"s_add_u32 m0, m0, {SLOT}"] + dma4() + adv

def pos_update():
    return [f"s_add_u32 s{S_POS}, s{S_POS}, 1",
            f"s_and_b32 s{S_POS}, s{S_POS}, 3",
            f"s_cselect_b32 s{S_DELTA}, {PAIR}, s{S_CM3}"]
def wr_update():
    return [f"s_xor_b32 s{S_WR}, s{S_POS}, 2",
            f"s_mul_i32 s{S_WR}, s{S_WR}, {PAIR}",
            f"s_add_u32 s{S_WR}, s{S_WR}, s{S_WOFF}"]
def pos_update_at():
    return [f"s_add_u32 s{S_POS}, s{S_POS}, 1",
            f"s_cmp_eq_u32 s{S_POS}, 4",
            f"s_cselect_b32 s{S_POS}, 1, s{S_POS}",
            f"s_cselect_b32 s{S_DELTA}, s{S_CM3}, {PAIR}",
            f"s_mov_b32 s{S_WR}, s{S_RDB}",
            f"s_add_u32 s{S_RDB}, s{S_RDB}, s{S_DELTA}"]

def a_reads(buf, kp):
    L = []
    for dt in range(4):
        for jj in range(2):
            r = A_K + 16 * buf + 4 * dt + 2 * jj
            L.append(f"ds_read_b64_tr_b16 a[{r}:{r+1}], v{V_AW+dt} offset:{(kp//4)*SLOT + (kp%4)*WBLK + jj*PADI}")
    return L

def c_reads(buf, off):
    return [f"ds_read_b128 {v(V_C+16*buf+4*i,4)}, v{V_CA} offset:{off+16*i}" for i in range(4)]

def h_valu(xr, cbuf, hbuf):
    L = []
    n = 0
    for qt in range(2):
        for d in range(4):
            x = V_X + 8 * xr + 4 * qt + d
            ca = V_C + 16 * cbuf + 2 * d
            t0 = V_T + 2 * (n % 2); n += 1
            L.append(f"v_fma_mix_f32 v{t0}, v{x}, v{ca}, v{ca+8} op_sel_hi:[1,0,0]")
            L.append(f"v_fma_mix_f32 v{t0+1}, v{x}, v{ca+1}, v{ca+9} op_sel:[1,0,0] op_sel_hi:[1,0,0]")
            L.append(f"v_cvt_pk_bf16_f32 v{V_H+8*hbuf+4*qt+d}, v{t0}, v{t0+1}")
    return L

def x_loads(xr, imm):
    return [f"buffer_load_dwordx4 {v(V_X+8*xr+4*qt,4)}, v{V_XA+qt}, s[{S_XN}:{S_XN+3}], s{S_XOFF} offen offset:{imm} sc1"
            for qt in range(2)]

def k_reads(slotimm):
    return [f"ds_read_b128 {a(A_K+4*m,4)}, v{V_AK+(m>>1)} offset:{slotimm+(m&1)*32}" for m in range(8)]

def v_reads(slotimm, dst=A_V):
    L = []
    for ks in range(2):
        for dt in range(4):
            for jj in range(2):
                r = dst + 16 * ks + 4 * dt + 2 * jj
                L.append(f"ds_read_b64_tr_b16 a[{r}:{r+1}], v{V_AV+dt} offset:{slotimm + 2080 + (2*ks+jj)*WBLK}")
    return L

def qk_mfmas(sbuf, cinit):
    L = []
    for m in range(8):
        for qt in range(2):
            d = V_S + 32 * sbuf + 16 * qt
            c = ('0' if cinit == 'zero' else v(V_NEGM + 16 * qt, 16)) if m == 0 else v(d, 16)
            L.append(f"v_mfma_f32_32x32x16_bf16 {v(d,16)}, {a(A_K+4*m,4)}, {v(qfrag(qt,m),4)}, {c}")
    return L

def pv_mfmas(pbuf, src=A_V):
    L = []
    for ks in range(2):
        for dt in range(4):
            for qt in range(2):
                o = oacc(dt, qt)
                L.append(f"v_mfma_f32_32x32x16_bf16 {a(o,16)}, {a(src+16*ks+4*dt,4)}, {v(V_P[pbuf]+8*qt+4*ks,4)}, {a(o,16)}")
    return L

def softmax_stream(sbuf, pbuf):
    elems = [(qt, r) for ks in range(2) for qt in range(2) for r in range(8 * ks, 8 * ks + 8)]
    L = []
    def post(i):
        qt, r = elems[i]
        x = V_S + 32 * sbuf + 16 * qt + r
        L.append(f"v_add_f32 v{V_LS+qt}, v{V_LS+qt}, v{x}")
        if r % 2 == 1:
            L.append(f"v_cvt_pk_bf16_f32 v{V_P[pbuf]+8*qt+r//2}, v{x-1}, v{x}")
    for i, (qt, r) in enumerate(elems):
        x = V_S + 32 * sbuf + 16 * qt + r
        L.append(f"v_exp_f32 v{x}, v{x}")
        if i >= 1: post(i - 1)
    post(31)
    return L

def put(fixed, items, positions):
    assert len(items) == len(positions), (len(items), len(positions))
    for it, g in zip(items, positions):
        fixed.setdefault(g, []).append(it)

def order_gap(fixed):
    def key(x):
        if not isinstance(x, str): return 1
        if x.startswith('buffer_') or x.startswith('ds_') or x.startswith('global_'): return 0
        if x.startswith('s_'): return 1
        return 2
    for g in fixed:
        fixed[g].sort(key=key)

def prefill(p, lo, hi):
    for i in range(lo, hi):
        p(f"""s_add_u32 s{S_DELTA}, s{S_Q2}, {i}
        s_and_b32 s{S_DELTA}, s{S_DELTA}, 3
        s_lshl_b32 s{S_DOFF}, s{S_DELTA}, 19
        s_mul_i32 s{S_DELTA}, s{S_DELTA}, {SLOT}
        s_add_u32 m0, s{S_DELTA}, s{S_WOFF}""")
        p.extend(dma4())


V_TID = 232
V_ZERO = 234
V_XA = 254
VP_O1, VP_O2, VP_SC, VP_AD, VP_LA = 240, 241, 242, 243, 233

def joined(q):
    out = []; hold = False
    for x in q.items:
        if out and (hold or 'scc' in x.src):
            out[-1] += '\n' + x.text
        else:
            out.append(x.text)
        if 'exec' in x.dst: hold = not x.text.rstrip().endswith('-1')
    return out

def texts(fn):
    q = Prog(); fn(q); return joined(q)

def merge(*lists):
    lists = [list(l) for l in lists if l]
    n = [len(l) for l in lists]; idx = [0] * len(lists); out = []
    while any(idx[k] < n[k] for k in range(len(lists))):
        k = min((k for k in range(len(lists)) if idx[k] < n[k]), key=lambda k: idx[k] / n[k])
        out.append(lists[k][idx[k]]); idx[k] += 1
    return out

def phase0(p):
    XL, XF, M, Q, C, W, SI, AC, U = 128, 140, 160, 164, 172, 180, 200, 210, 218
    AX, ACc, AW, AIM, AJW, AIR, AXS, T0, T1 = range(222, 231)
    p(f"""
    s_load_dwordx16 s[64:79], s[0:1], 0
    s_load_dwordx8 s[80:87], s[0:1], 64
    s_load_dwordx4 s[88:91], s[0:1], 96
    v_lshrrev_b32 v1, 6, v0
    v_mov_b32 v{V_TID}, v0
    v_readfirstlane_b32 s{S_WAVE}, v1
    """)
    if not OPT.get('nocodepf'):
        p(f"""
        s_getpc_b64 s[4:5]
        {NM}_pc:
        s_lshr_b32 s3, s2, 3
        s_lshl_b32 s3, s3, 11
        v_lshlrev_b32 v1, 3, v0
        v_add_u32 v1, s3, v1
        v_min_u32 v1, {NM}_codeend-{NM}_pc-8, v1
        global_load_dwordx2 a[220:221], v1, s[4:5]
        """)
    p(f"""
    s_lshl_b32 s3, s2, 3
    v_lshrrev_b32 v1, 5, v0
    v_add_u32 v{AX}, s3, v1
    v_and_b32 v2, 31, v0
    v_mul_u32_u24 v{AX}, 1280, v{AX}
    v_lshl_add_u32 v{AX}, v2, 3, v{AX}
    s_and_b32 s6, s2, 3
    s_mul_i32 s6, s6, 160
    s_lshr_b32 s7, s2, 2
    s_lshl_b32 s3, s7, 7
    s_cmp_ge_u32 s2, 240
    s_cselect_b32 s3, 0x40000000, s3
    v_lshrrev_b32 v4, 3, v0
    v_add_u32 v4, s6, v4
    v_mul_u32_u24 v{AW}, 7680, v4
    v_and_b32 v6, 7, v0
    v_lshlrev_b32 v6, 4, v6
    v_add3_u32 v{AW}, v{AW}, v6, s3
    v_lshlrev_b32 v{ACc}, 1, v4
    s_mov_b32 s10, {SZ_X}
    s_mov_b32 s11, 0x00020000
    s_mov_b32 s14, {SZ_C}
    s_mov_b32 s15, 0x00020000
    s_mov_b32 s18, {SZ_WMOD}
    s_mov_b32 s19, 0x00020000
    """)
    for i in range(1, 5):
        p(f"s_mov_b32 s{97+i}, {i*32*7680}")
    p(f"""
    s_bfe_u32 s{S_KQ}, s2, 0x20001
    s_and_b32 s{S_Q2}, s2, 1
    s_lshl_b32 s{S_Q2}, s{S_Q2}, 2
    s_bfe_u32 s{S_T0}, s2, 0x20003
    s_add_u32 s{S_Q2}, s{S_Q2}, s{S_T0}
    s_lshr_b32 s{S_CT}, s2, 5
    s_lshl_b32 s{S_HEAD}, s{S_KQ}, 3
    s_add_u32 s{S_HEAD}, s{S_HEAD}, s{S_CT}
    s_mul_i32 s{S_WOFF}, s{S_WAVE}, {WBLK}
    s_add_u32 s{S_WOFF}, s{S_WOFF}, {RING0}
    v_and_b32 v7, 63, v0
    v_lshlrev_b32 v{V_L16}, 4, v7
    v_lshrrev_b32 v8, 4, v7
    v_and_b32 v9, 15, v7
    v_lshlrev_b32 v10, 2, v8
    v_xor_b32 v9, v10, v9
    v_lshlrev_b32 v9, 4, v9
    v_lshl_add_u32 v9, v8, 13, v9
    s_lshl_b32 s{S_T0}, s{S_WAVE}, 17
    v_add_u32 v{V_DMA}, s{S_T0}, v9
    """)
    for i in range(1, 4):
        p(f"v_add_u32 v{V_DMA+i}, {i*(4*8192-PADI)}, v{V_DMA}")
    p("s_waitcnt lgkmcnt(0)")
    if OPT.get('st0'): stamp(p)
    if OPT.get('wsoff'):
        p(f"s_add_u32 s{P_WS}, s{P_WS}, {OPT['wsoff'] << 20}\ns_addc_u32 s{P_WS+1}, s{P_WS+1}, 0")
    p(f"""
    s_mov_b32 s8, s{P_X}
    s_mov_b32 s9, s{P_X+1}""")
    for i in range(5):
        p(f"buffer_load_dwordx2 {v(XL+2*i,2)}, v{AX}, s[8:11], 0 offen offset:{i*256} {'' if OPT.get('xplain') else 'nt'}")
    p(f"s_mov_b32 s12, s{P_C}\ns_mov_b32 s13, s{P_C+1}\ns_mov_b32 s16, s{P_WMOD}\ns_mov_b32 s17, s{P_WMOD+1}")
    for i in range(5):
        p(f"buffer_load_ushort v{C+i}, v{ACc}, s[12:15], 0 offen offset:{i*64}")
    for i in range(5):
        p(f"buffer_load_dwordx4 {v(W+4*i,4)}, v{AW}, s[16:19], {'s%d' % (97+i) if i else 0} offen nt")
    if not OPT.get('b0dbg'):
        p(f"s_lshl_b32 s3, s2, 2\ns_add_u32 s3, s3, s{S_WAVE}\ns_cmp_lg_u32 s3, 1\ns_cbranch_scc1 {NM}_p0_noclr")
        p.begin_cond()
        p(f"""v_lshlrev_b32 v10, 4, v{V_L16}
        v_add_u32 v10, {WS_CNT + C_B0*256}, v10
        v_mov_b32 v11, 0
        global_store_dword v10, v11, s[{P_WS}:{P_WS+1}] sc1
        v_mov_b32 v12, 1
        s_waitcnt vmcnt(0)
        s_mov_b64 exec, 1
        global_store_dword v11, v12, s[{P_DBG}:{P_DBG+1}] sc1
        s_mov_b64 exec, -1""")
        p.end_cond()
        p(f"{NM}_p0_noclr:")
    p(f"""
    s_lshl_b32 s{S_T0}, s{S_HEAD}, 8
    s_add_u32 s{S_DA}, s{P_WQ}, s{S_T0}
    s_addc_u32 s{S_DA+1}, s{P_WQ+1}, 0
    s_sub_u32 s{S_DA+2}, {SZ_WQ}, s{S_T0}
    s_mov_b32 s{S_DA+3}, 0x00020000
    s_mov_b32 s{S_DB}, s{S_DA}
    s_mov_b32 s{S_DB+1}, s{S_DA+1}
    s_mov_b32 s{S_DB+2}, s{S_DA+2}
    s_mov_b32 s{S_DB+3}, 0x00020000
    """)
    p(f"""
    v_lshrrev_b32 v{AIM}, 1, v2
    v_lshlrev_b32 v{AIM}, 7, v{AIM}
    v_lshl_add_u32 v{AIM}, v1, 4, v{AIM}
    v_and_b32 v7, 1, v2
    v_lshl_add_u32 v{AIM}, v7, 3, v{AIM}
    v_add_u32 v{AIM}, {LDS_CONST}, v{AIM}
    v_lshrrev_b32 v1, 4, v0
    v_lshlrev_b32 v{AJW}, 8, v1
    v_lshl_add_u32 v{AJW}, v6, 1, v{AJW}
    v_add_u32 v{AJW}, {LDS_JUNK}, v{AJW}
    v_lshlrev_b32 v{AIR}, 4, v0
    v_add_u32 v{AIR}, {LDS_CONST}, v{AIR}
    v_lshl_add_u32 v{AXS}, v1, 11, v6
    v_bfe_u32 v3, v0, 3, 1
    v_lshl_add_u32 v{AXS}, v3, 9, v{AXS}
    s_and_b32 s100, s2, 3
    s_mul_i32 s100, s100, 15360
    s_lshl_b32 s7, s7, 8
    s_add_u32 s100, s100, s7
    """)
    p1_setup(p)
    pf = [texts(lambda q, i=i: prefill(q, i, i + 1)) for i in range(4)]
    NB = OPT.get('nb1', 1)
    late = pf[NB:]
    pf = pf[:NB] + [[]] * 8
    p.extend(pf[0])
    p(f"v_mov_b32 v{V_ZERO}, 0")
    p(f"""
    s_lshr_b32 s3, s2, 3
    s_mul_i32 s3, s3, 81920
    s_bfe_u32 s{S_T0}, s2, 0x10002
    s_lshl_b32 s{S_T0}, s{S_T0}, 10
    s_add_u32 s3, s3, s{S_T0}
    s_and_b32 s{S_T0}, s2, 3
    s_lshl_b32 s{S_T0}, s{S_T0}, 7
    s_add_u32 s3, s3, s{S_T0}
    s_add_u32 s3, s3, {WS_XN}
    s_mov_b32 s98, 32768
    s_mov_b32 s99, 65536
    """)
    mksrd(p, S_G, P_WS, 's3', 40 * 2048 - 1024)
    p(f"s_mov_b32 s3, 0x3f803f80\ns_mov_b32 s101, {fhex(-LOG2E)}")
    if OPT.get('st0'): stamp(p)
    def red32(q, r):
        for n in (1, 2, 4, 8):
            dpp_ror_add(q, r, n)
        q(f"v_mov_b32 v{r+1}, v{r}\nv_permlane16_swap_b32 v{r}, v{r+1}\nv_add_f32 v{r}, v{r}, v{r+1}")
    def ln1(q):
        q(f"v_dot2_f32_bf16 v{M}, v{XL}, s3, 0\nv_dot2_f32_bf16 v{M+1}, v{XL+1}, s3, 0")
        for i in range(2, 10):
            q(f"v_dot2_f32_bf16 v{M+i%2}, v{XL+i}, s3, v{M+i%2}")
    def unp(q):
        for i in range(10):
            q(f"v_lshlrev_b32 v{XF+2*i}, 16, v{XL+i}\nv_and_b32 v{XF+2*i+1}, 0xffff0000, v{XL+i}")
    def ln2(q):
        q(f"v_add_f32 v{M}, v{M}, v{M+1}")
        red32(q, M)
        q(f"v_mul_f32 v{M}, {fhex(-1.0/640)}, v{M}")
    def ln3(q):
        for i in range(10):
            t = Q + 2 + 2 * (i % 2)
            q(f"v_pk_add_f32 {v(t,2)}, {v(XF+2*i,2)}, {v(M,2)} op_sel_hi:[1,0]")
            q(f"v_pk_mul_f32 {v(Q,2)}, {v(t,2)}, {v(t,2)}" if i == 0 else f"v_pk_fma_f32 {v(Q,2)}, {v(t,2)}, {v(t,2)}, {v(Q,2)}")
    def ln4(q):
        q(f"v_add_f32 v{Q}, v{Q}, v{Q+1}")
        red32(q, Q)
        q(f"v_mul_f32 v{Q}, {fhex(1.0/640)}, v{Q}")
        round_bf16(q, Q, Q)
        q(f"v_add_f32 v{Q}, {fhex(1e-5)}, v{Q}")
        round_bf16(q, Q, Q)
        q(f"v_sqrt_f32 v{Q}, v{Q}")
        round_bf16(q, M, M)
        round_bf16(q, Q, Q)
        q(f"v_rcp_f32 v{Q}, v{Q}")
    def silu(q):
        for i in range(5):
            q(f"v_lshlrev_b32 v{C+i}, 16, v{C+i}\nv_mul_f32 v{SI+2*i}, s101, v{C+i}\nv_exp_f32 v{SI+2*i}, v{SI+2*i}")
        for i in range(5):
            q(f"v_add_f32 v{SI+2*i}, 1.0, v{SI+2*i}\nv_rcp_f32 v{SI+2*i}, v{SI+2*i}")
        for i in range(5):
            q(f"v_mul_f32 v{SI+2*i}, v{C+i}, v{SI+2*i}")
            round_bf16(q, SI + 2 * i, SI + 2 * i)
    p.sync(regs=[v(XL, 10)])
    if OPT.get('st0'): stamp(p)
    p.extend(texts(ln1))
    p.extend(merge(texts(ln2), texts(unp)))
    p.extend(pf[1])
    p.extend(texts(ln3))
    p.sync(regs=[v(C, 5)])
    p.extend(merge(texts(ln4), texts(silu)))
    p.extend(pf[2])
    for i in range(10):
        x0, x1 = XF + 2 * i, XF + 2 * i + 1
        p(f"""v_pk_add_f32 {v(x0,2)}, {v(x0,2)}, {v(M,2)} op_sel_hi:[1,0]
        v_cvt_pk_bf16_f32 v{x0}, v{x0}, v{x1}
        v_and_b32 v{x1}, 0xffff0000, v{x0}
        v_lshlrev_b32 v{x0}, 16, v{x0}
        v_pk_mul_f32 {v(x0,2)}, {v(x0,2)}, {v(Q,2)} op_sel_hi:[1,0]
        v_cvt_pk_bf16_f32 v{x0}, v{x0}, v{x1}
        v_and_b32 v{x1}, 0xffff0000, v{x0}
        v_lshlrev_b32 v{x0}, 16, v{x0}
        v_cvt_pk_f16_f32 v{XL+i}, v{x0}, v{x1}""")
        if i % 2 == 1:
            p(f"ds_write_b64 v{AIM}, {v(XL+i-1,2)} offset:{(i//2)*2048}")
        if i == 4: p.extend(pf[3])
    p.extend(pf[4])
    if OPT.get('st0'): stamp(p)
    p.sync(regs=[v(W, 20)])
    if OPT.get('st0'): stamp(p)
    for i in range(5):
        for d in range(4):
            w = W + 4 * i + d
            u = U + 2 * (d % 2)
            p(f"v_lshlrev_b32 v{u}, 16, v{w}\nv_and_b32 v{u+1}, 0xffff0000, v{w}")
            p(f"v_pk_mul_f32 {v(AC+2*d,2)}, {v(u,2)}, {v(SI,2)} op_sel_hi:[1,0]" if i == 0 else
              f"v_pk_fma_f32 {v(AC+2*d,2)}, {v(u,2)}, {v(SI+2*i,2)}, {v(AC+2*d,2)} op_sel_hi:[1,0,1]")
    p(f"v_and_b32 v{T0}, 8, v{V_TID}\nv_cmp_eq_u32 vcc, 0, v{T0}")
    for e in range(8):
        dpp_ror_add(p, AC + e, 8)
    p(f"""
    s_and_saveexec_b64 s[{S_EX}:{S_EX+1}], vcc
    ds_write_b128 v{AJW}, {v(AC,4)}
    ds_write_b128 v{AJW}, {v(AC+4,4)} offset:16
    s_mov_b64 exec, s[{S_EX}:{S_EX+1}]
    """)
    p.sync(lgkm=0)
    p("s_barrier")
    if OPT.get('st0'): stamp(p)
    for i in range(3):
        p(f"ds_read_b128 {v(XF+4*i,4)}, v{AIR} offset:{4096*i}")
    p(f"""
    s_cmp_lg_u32 s{S_WAVE}, 3
    s_cbranch_scc1 {NM}_p0_nomod
    """)
    p.begin_cond()
    p(f"""
    s_cmp_ge_u32 s2, 240
    s_cbranch_scc1 {NM}_p0_nomod
    v_lshrrev_b32 v{T0}, 2, v{V_L16}
    v_add_u32 v{T1}, {LDS_JUNK}, v{T0}
    """)
    for i in range(8):
        p(f"ds_read2st64_b32 {v(W+2*i,2)}, v{T1} offset0:{2*i} offset1:{2*i+1}")
    p(f"v_add_u32 v{T0}, s100, v{T0}")
    for st in (4, 2, 1):
        for i in range(st):
            p(f"v_pk_add_f32 {v(W+2*i,2)}, {v(W+2*i,2)}, {v(W+2*i+2*st,2)}")
    p(f"""
    v_add_f32 v{W}, v{W}, v{W+1}
    global_store_dword v{T0}, v{W}, s[{P_WS}:{P_WS+1}] sc1
    """)
    p.end_cond()
    p(f"""
    {NM}_p0_nomod:
    s_waitcnt lgkmcnt(0)
    buffer_store_dwordx4 {v(XF,4)}, v{AXS}, s[{S_G}:{S_G+3}], 0 offen sc1
    buffer_store_dwordx4 {v(XF+4,4)}, v{AXS}, s[{S_G}:{S_G+3}], s98 offen sc1
    buffer_store_dwordx4 {v(XF+8,4)}, v{AXS}, s[{S_G}:{S_G+3}], s99 offen sc1
    """)
    mksrd(p, S_G, P_WS, WS_CNT, C_N * 256)
    p(f"""
    s_cmp_lg_u32 s{S_WAVE}, 2
    s_cbranch_scc1 {NM}_p0_nozero
    """)
    p.begin_cond()
    p(f"""
    v_lshlrev_b32 v{T0}, 12, v{V_L16}
    s_lshl_b32 s3, s2, 8
    buffer_store_dword v{V_ZERO}, v{T0}, s[{S_G}:{S_G+3}], s3 offen sc1
    """)
    p.end_cond()
    NSH = OPT.get('nsh', 32)
    p(f"{NM}_p0_nozero:")
    if not OPT.get('b0dbg'):
        p(f"global_load_dword v{U}, v{V_ZERO}, s[{P_DBG}:{P_DBG+1}] sc1")
    p(f"""
    s_waitcnt vmcnt(0)
    s_barrier
    s_cmp_lg_u32 s{S_WAVE}, 0
    s_cbranch_scc1 {NM}_p0_nosig
    """)
    p.begin_cond()
    if OPT.get('b0dbg'):
        p("s_and_b32 s3, s2, 7")
        signal(p, 3, T0, T1, base=P_DBG, shift=5, add=0)
    else:
        p(f"v_cmp_gt_u32 vcc, 1, v{U}\ns_cbranch_vccz {NM}_p0_clr")
        poll(p, V_ZERO, U, 1, base=P_DBG)
        p(f"{NM}_p0_clr:\ns_and_b32 s3, s2, {NSH-1}\ns_add_u32 s3, s3, {C_B0}")
        signal(p, 3, T0, T1)
    p.end_cond()
    p(f"{NM}_p0_nosig:")
    stamp(p)
    zero = [f"v_accvgpr_write_b32 a{i}, 0" for i in range(128)] + [f"v_mov_b32 v{i}, 0" for i in range(128)]
    p.extend(merge(zero, ['\n'.join(g[:5]) if k == 0 else x for g in late for k, x in enumerate(g) if k == 0 or k >= 5]))
    if OPT.get('st0'): stamp(p)
    mksrd(p, S_G, P_WS, WS_MOD, 4 * 15360)
    p(f"""
    s_mov_b32 s{S_POS}, 0
    s_mov_b32 s{S_CM3}, {(-3*PAIR) & 0xffffffff}
    s_add_u32 s{S_WR}, s{S_WOFF}, {2*PAIR}
    s_mov_b32 s{S_DOFF}, {4*64*8192}
    s_mov_b32 s{S_DSTEP}, {64*8192}
    s_mov_b32 s{S_CNT}, 0
    s_mov_b32 s{S_XOFF}, 0
    s_mov_b32 s98, 15360
    s_mov_b32 s99, 30720
    s_mov_b32 s100, 46080
    s_cmp_lg_u32 s{S_WAVE}, 0
    s_cbranch_scc1 {NM}_p0_nopoll
    """)
    p.begin_cond()
    if OPT.get('b0dbg'):
        p(f"v_and_b32 v{T0}, 7, v{V_TID}\nv_lshlrev_b32 v{T0}, 5, v{T0}")
        poll(p, T0, T1, 32, base=P_DBG, slp=OPT.get('slp0', 8))
    else:
        p(f"v_and_b32 v{T0}, {NSH-1}, v{V_TID}\nv_lshlrev_b32 v{T0}, 8, v{T0}\nv_add_u32 v{T0}, {WS_CNT + C_B0*256}, v{T0}")
        poll(p, T0, T1, 256 // NSH, slp=OPT.get('slp0', 4))
    p.end_cond()
    p(f"""{NM}_p0_nopoll:
    s_barrier""")
    stamp(p)


KOFF = 4096 + 8192
VOFF = 4096 + 2080 + 4 * 8192

def tile_addr(p, vl, vg, vtok, vrm):
    p(f"""
    v_lshrrev_b32 v{vg}, 4, v{vl}
    v_and_b32 v{vtok}, 15, v{vl}
    s_lshl_b32 s{S_T0}, s{S_Q2}, 2
    s_add_u32 s{S_T0}, s{S_T0}, s{S_WAVE}
    s_lshl_b32 s{S_T0}, s{S_T0}, 2
    s_add_u32 s{S_T0}, s{S_T0}, s{S_KQ}
    s_lshl_b32 s{S_T0}, s{S_T0}, 4
    v_add_u32 v{vtok}, s{S_T0}, v{vtok}
    v_mul_u32_u24 v{vrm}, 1280, v{vtok}
    v_lshl_add_u32 v{vrm}, v{vg}, 3, v{vrm}
    s_mul_i32 s{S_T0}, s{S_CT}, 160
    v_add_u32 v{vrm}, s{S_T0}, v{vrm}
    """)


def p1_setup(p):
    p(f"""
    s_lshl_b32 s{S_T0}, s{S_Q2}, 2
    s_add_u32 s{S_T0}, s{S_T0}, s{S_WAVE}
    s_mul_i32 s{S_T1}, s{S_T0}, 81920
    s_add_u32 s{S_T1}, s{S_T1}, {WS_XN}
    """)
    mksrd(p, S_XN, P_WS, f"s{S_T1}", 81920)
    p(f"""
    s_lshl_b32 s{S_T0}, s{S_T0}, 19
    s_lshl_b32 s{S_T1}, s{S_HEAD}, 14
    s_add_u32 s{S_T0}, s{S_T0}, s{S_T1}
    s_add_u32 s{S_T0}, s{S_T0}, {WS_O}
    """)
    mksrd(p, S_O, P_WS, f"s{S_T0}", 16384)
    p(f"s_lshl_b32 s{S_T0}, s{S_HEAD}, 19\ns_add_u32 s{S_T1}, s{S_T0}, {1536*256 - VOFF}")
    mksrd(p, S_VS, P_V, f"s{S_T1}", VOFF + 512 * 256)
    p(f"s_add_u32 s{S_T1}, s{S_T0}, {1536*256 - KOFF}")
    mksrd(p, S_KS, P_K, f"s{S_T1}", KOFF + 512 * 256)
    p(f"""
    v_and_b32 v2, 63, v0
    v_lshrrev_b32 v3, 5, v2
    v_mul_u32_u24 v3, 2080, v3
    v_bfe_u32 v4, v2, 2, 2
    v_lshl_add_u32 v3, v4, 8, v3
    v_bfe_u32 v5, v2, 4, 1
    v_lshl_add_u32 v3, v5, 5, v3
    v_and_b32 v5, 1, v2
    v_lshl_add_u32 v3, v5, 4, v3
    v_bfe_u32 v5, v2, 1, 1
    v_lshl_add_u32 v3, v5, 3, v3
    v_add_u32 v3, {RING0}, v3
    """)
    for dt in range(4):
        p(f"v_xor_b32 v5, {dt}, v4\nv_lshl_add_u32 v{V_AW+dt}, v5, 6, v3")
    p(f"""
    s_lshr_b32 s{S_T0}, s2, 1
    s_and_b32 s{S_T1}, s2, 1
    s_lshl_b32 s{S_T2}, s{S_T0}, 2
    s_add_u32 s{S_T2}, s{S_T2}, s{S_WAVE}
    s_mul_i32 s{S_JIN}, s{S_T2}, {8*1280}
    s_mul_i32 s{S_T2}, s{S_T1}, 640
    s_add_u32 s{S_JIN}, s{S_JIN}, s{S_T2}
    s_mul_i32 s{S_T0}, s2, 20
    s_add_u32 s{S_T0}, s{S_T0}, s{S_WAVE}
    s_lshl_b32 s{S_T0}, s{S_T0}, 10
    """)
    p(f"s_add_u32 s{S_T2}, s{S_T0}, {WS_WDF}")
    mksrd(p, S_JB, P_WS, f"s{S_T2}", 4 * 4096 + 1024)
    p(f"""
    s_cmp_lt_u32 s2, 108
    s_cselect_b32 s{S_JB+2}, s{S_JB+2}, 0
    s_cselect_b32 s{S_JBN}, {SZ_WD}, 0
    """)
    p(f"""
    s_and_b32 s3, s2, 7
    s_lshr_b32 s{S_T0}, s2, 3
    s_mul_i32 s{S_WIN}, s3, 80
    s_and_b32 s{S_T1}, s{S_WAVE}, 1
    s_lshl_b32 s{S_T1}, s{S_T1}, 3
    s_add_u32 s{S_WIN}, s{S_WIN}, s{S_T1}
    s_mul_i32 s{S_WIN}, s{S_WIN}, 3456
    s_lshl_b32 s{S_T1}, s{S_T0}, 7
    s_add_u32 s{S_WIN}, s{S_WIN}, s{S_T1}
    s_lshl_b32 s{S_T0}, s{S_T0}, 2
    s_add_u32 s{S_T0}, s{S_T0}, s{S_WAVE}
    s_lshl_b32 s{S_T0}, s{S_T0}, 10
    s_mul_i32 s{S_WPO}, s3, {5*108*1024}
    s_add_u32 s{S_WPO}, s{S_WPO}, s{S_T0}
    s_add_u32 s{S_WPX}, s{S_T0}, {40*108*1024}
    s_lshl_b32 s{S_T2}, s3, 7
    s_add_u32 s{S_WPX}, s{S_WPX}, s{S_T2}
    """)
    p(f"""
    s_mul_i32 s{S_T0}, s{S_KQ}, {1024*1280}
    s_lshr_b32 s{S_PW}, s2, 3
    s_lshl_b32 s{S_PW}, s{S_PW}, 2
    s_add_u32 s{S_PW}, s{S_PW}, s{S_WAVE}
    s_mul_i32 s{S_PW}, s{S_PW}, 10240
    s_add_u32 s{S_PW}, s{S_PW}, s{S_T0}
    s_mul_i32 s{S_WOO}, s{S_WAVE}, {32*1280}
    s_add_u32 s{S_WOO}, s{S_WOO}, s{S_T0}
    s_mul_i32 s{S_T0}, s{S_CT}, 160
    s_add_u32 s{S_WOO}, s{S_WOO}, s{S_T0}
    s_mul_i32 s{S_W5}, s{S_WAVE}, 5120
    s_lshl_b32 s{S_GI}, s{S_Q2}, 2
    s_add_u32 s{S_GI}, s{S_GI}, s{S_WAVE}
    s_lshl_b32 s{S_GI}, s{S_GI}, 3
    s_add_u32 s{S_GI}, s{S_GI}, s{S_CT}
    """)

    for i in range(5):
        p(f"""v_add_u32 v3, {64*i}, v2
        v_mul_u32_u24 v4, 6554, v3
        v_lshrrev_b32 v4, 16, v4
        v_mul_u32_u24 v5, 160, v4
        v_lshlrev_b32 v3, 4, v3
        v_sub_u32 v3, v3, v5
        v_lshrrev_b32 v5, 2, v4
        v_xor_b32 v5, v5, v4
        v_and_b32 v5, 4, v5
        v_mul_u32_u24 v5, 5, v5
        v_xor_b32 v4, v5, v4
        v_mul_u32_u24 v5, 1280, v4
        v_add_u32 v5, v5, v3""")
        if 0 < i < 4: p(f"v_subrev_u32 v5, {1024*i}, v5")
        p(f"v_accvgpr_write_b32 a{A_SV+i}, v5")
    tile_addr(p, 2, 3, 4, 5)
    p(f"v_mul_u32_u24 v3, 44, v3\nv_add_u32 v5, v5, v3\nv_accvgpr_write_b32 a{A_SV+5}, v5")
    p(f"""v_and_b32 v3, 15, v2
    v_lshrrev_b32 v4, 5, v2
    v_lshlrev_b32 v3, 4, v3
    v_lshl_add_u32 v3, v4, 9, v3
    v_bfe_u32 v4, v2, 4, 1
    v_add_u32 v4, s{S_KQ}, v4
    v_and_b32 v5, 1, v4
    v_lshl_add_u32 v3, v5, 8, v3
    v_bfe_u32 v5, v4, 1, 1
    v_lshl_add_u32 v{V_XA}, v5, 10, v3
    v_xor_b32 v{V_XA+1}, 1024, v{V_XA}""")
    p(f"""
    v_lshrrev_b32 v3, 5, v2
    v_lshlrev_b32 v3, 6, v3
    v_add_u32 v{V_CA}, {LDS_CONST}, v3
    v_lshlrev_b32 v6, 4, v0
    v_add_u32 v1, 2560, v6
    v_add_u32 v7, 40, v0
    v_mov_b32 v2, {fhex(QSCALE)}
    v_mov_b32 v3, 1.0
    s_mul_i32 s3, s3, 320
    s_add_u32 s3, s3, {3*2560 - 160*16}
    v_add_u32 v4, s3, v6
    v_cmp_lt_u32 vcc, 159, v0
    v_add_u32 v5, 2560, v4
    v_subrev_u32 v8, 160, v0
    v_cndmask_b32 v1, v1, v5, vcc
    v_cndmask_b32 v7, v7, v8, vcc
    v_cndmask_b32 v{VP_SC}, v2, v3, vcc
    v_cndmask_b32 v9, v6, v4, vcc
    s_mul_i32 s3, s{S_CT}, 320
    s_add_u32 s3, s3, {2*2560 - 180*16}
    v_cmp_lt_u32 vcc, 179, v0
    v_add_u32 v4, s3, v6
    v_add_u32 v5, {3*2560}, v4
    v_cndmask_b32 v{VP_O1}, v9, v4, vcc
    v_cndmask_b32 v{VP_O2}, v1, v5, vcc
    v_cndmask_b32 v{VP_AD}, v3, 0, vcc
    v_cmp_lt_u32 vcc, 199, v0
    v_cndmask_b32 v7, v7, v0, vcc
    v_lshrrev_b32 v4, 1, v7
    v_lshlrev_b32 v4, 6, v4
    v_and_b32 v5, 1, v7
    v_lshl_add_u32 v{VP_LA}, v5, 4, v4
    """)


def kv_switch(q):
    tl, t1, t2 = V_T, V_T + 1, V_T + 2
    lane_id(q, tl)
    q(f"""
    v_lshrrev_b32 v{t1}, 4, v{tl}
    v_and_b32 v{t2}, 15, v{tl}
    v_lshlrev_b32 v{tl}, 2, v{t1}
    v_xor_b32 v{t2}, v{tl}, v{t2}
    v_lshlrev_b32 v{t2}, 4, v{t2}
    v_lshl_add_u32 v{t2}, v{t1}, 8, v{t2}
    s_lshl_b32 s{S_T0}, s{S_WAVE}, 11
    s_add_u32 s{S_T0}, s{S_T0}, 4096
    v_add_u32 v{V_DMA}, s{S_T0}, v{t2}
    v_subrev_u32 v{V_DMA+1}, 16, v{V_DMA}
    v_mov_b32 v{V_DMA+2}, v{V_DMA}
    v_mov_b32 v{V_DMA+3}, v{V_DMA+1}
    s_mov_b32 s{S_DA}, s{S_KS}
    s_mov_b32 s{S_DA+1}, s{S_KS+1}
    s_mov_b32 s{S_DA+2}, s{S_KS+2}
    s_mov_b32 s{S_DB}, s{S_VS}
    s_mov_b32 s{S_DB+1}, s{S_VS+1}
    s_mov_b32 s{S_DB+2}, 0
    s_mov_b32 s{S_DOFF}, 0
    s_mov_b32 s{S_DSTEP}, 8192
    """)


def wo_dma(sl):
    pc = WO_PIECE[sl]
    L = [f"s_mov_b32 s{S_T1}, s{S_CT}" if sl == 0 else f"s_cmp_gt_u32 s{S_CT}, {sl-1}\ns_cselect_b32 s{S_T1}, {sl-1}, {sl}",
         f"s_mul_i32 s{S_T1}, s{S_T1}, {128*1280}",
         f"s_add_u32 s{S_T1}, s{S_T1}, s{S_WOO}", f"s_add_u32 m0, s{S_W5}, {pc[0]*5120}"]
    if pc[3] != pc[0] + 3:
        L[-1] += f"\ns_cmp_eq_u32 s{S_WAVE}, 3\ns_cselect_b32 m0, {pc[3]*5120}, m0"
    L += [f"buffer_load_dwordx4 v{V_WD+i}, s[{S_XN}:{S_XN+3}], s{S_T1} offen offset:{1024*i} lds" for i in range(4)]
    L += [f"s_add_u32 m0, m0, 4096", f"buffer_load_dwordx4 v{V_WD+4}, s[{S_XN}:{S_XN+3}], s{S_T1} offen lds"]
    return L

def spread(f, L, slots):
    gi = 0; k = 0
    for x in L:
        if x.startswith('buffer') or x.startswith('global'):
            put(f, [x], [slots[gi]]); gi += 1; k = 0
        else:
            lo = slots[gi - 1] if gi else max(slots[0] - 3, 0)
            hi = max(lo, slots[gi] - 1) if gi < len(slots) else lo
            put(f, [x], [min(lo + k // 2, hi)]); k += 1

def attn_body(p, last=False):
    M = qk_mfmas(0, 'negm') + pv_mfmas(0) + qk_mfmas(1, 'negm') + pv_mfmas(1)
    f1, f2 = {}, {}
    put(f1, ["s_barrier"], [0])
    put(f1, v_reads(0), [1, 1, 2, 3, 4, 5, 6, 7, 8, 9, 10, 11, 12, 13, 13, 14])
    put(f1, [mksync(regs=[a(A_V, 16)])], [15])
    put(f1, [mksync(regs=[a(A_V + 16, 16)])], [22])
    put(f1, k_reads(0), [16, 17, 18, 19, 20, 21, 23, 24])
    put(f1, [mksync(lgkm=0)], [31])
    put(f2, v_reads(SLOT), [0, 1, 2, 3, 4, 5, 6, 7, 8, 9, 10, 11, 12, 13, 13, 14])
    put(f2, [mksync(regs=[a(A_V, 16)])], [15])
    put(f2, [mksync(regs=[a(A_V + 16, 16)])], [22])
    if not last:
        dg = dma_pair_at()
        put(f1, dg[:6], [17, 18, 20, 23, 29, 30])
        put(f1, [f"s_mov_b32 m0, s{S_SWR}",
                 f"buffer_load_dwordx4 v{V_WO}, s[{S_KS}:{S_KS+3}], s{S_WIN} offen nt lds",
                 f"s_add_u32 m0, m0, 20480",
                 f"buffer_load_dwordx4 v{V_JO}, s[{S_G}:{S_G+3}], s{S_JIN} offen nt lds",
                 f"buffer_load_dword a{A_SF+4}, v{V_PW}, s[{S_XN}:{S_XN+3}], s{S_PW} offen"], [2, 3, 5, 6, 9])
        put(f1, [f"ds_read_b64_tr_b16 {a(A_SF+2*i,2)}, v{V_SC} offset:{i*1024}" for i in range(2)], [25, 26])
        put(f2, [f"buffer_store_dwordx4 {a(A_SF,4)}, v{V_L16}, s[{S_JB}:{S_JB+3}], s{S_SOFF} offen sc1"], [1])
        put(f2, [f"s_lshl_b32 s{S_SOFF}, s{S_CNT}, 12",
                 f"s_add_u32 s{S_JIN}, s{S_JIN}, 128", f"s_add_u32 s{S_WIN}, s{S_WIN}, {16*3456}", f"s_add_u32 s{S_SWR}, s{S_SWR}, 4096",
                 f"s_add_u32 s{S_PW}, s{S_PW}, 2048"], [5, 2, 3, 6, 7])
        put(f2, [f"v_add_u32 v{V_SC}, 4096, v{V_SC}"], [14])
        put(f2, k_reads(SLOT), [16, 17, 18, 19, 20, 21, 23, 24])
        put(f2, dg[6:], [0, 16, 18, 20, 25, 29])
        put(f2, pos_update_at(), [10, 11, 11, 11, 12, 12])
        put(f2, [f"v_add_u32 v{V_AV+i}, s{S_DELTA}, v{V_AV+i}" for i in range(4)], [17, 19, 21, 23])
        put(f2, [f"v_add_u32 v{V_AK+i}, s{S_DELTA}, v{V_AK+i}" for i in range(4)], [26, 27, 28, 29])
        put(f2, [f"s_add_u32 s{S_CNT}, s{S_CNT}, 1", f"s_cmp_lt_u32 s{S_CNT}, 6", mksync(dma_keep=8, lgkm=0)], [30, 30, 30])
        put(f2, [f"s_cbranch_scc1 {NM}_at"], [31])
    else:
        put(f1, [f"v_accvgpr_read_b32 v{V_WD+i}, a{A_SV+i}" for i in range(5)], [1, 2, 2, 3, 3])
        spread(f1, wo_dma(0) + wo_dma(1)[:7], [6, 8, 11, 15, 19, 25, 27, 29])
        spread(f2, wo_dma(1)[7:] + wo_dma(2), [2, 6, 16, 19, 23, 26, 29])
        put(f2, [f"v_subrev_u32 v{V_AV+i}, {2*PAIR}, v{V_AV+i}" for i in range(4)], [17, 18, 20, 21])
        put(f2, [mksync(dma_keep=10, lgkm=0)], [31])
    order_gap(f1); order_gap(f2)
    vb = OPT.get('verbose')
    p.extend(pack(M[:32], f1, softmax_stream(1, 1), verbose=vb and 'at1'))
    p.extend(pack(M[32:], f2, softmax_stream(0, 0), stop=32 if last else 31, verbose=vb and 'at2'))


def row_sums(p, T):
    for qt in range(2):
        p(f"v_mov_b32 v{T+qt}, v{V_LS+qt}")
    for qt in range(2):
        p(f"v_permlane32_swap_b32 v{V_LS+qt}, v{T+qt}")
    for qt in range(2):
        p(f"v_add_f32 v{V_LS+qt}, v{V_LS+qt}, v{T+qt}")


def exact_path():
    q = Prog()
    VL, VK, VD, VRD, MX = 156, 157, 158, 160, 164
    AK2, SK, SV, SC, SO = 192, 8, 12, S_CNT, S_DOFF
    q(f"{NM}_exact:\ns_waitcnt vmcnt(0) lgkmcnt(0)\ns_nop 15")
    q(f"s_lshl_b32 s{S_T0}, s{S_HEAD}, 19\ns_add_u32 s{S_T0}, s{S_T0}, {1536*256}")
    mksrd(q, SK, P_K, f"s{S_T0}", 512 * 256)
    mksrd(q, SV, P_V, f"s{S_T0}", 512 * 256)
    lane_id(q, VL)
    q(f"""
    v_and_b32 v{VK}, 31, v{VL}
    v_lshlrev_b32 v{VK}, 8, v{VK}
    v_lshrrev_b32 v{MX}, 5, v{VL}
    v_lshl_add_u32 v{VK}, v{MX}, 4, v{VK}
    v_lshrrev_b32 v{MX+1}, 4, v{VL}
    v_and_b32 v{VD}, 15, v{VL}
    v_lshlrev_b32 v{MX+2}, 2, v{MX+1}
    v_xor_b32 v{VD}, v{MX+2}, v{VD}
    v_lshlrev_b32 v{VD}, 4, v{VD}
    v_lshl_add_u32 v{VD}, v{MX+1}, 8, v{VD}
    s_add_u32 s{S_T0}, s{S_W5}, {WO_PIECE[4][0]*5120}
    s_mov_b32 m0, s{S_T0}
    v_lshlrev_b32 v{MX}, 10, v{MX}
    v_bfe_u32 v{MX+2}, v{VL}, 2, 2
    v_lshl_add_u32 v{MX}, v{MX+2}, 8, v{MX}
    v_and_b32 v{MX+1}, 1, v{MX+1}
    v_lshl_add_u32 v{MX}, v{MX+1}, 5, v{MX}
    v_and_b32 v{MX+1}, 3, v{VL}
    v_lshl_add_u32 v{MX}, v{MX+1}, 3, v{MX}
    v_add_u32 v{MX}, s{S_T0}, v{MX}
    """)
    for dt in range(4):
        q(f"v_xor_b32 v{MX+1}, {dt}, v{MX+2}\nv_lshl_add_u32 v{VRD+dt}, v{MX+1}, 6, v{MX}")
    def qk(cinit):
        for m in range(8):
            q(f"buffer_load_dwordx4 {a(AK2+4*m,4)}, v{VK}, s[{SK}:{SK+3}], s{SO} offen offset:{32*m}")
        q("s_waitcnt vmcnt(0)")
        for x in qk_mfmas(0, cinit):
            for m in range(8):
                x = x.replace(f", {a(A_K+4*m,4)},", f", {a(AK2+4*m,4)},")
            q(x)
    q(f"v_mov_b32 v{MX}, 0xff800000\nv_mov_b32 v{MX+2}, 0xff800000\ns_mov_b32 s{SO}, 0")
    q.begin_loop()
    q(f"{NM}_ex1:")
    qk('zero')
    for qt in range(2):
        for i in range(0, 16, 2):
            q(f"v_max3_f32 v{MX+2*qt}, v{MX+2*qt}, v{V_S+16*qt+i}, v{V_S+16*qt+i+1}")
    q(f"s_add_u32 s{SO}, s{SO}, 8192\ns_cmp_lt_u32 s{SO}, {16*8192}\ns_cbranch_scc1 {NM}_ex1")
    q.end_loop(16)
    for qt in range(2):
        m_ = MX + 2 * qt
        q(f"v_mov_b32 v{m_+1}, v{m_}\nv_permlane32_swap_b32 v{m_}, v{m_+1}\nv_max_f32 v{m_}, v{m_}, v{m_+1}")
        for i in range(16):
            q(f"v_sub_f32 v{V_NEGM+16*qt+i}, 0, v{m_}")
    for i in range(128):
        q(f"v_accvgpr_write_b32 a{i}, 0")
    q(f"v_mov_b32 v{V_LS}, 0\nv_mov_b32 v{V_LS+1}, 0\ns_mov_b32 s{SO}, 0")
    q.begin_loop()
    q(f"{NM}_ex2:")
    qk('negm')
    q.extend(softmax_stream(0, 0))
    pv = pv_mfmas(0)
    for ks in range(2):
        for i in range(4):
            q(f"buffer_load_dwordx4 v{VD}, s[{SV}:{SV+3}], s{SO} offen offset:{1024*i} lds")
        q(f"s_add_u32 s{SO}, s{SO}, 4096\ns_waitcnt vmcnt(0)")
        for dt in range(4):
            for jj in range(2):
                q(f"ds_read_b64_tr_b16 {a(A_V+16*ks+4*dt+2*jj,2)}, v{VRD+dt} offset:{2048*jj}")
        q("s_waitcnt lgkmcnt(0)")
        q.extend(pv[8 * ks:8 * ks + 8])
    q(f"s_cmp_lt_u32 s{SO}, {16*8192}\ns_cbranch_scc1 {NM}_ex2")
    q.end_loop(16)
    row_sums(q, MX)
    for i in range(16):
        q(f"v_mov_b32 v{V_P[1]+i}, 0")
    lane_id(q, 90)
    q(f"s_nop 15\ns_branch {NM}_exact_ret")
    q.finalize()
    return q


def phase1(p, outl):
    vb = OPT.get('verbose')
    B1, B2 = V_C, V_C + 16
    for kq in range(4):
        so = f"s{97+kq}" if kq else 0
        p(f"buffer_load_dwordx4 {v(B1+4*kq,4)}, v{VP_O1}, s[{S_G}:{S_G+3}], {so} offen sc1")
        p(f"buffer_load_dwordx4 {v(B2+4*kq,4)}, v{VP_O2}, s[{S_G}:{S_G+3}], {so} offen sc1")
    def xl(lo, hi):
        for t in range(lo, hi):
            p.extend(x_loads(t, (t % 2) * 2048))
            if t % 2 == 1:
                p(f"s_add_u32 s{S_XOFF}, s{S_XOFF}, 4096")
    xl(0, 2)
    p.sync(regs=[v(B1, 32)])
    if OPT.get('st0'): stamp(p)
    for b in (B1, B2):
        p(f"""v_pk_add_f32 {v(b,2)}, {v(b,2)}, {v(b+4,2)}
        v_pk_add_f32 {v(b+2,2)}, {v(b+2,2)}, {v(b+6,2)}
        v_pk_add_f32 {v(b+8,2)}, {v(b+8,2)}, {v(b+12,2)}
        v_pk_add_f32 {v(b+10,2)}, {v(b+10,2)}, {v(b+14,2)}
        v_pk_add_f32 {v(b,2)}, {v(b,2)}, {v(b+8,2)}
        v_pk_add_f32 {v(b+2,2)}, {v(b+2,2)}, {v(b+10,2)}""")
    def rnd(b):
        for e in (0, 2):
            p(f"v_cvt_pk_bf16_f32 v{b+e}, v{b+e}, v{b+e+1}\nv_and_b32 v{b+e+1}, 0xffff0000, v{b+e}\nv_lshlrev_b32 v{b+e}, 16, v{b+e}")
    rnd(B1); rnd(B2)
    for e in range(4):
        p(f"v_add_f32 v{B2+e}, v{VP_AD}, v{B2+e}")
    rnd(B2)
    for b in (B1, B2):
        for e in (0, 2):
            p(f"v_pk_mul_f32 {v(b+e,2)}, {v(b+e,2)}, {v(VP_SC,2)} op_sel_hi:[1,0]")
    p(f"ds_write_b128 v{VP_LA}, {v(B2,4)}\nds_write_b128 v{VP_LA}, {v(B1,4)} offset:32")
    xl(2, 4)
    p.sync(dma_keep=0, lgkm=0)
    p("s_barrier")
    if OPT.get('st0'): stamp(p)
    p.extend(c_reads(0, 0))
    p.extend(a_reads(0, 0))
    p.extend(c_reads(1, 128))
    p.extend(a_reads(1, 1))
    xl(4, 8)
    p.extend(h_valu(0, 0, 0))
    p.sync(regs=[a(A_K, 16), v(V_C + 16, 16), v(V_X + 8, 8)])
    stamp(p)
    p(f"s_mov_b32 m0, s{S_WR}")
    p.begin_loop()
    p(f"{NM}_qp:")
    dg = dma_pair_qp()
    xadv = f"s_add_u32 s{S_XOFF}, s{S_XOFF}, 4096"
    for t in range(8):
        M = [f"v_mfma_f32_32x32x16_bf16 {v(acc(dt,qt),16)}, {a(A_K+16*(t%4)+4*dt,4)}, {v(V_H+8*(t%2)+4*qt,4)}, {v(acc(dt,qt),16)}"
             for dt in range(4) for qt in range(2)]
        f = {}
        ar = a_reads((t + 2) % 4, (t + 2) % 8)
        cr = c_reads(t % 2, (t + 2) * 128)
        sy = mksync(regs=[a(A_K + 16 * ((t + 1) % 4), 16), v(V_C + 16 * (t % 2), 16), v(V_X + 8 * ((t + 2) % 8), 8)],
                    dma_keep=8 if t == 5 else None)
        if t == 6:
            put(f, ["s_barrier"], [0])
            put(f, [f"v_add_u32 v{V_AW+i}, s{S_DELTA}, v{V_AW+i}" for i in range(4)], [0, 1, 2, 2])
            put(f, cr, [1, 1, 2, 2])
            put(f, x_loads(t, 0), [3, 5])
            put(f, ar, [3, 4, 4, 5, 6, 6, 7, 7])
            put(f, [sy], [7])
        else:
            put(f, cr, [0, 0, 1, 1])
            put(f, x_loads(t, (t % 2) * 2048), [2, 4])
            put(f, ar, [2, 3, 3, 4, 5, 5, 6, 7] if t != 7 else [2, 3, 3, 4, 5, 5, 6, 6])
            put(f, [sy], [7] if t != 7 else [6])
        pu = pos_update(); wu = wr_update()
        if t == 0: put(f, dg[1:2] + pu[:1], [6, 7])
        if t == 1: put(f, dg[2:4] + [xadv], [6, 7, 7])
        if t == 2: put(f, dg[4:7], [6, 7, 7])
        if t == 3: put(f, dg[7:8] + [xadv], [6, 7])
        if t == 4: put(f, dg[8:10] + pu[1:], [6, 7, 7, 7])
        if t == 5: put(f, dg[10:12] + [xadv], [6, 7, 7])
        if t == 6: put(f, wu, [2, 4, 7])
        if t == 7:
            put(f, [f"v_add_u32 v{V_CA}, 1024, v{V_CA}", xadv, dg[0], f"s_add_u32 s{S_CNT}, s{S_CNT}, 1"], [3, 4, 5, 5])
            put(f, [f"s_bitcmp1_b32 22, s{S_CNT}", f"s_cbranch_scc1 {NM}_qp"], [6, 7])
        order_gap(f)
        p.extend(pack(M, f, h_valu((t + 1) % 8, (t + 1) % 2, (t + 1) % 2), stop=7 if t == 7 else 8, verbose=vb and f'qp{t}'))
    p.begin_cond()
    p(f"s_cmp_eq_u32 s{S_CNT}, 3\ns_cbranch_scc1 {NM}_switch")
    p.end_cond()
    p.end_loop(5)
    q = Prog()
    q(f"{NM}_switch:")
    kv_switch(q)
    q(f"s_branch {NM}_qp")
    q.finalize()
    outl.append(q)
    stamp(p)
    T = V_H
    BASE = RING0 + PAIR
    lane_id(p, T)
    p(f"""
    v_bfe_u32 v{T+1}, v{T}, 3, 2
    v_mul_u32_u24 v{T+1}, {WBLK}, v{T+1}
    v_bfe_u32 v{T+2}, v{T}, 2, 1
    v_mul_u32_u24 v{T+2}, {PADI}, v{T+2}
    v_add_u32 v{T+1}, v{T+1}, v{T+2}
    v_add_u32 v{T+1}, {BASE}, v{T+1}
    v_and_b32 v{T+2}, 3, v{T}
    v_lshl_add_u32 v{T+1}, v{T+2}, 8, v{T+1}
    v_lshrrev_b32 v{T+3}, 5, v{T}
    v_lshl_add_u32 v{T+1}, v{T+3}, 4, v{T+1}
    """)
    for mm in range(4):
        p(f"v_xor_b32 v{T+4}, {mm}, v{T+2}\nv_lshl_add_u32 v{V_AK+mm}, v{T+4}, 6, v{T+1}")
    p.sync(lgkm=0)
    p.extend(k_reads(SLOT))
    p(f"""s_mov_b32 s{S_DB+2}, s{S_VS+2}
    s_add_u32 s{S_RDB}, s{S_WOFF}, {PAIR}
    s_mov_b32 s{S_CM3}, {(-2*PAIR) & 0xffffffff}
    s_mov_b32 s{S_SOFF}, 20480""")
    p.extend(dma_pair_at())
    p(f"""
    v_mul_u32_u24 v{T+1}, {PADI}, v{T+3}
    v_bfe_u32 v{T+2}, v{T}, 2, 2
    v_lshl_add_u32 v{T+1}, v{T+2}, 8, v{T+1}
    v_bfe_u32 v{T+4}, v{T}, 4, 1
    v_lshl_add_u32 v{T+1}, v{T+4}, 5, v{T+1}
    v_and_b32 v{T+4}, 3, v{T}
    v_lshl_add_u32 v{T+1}, v{T+4}, 3, v{T+1}
    v_add_u32 v{T+1}, {BASE}, v{T+1}
    """)
    for dt in range(4):
        p(f"v_xor_b32 v{T+5}, {dt}, v{T+2}\nv_lshl_add_u32 v{V_AV+dt}, v{T+5}, 6, v{T+1}")
    p(f"v_mov_b32 v{V_LS}, 0\nv_mov_b32 v{V_LS+1}, 0")
    for tile in range(8):
        for i in range(8):
            p(f"v_cvt_pk_bf16_f32 v{8*tile+i}, v{16*tile+2*i}, v{16*tile+2*i+1}")
    upd = lambda: pos_update_at() + [f"v_add_u32 v{V_AV+i}, s{S_DELTA}, v{V_AV+i}" for i in range(4)] + \
        [f"v_add_u32 v{V_AK+i}, s{S_DELTA}, v{V_AK+i}" for i in range(4)]
    p.extend(upd())
    mksrd(p, S_XN, P_WO, None, SZ_WO)
    mksrd(p, S_G, P_WD, None, f"s{S_JBN}")
    p(f"""s_cmp_lt_u32 s{S_WAVE}, 2
    s_cselect_b32 s{S_KS}, s{P_WG}, s{P_WU}
    s_cselect_b32 s{S_KS+1}, s{P_WG+1}, s{P_WU+1}
    s_cmp_lt_u32 s2, 216
    s_cselect_b32 s{S_KS+2}, {SZ_WG}, 0""")
    p.sync(dma_keep=8, lgkm=0)
    f = {}
    put(f, ["s_barrier"], [0])
    dg = dma_pair_at()
    put(f, dg, [0, 1, 3, 5, 7, 7, 8, 9, 10, 12, 14, 14])
    if not OPT.get('noxw'):
        put(f, [f"v_accvgpr_read_b32 v{T+8}, a{A_SV+5}", f"global_load_dword a{A_SF+5}, v{T+8}, s[{P_X}:{P_X+1}]"], [11, 13])
    put(f, k_reads(0), [15] * 8)
    order_gap(f)
    p.extend(pack(qk_mfmas(0, 'zero'), f, [], verbose=vb and 'it-1'))
    for qt in range(2):
        S = V_S + 16 * qt
        m = V_NEGM + 16 * qt
        p(f"""v_max3_f32 v{m}, v{S}, v{S+1}, v{S+2}
        v_max3_f32 v{m+1}, v{S+3}, v{S+4}, v{S+5}
        v_max3_f32 v{m}, v{m}, v{S+6}, v{S+7}
        v_max3_f32 v{m+1}, v{m+1}, v{S+8}, v{S+9}
        v_max3_f32 v{m}, v{m}, v{S+10}, v{S+11}
        v_max3_f32 v{m+1}, v{m+1}, v{S+12}, v{S+13}
        v_max3_f32 v{m}, v{m}, v{S+14}, v{S+15}
        v_max_f32 v{m}, v{m}, v{m+1}
        v_mov_b32 v{m+1}, v{m}""")
    for qt in range(2):
        p(f"v_permlane32_swap_b32 v{V_NEGM+16*qt}, v{V_NEGM+16*qt+1}")
    for qt in range(2):
        m = V_NEGM + 16 * qt
        p(f"v_max_f32 v{m}, v{m}, v{m+1}\nv_sub_f32 v{m}, 0, v{m}")
    for qt in range(2):
        for i in range(1, 16):
            p(f"v_mov_b32 v{V_NEGM+16*qt+i}, v{V_NEGM+16*qt}")
    p(f"""
    v_lshrrev_b32 v{T+1}, 5, v{T}
    v_bfe_u32 v{T+3}, v{T}, 2, 3
    v_lshl_add_u32 v{T+1}, v{T+1}, 4, v{T+3}
    v_lshlrev_b32 v{T+1}, 7, v{T+1}
    v_lshl_add_u32 v{T+1}, v{T+4}, 3, v{T+1}
    s_lshl_b32 s{S_T0}, s{S_WAVE}, 5
    s_add_u32 s{S_T0}, s{S_T0}, {IMG_B - 4096}
    v_lshlrev_b32 v{V_PW}, 5, v{T}
    v_add_u32 v{V_SC}, s{S_T0}, v{T+1}
    v_lshrrev_b32 v{T+1}, 3, v{T}
    v_and_b32 v{T+3}, 7, v{T}
    v_lshlrev_b32 v{T+3}, 4, v{T+3}
    v_mul_u32_u24 v{V_JO}, 1280, v{T+1}
    v_add_u32 v{V_JO}, v{V_JO}, v{T+3}
    v_mul_u32_u24 v{V_WO}, 3456, v{T+1}
    v_add_u32 v{V_WO}, v{V_WO}, v{T+3}
    s_lshl_b32 s{S_SWR}, s{S_WAVE}, 10
    s_add_u32 s{S_SWR}, s{S_SWR}, {IMG_W}
    """)
    stamp(p)
    sub = [f"v_add_f32 v{V_S+16*qt+r}, v{V_NEGM+16*qt}, v{V_S+16*qt+r}" for ks in range(2) for qt in range(2) for r in range(8*ks, 8*ks+8)]
    sm = softmax_stream(0, 0)
    st = sub[:2]; k = 2
    for x in sm:
        st.append(x)
        if x.startswith('v_exp') and k < 32:
            st.append(sub[k]); k += 1
    p.sync(lgkm=0)
    f = {}
    put(f, k_reads(SLOT), [15] * 8)
    p.extend(pack(qk_mfmas(1, 'negm'), f, st, verbose=vb and 'it0'))
    p.extend(upd())
    p(f"s_mov_b32 s{S_CNT}, 0")
    p.sync(dma_keep=8, lgkm=0)
    p.begin_loop()
    p(f"{NM}_at:")
    attn_body(p)
    p.end_loop(6)
    attn_body(p, last=True)
    p("s_barrier")
    p.extend(v_reads(0))
    sm = softmax_stream(1, 1)
    p.extend(sm[:10])
    f = {}
    put(f, v_reads(SLOT, A_K), [i * 12 // 16 for i in range(16)])
    spread(f, wo_dma(3), [4, 7, 12, 13, 14])
    order_gap(f)
    p.extend(pack(pv_mfmas(0), f, sm[10:], verbose=vb and 'it15'))
    T = 88
    row_sums(p, T)
    p(f"""s_mov_b32 s3, {fhex(0.0 if OPT.get('forcefb') else 2.0**80)}
    v_add_f32 v{T}, v{V_LS}, v{V_LS+1}
    v_cmp_ngt_f32 vcc, s3, v{T}""")
    lane_id(p, T + 2)
    p(f"s_cbranch_vccnz {NM}_exact\n{NM}_exact_ret:")
    outl.append(exact_path())
    q = Prog()
    for qt in range(2):
        q(f"v_rcp_f32 v{T+4+2*qt}, v{V_LS+qt}")
    q(f"""
    v_lshrrev_b32 v{T}, 5, v{T+2}
    v_bfe_u32 v{T+1}, v{T+2}, 2, 3
    v_lshl_add_u32 v{T}, v{T}, 4, v{T+1}
    v_mul_u32_u24 v{T}, 160, v{T}
    v_and_b32 v{T+1}, 3, v{T+2}
    v_lshl_add_u32 v{V_AR}, v{T+1}, 3, v{T}
    v_add_u32 v{V_AR+1}, 57344, v{V_AR}
    v_add_u32 v{V_AR+2}, {2*57344}, v{V_AR}
    """)
    for dt in range(4):
        q(f"s_mov_b32 s{S_OOFF+dt}, {dt*4096}")
    head = [x.text for x in q.items]
    def norm(n, packed):
        dt, qt = n >> 1, n & 1
        B = 16 * (n % 4)
        O = V_OF + 8 * n
        L = [f"v_accvgpr_read_b32 v{B+i}, a{oacc(dt,qt)+i}" for i in range(16)]
        if packed:
            L += [f"v_pk_mul_f32 {v(B+2*i,2)}, {v(B+2*i,2)}, {v(T+4+2*qt,2)} op_sel_hi:[1,0]" for i in range(8)]
        else:
            L += [f"v_mul_f32 v{B+i}, v{T+4+2*qt}, v{B+i}" for i in range(16)]
        L += [f"v_cvt_pk_bf16_f32 v{O+i}, v{B+2*i}, v{B+2*i+1}" for i in range(8)]
        L += [f"v_permlane16_swap_b32 v{O+i}, v{O+4+i}" for i in range(4)]
        L += [f"buffer_store_dwordx4 {v(O+4*h,4)}, v{V_L16}, s[{S_O}:{S_O+3}], s{S_OOFF+dt} offen offset:{qt*2048+h*1024} sc1" for h in range(2)]
        return L
    M = pv_mfmas(1, A_K)
    M = [M[8 * ks + i] for i in range(8) for ks in range(2)]
    f = {}
    spread(f, wo_dma(4), [2, 3, 4, 5, 6])
    p.extend(pack(M, f, head + norm(0, False), verbose=vb and 'it16'))
    stamp(p)
    for n in range(1, 8):
        p.extend(norm(n, True))
        if n == 5: p.extend(p2_ard(0))
    stamp(p)


V_OF = 160
V_AR = 84
V_CK = 153
V_GC = 155
V_WR = 192
A_A2 = 160
A_GA = 200
S_F1I = 4

def p2_ard(t):
    base = WO_PIECE[t // 4][t % 4] * 5120
    k = base // 57344
    return [f"ds_read_b64_tr_b16 {a(A_A2+20*(t%2)+4*c+2*jj,2)}, v{V_AR+k} offset:{base-k*57344+32*c+1280*jj}" for c in range(5) for jj in range(2)]

def check_then_poll(p, va, vd, expect):
    global npoll
    lab = f"{NM}_ck{npoll}"
    p(f"v_cmp_gt_u32 vcc, {expect}, v{vd}\ns_cbranch_vccz {lab}")
    p.begin_cond()
    poll(p, va, vd, expect)
    p.end_cond()
    p(f"{lab}:")


WP_CB = [96, 112, 128, 160, 176]
def wp_reads(p, VL):
    A = 214
    p(f"""
    v_lshrrev_b32 v{A}, 5, v{VL}
    v_lshlrev_b32 v218, 6, v{A}
    v_lshlrev_b32 v219, 10, v{A}
    v_bfe_u32 v{A}, v{VL}, 2, 2
    v_lshl_add_u32 v219, v{A}, 7, v219
    v_bfe_u32 v{A}, v{VL}, 4, 1
    v_lshl_add_u32 v219, v{A}, 11, v219
    v_and_b32 v{A}, 3, v{VL}
    v_lshl_add_u32 v219, v{A}, 3, v219
    s_lshl_b32 s3, s{S_WAVE}, 5
    v_add_u32 v219, s3, v219
    """)
    for s_ in range(5):
        for jj in range(2):
            p(f"ds_read_b64_tr_b16 {v(V_WR+4*s_+2*jj,2)}, v219 offset:{IMG_W+4096*s_+512*jj}")
        for i in range(4):
            p(f"ds_read_b128 {v(WP_CB[s_]+4*i,4)}, v218 offset:{LDS_TABW+128*s_+16*i}")

def wp_compute(p):
    A, B_, CS, BI = 214, 215, 216, 217
    RW = V_WR
    p(f"s_mov_b32 s3, 0x3f803f80\nv_mov_b32 v{CS}, 0\nv_mov_b32 v{BI}, 0")
    for s_ in range(5):
        for d in range(4):
            w = RW + 4 * s_ + d
            c = WP_CB[s_] + 2 * d
            p(f"""v_lshlrev_b32 v{A}, 16, v{w}
            v_and_b32 v{B_}, 0xffff0000, v{w}
            v_fmac_f32 v{BI}, v{c+8}, v{A}
            v_fmac_f32 v{BI}, v{c+9}, v{B_}
            v_pk_mul_f32 {v(A,2)}, {v(c,2)}, {v(A,2)}
            v_cvt_pk_bf16_f32 v{w}, v{A}, v{B_}
            v_dot2_f32_bf16 v{CS}, v{w}, s3, v{CS}""")
    p(f"""
    v_mov_b32 v{B_}, v{BI}
    v_mov_b32 v{A}, v{CS}
    v_permlane32_swap_b32 v{BI}, v{B_}
    v_permlane32_swap_b32 v{CS}, v{A}
    v_add_f32 v{CS}, v{CS}, v{A}
    v_add_f32 v{BI}, v{BI}, v{B_}
    v_cvt_pk_bf16_f32 v{V_WR+20}, v{CS}, v{BI}
    v_lshrrev_b32 v{V_WR+21}, 2, v{V_L16}
    """)

def wp_stores(srdn):
    L = []
    for s_ in range(5):
        L.append(f"buffer_store_dwordx4 {v(V_WR+4*s_,4)}, v{V_L16}, s[{srdn}:{srdn+3}], s{S_WPO} offen sc1")
        if s_ < 4: L.append(f"s_add_u32 s{S_WPO}, s{S_WPO}, {108*1024}")
    L += ["s_mov_b32 exec_hi, 0", f"buffer_store_dword v{V_WR+20}, v{V_WR+21}, s[{srdn}:{srdn+3}], s{S_WPX} offen sc1", "s_mov_b32 exec_hi, -1"]
    return L


V_X1 = 240
V_RM = 250
V_TOK, V_G4 = 251, 252
V_GB = 220
V_L16B = 254
AST = 40960
RED = LDS_TOTAL - 61440
S_B2, S_A2 = 8, 12
S_A4 = 40
S_AO4 = 44
V_VB, V_RW, V_RR = 80, 84, 87

def shard_addr(p, vd, cbase):
    p(f"v_and_b32 v{vd}, 0x1f0, v{V_L16}\nv_lshlrev_b32 v{vd}, 4, v{vd}\nv_add_u32 v{vd}, {WS_CNT + cbase*256}, v{vd}")

def a_srd(p, srdn, NKS, PER, WS_A):
    p(f"""
    s_mul_i32 s{S_T2}, s{S_WAVE}, {PER}
    s_lshl_b32 s{S_T1}, s{S_T2}, 3
    s_add_u32 s{S_T1}, s{S_T1}, s{S_CT}
    s_mul_i32 s{S_T1}, s{S_T1}, 5120
    s_add_u32 s{S_T1}, s{S_T1}, {WS_A}
    s_sub_u32 s{S_T2}, {NKS}, s{S_T2}
    s_min_u32 s{S_T2}, s{S_T2}, {PER}
    s_mul_i32 s{S_T2}, s{S_T2}, {AST}
    s_sub_u32 s{S_T2}, s{S_T2}, {AST-5120}
    """)
    mksrd(p, srdn, P_WS, f"s{S_T1}", f"s{S_T2}")

def rot_addrs(p):
    for r in range(4):
        p(f"s_add_u32 s{S_T0}, s{S_WAVE}, {r}\ns_and_b32 s{S_T0}, s{S_T0}, 3\ns_mul_i32 s{S_T1}, s{S_T0}, {54*4096}\nv_add_u32 v{V_VB+r}, s{S_T1}, v{V_L16}")
        p(f"s_mul_i32 s{S_T1}, s{S_T0}, 15360\ns_add_u32 s{S_T1}, s{S_T1}, {RED + max(r-1,0)*5120}")
        p(f"v_add_u32 v{V_RW+r-1 if r else V_RR}, s{S_T1}, v{V_L16}")

def aloads(afr, j, srdn, so):
    L = [f"buffer_load_dwordx4 {afr(j,i)}, v{V_L16}, s[{srdn}:{srdn+3}], s{so} offen offset:{1024*i} sc1" for i in range(4)]
    L.append(f"buffer_load_dwordx4 {afr(j,4)}, v{V_L16B}, s[{srdn}:{srdn+3}], s{so} offen sc1")
    L.append(f"s_add_u32 s{so}, s{so}, {AST}")
    return L

def bfr(j, i, n=4): return v(96 + 16 * (j % 4) + 4 * i, n)
def bloads(j, srdn, so):
    return [f"buffer_load_dwordx4 {bfr(j,i)}, v{V_VB+i}, s[{srdn}:{srdn+3}], s{so} offen {OPT.get('bflag', 'sc1')}" for i in range(4)] + [f"s_add_u32 s{so}, s{so}, 4096"]

def afr4(j, i, n=4):
    if j < 6: return a(96 + 20 * j + 4 * i, n)
    if j < 9: return v(160 + 20 * (j - 6) + 4 * i, n)
    if j < 13: return a(20 * (j - 9) + 4 * i, n)
    assert n == 4
    return a(80 + 4 * i, 4) if i < 4 else a(216, 4)

def gemm_steps(p, N, afr, extra):
    for t in range(N):
        order = [(r, c) for r in ((1, 2, 3, 0) if t == N - 1 else range(4)) for c in range(5)]
        M = [f"v_mfma_f32_16x16x32_bf16 {v(4*(5*r+c),4)}, {afr(t,c)}, {bfr(t,r)}, {'0' if t == 0 else v(4*(5*r+c),4)}" for r, c in order]
        p.sync(regs=[afr(t, i) for i in range(5)] + [bfr(t, 0, 16)])
        if OPT.get('st3') and N == 32 and t in (0, 1, 4, 8, 12, 16, 20, 24, 28): stamp(p)
        L = list(extra(t))
        f = {}
        if t == N - 1:
            wr = [f"ds_write_b128 v{V_RW+r-1}, {v(4*(5*r+c),4)} offset:{c*1024}" for r in (1, 2) for c in range(5)]
            put(f, wr, [9, 10, 11, 12, 13, 14, 15, 16, 17, 18])
        p.extend(pack(M, f, L, budget=8))

def reduce_tile(p, side):
    side = list(side)
    def mix(L, every):
        for i, x in enumerate(L):
            p.add(x)
            if i % every == every - 1:
                while side:
                    y = side.pop(0); p.add(y)
                    if y.startswith('buffer'): break
    mix([f"ds_write_b128 v{V_RW+2}, {v(4*(15+c),4)} offset:{c*1024}" for c in range(5)], 1)
    p.sync(lgkm=0)
    p("s_barrier")
    for s_ in range(3):
        for c in range(5):
            p(f"ds_read_b128 {v(20+20*s_+4*c,4)}, v{V_RR} offset:{s_*5120+c*1024}")
    L = [f"v_pk_add_f32 {v(2*i,2)}, {v(2*i,2)}, {v(20+2*i,2)}" for i in range(10)]
    L += [f"v_pk_add_f32 {v(40+2*i,2)}, {v(40+2*i,2)}, {v(60+2*i,2)}" for i in range(10)]
    L += [f"v_pk_add_f32 {v(2*i,2)}, {v(2*i,2)}, {v(40+2*i,2)}" for i in range(10)]
    mix(L, 3)
    return side, mix

def residual(G, XR, dst):
    L = []
    for d in range(10):
        L += [f"v_lshlrev_b32 v40, 16, v{XR+d}", f"v_and_b32 v41, 0xffff0000, v{XR+d}",
              f"v_pk_fma_f32 v[40:41], {v(G+2*d,2)}, {v(2*d,2)}, v[40:41]",
              f"v_cvt_pk_bf16_f32 v{dst+d}, v40, v41"]
    return L


def phase2(p):
    V_GA, T = 160, 88
    S_BO, S_WS_, S_PB, S_O2, S_O3, S_PO = 12, 52, 52, 8, 16, 13
    RB2 = OPT.get('rb2', 6)
    afr = lambda t, c, n=4: a(A_A2 + 20 * (t % 2) + 4 * c, n)
    S_B0 = 98
    def bfr2(t, r, n=4):
        if t < 4: return v(V_OF + 16 * t + 4 * r, n)
        if r == 0: return a((12 * RB2 + 4 * (t - 4)) % 160, n)
        return a(12 * (t % RB2) + 4 * (r - 1), n)
    ard = p2_ard
    def adv(t, so):
        nx = (t + 1) // 4
        return [f"s_cmp_gt_u32 s{S_CT}, {nx-1}\ns_cselect_b32 s{so}, {nx-1}, {nx}\ns_lshl_b32 s{so}, s{so}, 14"] if t % 4 == 3 else [f"s_add_u32 s{so}, s{so}, 4096"]
    def bl(t):
        return [f"buffer_load_dwordx4 {bfr2(t,r)}, v{V_L16}, s[{S_B2}:{S_B2+3}], s{S_BO} offen offset:{1024*r} sc1" for r in (1, 2, 3)] + adv(t, S_BO)
    def bl0(t):
        return [f"buffer_load_dwordx4 {bfr2(t,0)}, v{V_L16}, s[{S_B2}:{S_B2+3}], s{S_B0} offen sc1"] + adv(t, S_B0)
    def mf(t):
        rs = range(4) if t < 4 else (1, 2, 3)
        order = [(r, c) for r in rs for c in range(5)] if t == 31 else [(r, c) for c in range(5) for r in rs]
        return [f"v_mfma_f32_16x16x32_bf16 {v(4*(5*r+c),4)}, {afr(t,c)}, {bfr2(t,r)}, {'0' if t == 0 else v(4*(5*r+c),4)}" for r, c in order]
    def setup(q):
        q(f"""
        s_lshl_b32 s{S_T1}, s{S_Q2}, 2
        s_add_u32 s{S_T1}, s{S_T1}, s{S_WAVE}
        s_lshl_b32 s{S_T1}, s{S_T1}, 2
        s_add_u32 s{S_T1}, s{S_T1}, s{S_KQ}
        s_add_u32 s{S_F1I}, s{S_T1}, {C_F1}
        s_lshl_b32 s{S_T0}, s{S_T1}, 17
        s_add_u32 s{S_T0}, s{S_T0}, {WS_O}
        s_cmp_eq_u32 s{S_CT}, 0
        s_cselect_b32 s{S_BO}, 16384, 0
        s_mov_b32 s{S_B0}, s{S_BO}
        """)
        mksrd(q, S_B2, P_WS, f"s{S_T0}", 32 * 4096)
        tile_addr(q, T + 2, V_G4, V_TOK, V_RM)
        q(f"v_add_u32 v{V_L16B}, 4096, v{V_L16}")
        q(f"v_lshrrev_b32 v{T}, 1, v{V_G4}\nv_lshlrev_b32 v{T}, 6, v{T}\nv_and_b32 v{T+1}, 1, v{V_G4}\nv_lshl_add_u32 v{T}, v{T+1}, 4, v{T}")
    su = texts(setup)
    n4 = (len(su) + 3) // 4
    p.sync(lgkm=0)
    for t in range(4):
        f = {}
        if t < 3:
            put(f, ard(t + 1), [1, 2, 3, 4, 6, 7, 8, 10, 11, 12])
            put(f, [mksync(regs=[afr(t + 1, 0, 20)])], [19])
        p.extend(pack(mf(t), f, su[n4 * t:n4 * t + n4], budget=8))
    p("s_waitcnt vmcnt(0)")
    signal(p, S_F1I, T + 3, T + 4)
    stamp(p)
    for t in range(5):
        p(f"ds_read_b128 {v(V_GB+4*t,4)}, v{T} offset:{LDS_TABG+128*t}")
        p(f"ds_read_b128 {a(A_GA+4*t,4)}, v{T} offset:{LDS_TABG+128*t+32}")
    wp_reads(p, T + 2)
    p.sync(lgkm=0)
    p("s_barrier")
    p.extend(ard(4))
    def rest(q):
        wp_compute(q)
        mksrd(q, S_WS_, P_WS, WS_WP, 41 * 108 * 1024)
        q(f"s_cmp_lt_u32 s2, 216\ns_cselect_b32 s{S_WS_+2}, s{S_WS_+2}, 0")
        for r in range(1, 4):
            q(f"s_add_u32 s{S_T0}, s{S_KQ}, {r}\ns_and_b32 s{S_T0}, s{S_T0}, 3\ns_mul_i32 s{S_PO+r-1}, s{S_T0}, 7680\ns_add_u32 s{S_PO+r-1}, s{S_PO+r-1}, {(r-1)*2560}")
    p.extend(merge(texts(rest), wo_dma(5) + wo_dma(6) + wo_dma(7)))
    poll(p, T + 3, T + 4, 8)
    stamp(p)
    nxt = 8
    for t in range(4, nxt):
        p.extend(bl(t))
    p3_setup(p)
    def pk(r):
        return [f"v_cvt_pk_bf16_f32 v{20*r+d}, v{20*r+2*d}, v{20*r+2*d+1}" for d in range(10)] + \
               [f"buffer_store_dwordx4 {v(20*r,4)}, v{V_L16}, s[{S_PB}:{S_PB+3}], s{S_PO+r-1} offen sc1",
                f"buffer_store_dwordx4 {v(20*r+4,4)}, v{V_L16}, s[{S_PB}:{S_PB+3}], s{S_PO+r-1} offen offset:1024 sc1",
                f"buffer_store_dwordx2 {v(20*r+8,2)}, v{T+4}, s[{S_PB}:{S_PB+3}], s{S_PO+r-1} offen offset:2048 sc1"]
    A3 = [96, 116, 160]
    def ard2(t):
        L = []
        for x, (c, jj) in zip(ard(t), [(c, jj) for c in range(5) for jj in range(2)]):
            L.append(re.sub(r'a\[\d+:\d+\]', v(A3[t % 3] + 4 * c + 2 * jj, 2), x))
        return L
    p.sync(regs=[bfr2(4, 1, 12)], lgkm=0)
    n0 = 4
    NE = OPT.get('ne', 6)
    WPS = OPT.get('wps', 10)
    for t in range(4, 32):
        M = mf(t)
        if OPT.get('st3') and t % 4 == 0: stamp(p)
        f = {}
        if t == 19:
            put(f, ["s_barrier"], [0])
        if t < 31:
            put(f, ard(t + 1), [1, 1, 2, 3, 5, 5, 6, 7, 9, 9])
            if nxt < 32:
                if nxt < t + RB2 - 1 and t % 2 == 0 and nxt < 31:
                    spread(f, bl(nxt) + bl(nxt + 1), [0, 4, 8, 10, 11, 12]); nxt += 2
                else:
                    spread(f, bl(nxt), [4, 8, 11]); nxt += 1
            elif t == 30 and not OPT.get('xlate'):
                put(f, [f"global_load_dwordx2 {v(V_X1+2*i,2)}, v{V_RM}, s[{P_X}:{P_X+1}] offset:{32*i}" for i in range(5)], [0, 4, 8, 10, 11])
            else:
                k = min(4, 4 + NE - n0)
                spread(f, [x for u in range(n0, n0 + k) for x in bl0(u)], [0, 4, 8, 11]); n0 += k
            if WPS <= t < WPS + 6:
                ws = wp_stores(S_WS_)
                ws = [ws[0:2], ws[2:4], ws[4:6], ws[6:8], ws[8:9], ['\n'.join(ws[9:])]][t - WPS]
                put(f, ws, [13] * len(ws))
            put(f, [mksync(regs=[afr(t + 1, 0, 20), bfr2(t + 1, 1, 12)])], [14])
        else:
            put(f, ard2(4), [0, 0, 1, 1, 2, 2, 3, 3, 4, 4])
        q = Prog()
        if t == WPS + 12:
            q(f"s_and_b32 s3, s2, 7\ns_lshl_b32 s3, s3, 2\ns_add_u32 s3, s3, s{S_WAVE}\ns_add_u32 s3, s3, {C_WP}")
            signal(q, 3, T, T + 1)
        if t == 24:
            shard_addr(q, V_CK, C_WP)
            q(f"v_lshrrev_b32 v{T+4}, 1, v{V_L16}")
        if t == 25:
            q(f"s_mul_i32 s3, s{S_GI}, 30720\ns_add_u32 s3, s3, {WS_PB}")
            mksrd(q, S_PB, P_WS, "s3", 30720)
        L = joined(q)
        order_gap(f)
        if t == 31:
            p.extend(pack(M, f, pk(1), budget=8, start=9))
        else:
            p.extend(pack(M, f, L, budget=8, start=10 if L else 0))
    stamp(p)
    p.extend(pk(2) + pk(3))
    nst = n0; nx5 = 0
    p.extend(ard2(5))
    for t in range(4, 32):
        M = [f"v_mfma_f32_16x16x32_bf16 {v(4*c,4)}, {v(A3[t%3]+4*c,4)}, {bfr2(t,0)}, {v(4*c,4)}" for c in range(5)]
        if t == nst:
            p.sync(regs=[bfr2(t, 0)])
            p(f"s_add_u32 s3, s{S_GI}, {C_G}")
            signal(p, 3, V_GC, V_GC + 1)
            p(f"global_load_dword v{V_CK+1}, v{V_CK}, s[{P_WS}:{P_WS+1}] sc1")
            stamp(p)
        p.sync(regs=[v(A3[t % 3], 20), bfr2(t, 0)])
        if OPT.get('st5') and t in (4, 8, 13, 18, 22, 26, 30): stamp(p)
        f = {}
        if t + 2 < 32: put(f, ard2(t + 2), [0, 0, 1, 1, 2, 2, 3, 3, 4, 4])
        if n0 < 32 and (n0 < nst + 8 or t >= nst):
            spread(f, bl0(n0), [2]); n0 += 1
        elif OPT.get('xlate') and n0 == 32 and nx5 < 5:
            put(f, [f"global_load_dwordx2 {v(V_X1+2*nx5,2)}, v{V_RM}, s[{P_X}:{P_X+1}] offset:{32*nx5}"], [2]); nx5 += 1
        if t == OPT.get('gs', 27): put(f, [f"global_load_dword v{V_GC+1}, v{V_GC}, s[{P_WS}:{P_WS+1}] sc1"], [4])
        order_gap(f)
        p.extend(pack(M, f, [], budget=8))
    assert n0 == 32
    if OPT.get('st5'): stamp(p)
    RB_ = 40
    p(f"s_mul_i32 s{S_PO}, s{S_KQ}, 7680\ns_add_u32 s{S_PO+1}, s{S_PO}, 2560\ns_add_u32 s{S_PO+2}, s{S_PO}, 5120")
    check_then_poll(p, V_GC, V_GC + 1, 4)
    for s_ in range(3):
        b = RB_ + 2 + 10 * s_
        p(f"""buffer_load_dwordx4 {v(b,4)}, v{V_L16}, s[{S_PB}:{S_PB+3}], s{S_PO+s_} offen sc1
        buffer_load_dwordx4 {v(b+4,4)}, v{V_L16}, s[{S_PB}:{S_PB+3}], s{S_PO+s_} offen offset:1024 sc1
        buffer_load_dwordx2 {v(b+8,2)}, v{T+4}, s[{S_PB}:{S_PB+3}], s{S_PO+s_} offen offset:2048 sc1""")
    check_then_poll(p, V_CK, V_CK + 1, 32)
    p("s_barrier")
    if OPT.get('st5'): stamp(p)
    mksrd(p, S_O2, P_WS, WS_X1F, 64 * 40 * 1024)
    mksrd(p, S_O3, P_WS, WS_STATS, 8 * 2048 * 8)
    p(f"""
    v_lshrrev_b32 v{T}, 5, v{V_TOK}
    v_mul_u32_u24 v{T}, 40960, v{T}
    v_and_b32 v{T+1}, 31, v{V_TOK}
    v_lshl_add_u32 v{T}, v{T+1}, 4, v{T}
    v_lshrrev_b32 v{T+1}, 1, v{V_G4}
    v_lshl_add_u32 v{T}, v{T+1}, 9, v{T}
    v_and_b32 v{T+1}, 1, v{V_G4}
    v_lshl_add_u32 v{T+2}, v{T+1}, 10, v{T}
    v_lshl_add_u32 v{T}, v{T+1}, 3, v{T}
    v_lshlrev_b32 v{T+3}, 3, v{V_TOK}""")
    S_AO = 12
    p(f"""s_mul_i32 s{S_AO}, s{S_CT}, 5120
    s_add_u32 s98, s{S_AO}, 4096
    s_lshl_b32 s99, s{S_CT}, 14
    s_lshl_b32 s3, s{S_Q2}, 2
    s_add_u32 s3, s3, s{S_WAVE}
    s_lshl_b32 s3, s3, 1
    s_lshr_b32 s{S_T0}, s{S_KQ}, 1
    s_add_u32 s3, s3, s{S_T0}
    s_add_u32 s{S_F1I}, s3, {C_F2}
    s_mov_b32 s100, 0x00003f80
    s_mov_b32 s101, 0x3f800000
    s_mov_b32 s3, 0x3f803f80""")
    stamp(p)
    for g in range(OPT.get('pf3', 1)):
        p.extend(p3_dma(g))
    for i in range(20):
        p(f"v_accvgpr_read_b32 v{V_GA+i}, a{A_GA+i}")
    for s_ in range(3):
        b = RB_ + 2 + 10 * s_
        p.sync(regs=[v(b, 10)])
        for d in range(10):
            p(f"v_dot2_f32_bf16 v{2*d}, v{b+d}, s100, v{2*d}\nv_dot2_f32_bf16 v{2*d+1}, v{b+d}, s101, v{2*d+1}")
    p.extend(residual(V_GA, V_X1, V_X1))
    for d in range(10):
        p(f"v_mov_b32 v{20+d}, v{V_X1+d}")
    p("v_mov_b32 v46, 0\nv_mov_b32 v47, 0")
    for t in (0, 2):
        p(f"v_permlane16_swap_b32 v{20+2*t}, v{22+2*t}\nv_permlane16_swap_b32 v{21+2*t}, v{23+2*t}")
    p(f"""
    buffer_store_dwordx4 v[20:23], v{T+2}, s[{S_O2}:{S_O2+3}], s{S_AO} offen sc1
    buffer_store_dwordx4 v[24:27], v{T+2}, s[{S_O2}:{S_O2+3}], s{S_AO} offen offset:2048 sc1
    buffer_store_dwordx2 v[28:29], v{T}, s[{S_O2}:{S_O2+3}], s98 offen sc1
    """)
    for d in range(10):
        p(f"v_dot2_f32_bf16 v46, v{V_X1+d}, s3, v46\nv_dot2_f32_bf16 v47, v{V_X1+d}, v{V_X1+d}, v47")
    for sw in ('16', '32'):
        p(f"""v_mov_b32 v48, v46
        v_mov_b32 v49, v47
        v_permlane{sw}_swap_b32 v46, v48
        v_permlane{sw}_swap_b32 v47, v49
        v_add_f32 v46, v46, v48
        v_add_f32 v47, v47, v49""")
    p(f"""
    s_mov_b64 exec, 0xffff
    buffer_store_dwordx2 v[46:47], v{T+3}, s[{S_O3}:{S_O3+3}], s99 offen sc1
    s_mov_b64 exec, -1
    s_waitcnt vmcnt(0)
    """)
    signal(p, S_F1I, 0, 1)
    stamp(p)


K3_SLOT, K3_NS = 28672, 5
S_A3, S_B3, S_H3 = 20, 24, 28
S_CG, S_AO3, S_W3, S_TL, S_BO3 = 32, 33, 34, 35, 36

def p3_setup(p):
    p(f"""
    s_and_b32 s{S_TL}, s2, 1
    s_lshl_b32 s{S_TL}, s{S_TL}, 3
    s_lshr_b32 s{S_T0}, s2, 5
    s_add_u32 s{S_TL}, s{S_TL}, s{S_T0}
    s_lshl_b32 s{S_TL}, s{S_TL}, 2
    s_add_u32 s{S_TL}, s{S_TL}, s{S_WAVE}
    s_bfe_u32 s{S_CG}, s2, 0x20001
    s_lshl_b32 s{S_CG}, s{S_CG}, 2
    s_bfe_u32 s{S_T0}, s2, 0x20003
    s_add_u32 s{S_CG}, s{S_CG}, s{S_T0}
    s_mul_i32 s{S_CG}, s{S_CG}, 27
    s_lshr_b32 s{S_CG}, s{S_CG}, 2
    s_mul_i32 s{S_AO3}, s{S_WAVE}, {108*1024}
    s_mul_i32 s{S_W3}, s{S_WAVE}, 7168
    s_mov_b32 s{S_BO3}, 0
    s_lshl_b32 s{S_T0}, s{S_CG}, 10
    s_add_u32 s{S_T0}, s{S_T0}, {WS_WP}
    s_mul_i32 s{S_T1}, s{S_TL}, 40960
    s_add_u32 s{S_T1}, s{S_T1}, {WS_X1F}
    """)
    mksrd(p, S_A3, P_WS, f"s{S_T0}", 40 * 108 * 1024 + 7168)
    mksrd(p, S_B3, P_WS, f"s{S_T1}", 40960)
    p(f"""
    s_lshr_b32 s{S_T0}, s{S_TL}, 1
    s_mul_i32 s{S_T0}, s{S_T0}, {54*4096}
    s_and_b32 s{S_T1}, s{S_TL}, 1
    s_lshl_b32 s{S_T1}, s{S_T1}, 11
    s_add_u32 s{S_T0}, s{S_T0}, s{S_T1}
    s_add_u32 s{S_T0}, s{S_T0}, {WS_HH}
    """)
    mksrd(p, S_H3, P_WS, f"s{S_T0}", 54 * 4096 - 2048)
    a_srd(p, S_A4, 54, 14, WS_WDF)
    p(f"s_mov_b32 s{S_AO4}, 0")

def p3_dma(g):
    base = (g % K3_NS) * K3_SLOT
    if g == 10:
        return [f"s_lshl_b32 s{S_W3}, s{S_WAVE}, 11", f"s_add_u32 s{S_AO3}, s{S_W3}, {40*108*1024}", f"s_add_u32 m0, s{S_W3}, {base}"] + \
               [f"buffer_load_dwordx4 v{V_L16}, s[{S_A3}:{S_A3+3}], s{S_AO3} offen offset:{1024*i} sc1 lds" for i in range(2)]
    L = [f"s_add_u32 m0, s{S_W3}, {base}"]
    L += [f"buffer_load_dwordx4 v{V_L16}, s[{S_A3}:{S_A3+3}], s{S_AO3} offen offset:{1024*i} sc1 lds" for i in range(4)]
    L += [f"s_add_u32 m0, s{S_W3}, {base+4096}"]
    L += [f"buffer_load_dwordx4 v{V_L16B}, s[{S_A3}:{S_A3+3}], s{S_AO3} offen offset:{1024*i} sc1 lds" for i in range(3)]
    L += [f"s_add_u32 s{S_AO3}, s{S_AO3}, {4*108*1024}"]
    return L

def phase3(p):
    V_RD, V_LN, V_ST, V_E, T = 112, 115, 116, 132, 136
    S_STT, S_HO = 8, 12
    A_B, A_A, RB3 = 0, 40, 10
    NP4 = OPT.get('np4', 7)
    def ard(ks):
        slot = (ks // 4) % K3_NS
        if ks == 40:
            return [f"ds_read2st64_b32 {a(A_A+4*i,2)}, v{T+4} offset0:{4*i} offset1:{4*i+1}\nds_read2st64_b32 {a(A_A+4*i+2,2)}, v{T+4} offset0:{4*i+2} offset1:{4*i+3}" for i in range(7)]
        return [f"ds_read_b128 {a(A_A+28*(ks%2)+4*i,4)}, v{V_RD+slot//2} offset:{(slot%2)*K3_SLOT+(ks%4)*7168+i*1024}" for i in range(7)]
    def b_load(t):
        L = [f"buffer_load_dwordx4 {a(A_B+4*(t%RB3),4)}, v{V_L16}, s[{S_B3}:{S_B3+3}], s{S_BO3} offen offset:{(t%4)*1024} sc1"]
        if t % 4 == 3: L.append(f"s_add_u32 s{S_BO3}, s{S_BO3}, 4096")
        return L
    p("s_barrier")
    for g in range(OPT.get('pf3', 1), 5):
        p.extend(p3_dma(g))
    lane_id(p, V_LN)
    p(f"v_mov_b32 v{V_RD}, v{V_L16}\nv_add_u32 v{V_RD+1}, {2*K3_SLOT}, v{V_L16}\nv_add_u32 v{V_RD+2}, {4*K3_SLOT}, v{V_L16}")
    mksrd(p, S_STT, P_WS, WS_STATS, 8 * 2048 * 8)
    p(f"""s_lshl_b32 s{S_T0}, s{S_TL}, 8
    s_add_u32 s{S_T1}, s{S_T0}, {WS_CNT + C_F2*256}
    v_mov_b32 v{T}, s{S_T1}
    v_and_b32 v{T+2}, 31, v{V_LN}
    v_lshlrev_b32 v{T+2}, 3, v{T+2}
    v_lshrrev_b32 v{T+4}, 2, v{V_L16}""")
    p.extend(ard(0))
    poll(p, T, T + 1, 16)
    stamp(p)
    for t in range(RB3 - 1):
        p.extend(b_load(t))
    q = Prog()
    for i in range(8):
        q(f"buffer_load_dwordx2 {v(V_ST+2*i,2)}, v{T+2}, s[{S_STT}:{S_STT+3}], s{S_T0} offen sc1")
        if i < 7: q(f"s_add_u32 s{S_T0}, s{S_T0}, 16384")
    st_loads = [x.text for x in q.items]
    q = Prog()
    q(f"v_add_f32 v{T}, v{V_ST}, v{V_ST+2}\nv_add_f32 v{T+1}, v{V_ST+1}, v{V_ST+3}")
    for i in range(2, 8):
        q(f"v_add_f32 v{T}, v{T}, v{V_ST+2*i}\nv_add_f32 v{T+1}, v{T+1}, v{V_ST+2*i+1}")
    q(f"""v_mul_f32 v{T}, {fhex(1.0/640)}, v{T}
    v_mul_f32 v{T+1}, {fhex(1.0/640)}, v{T+1}
    v_fma_f32 v{T+1}, -v{T}, v{T}, v{T+1}
    v_max_f32 v{T+1}, 0, v{T+1}""")
    round_bf16(q, T + 1, T + 1)
    q(f"v_add_f32 v{T+1}, {fhex(1e-5)}, v{T+1}")
    round_bf16(q, T + 1, T + 1)
    q(f"""v_sqrt_f32 v{T+1}, v{T+1}
    v_sub_f32 v{T}, 0, v{T}
    v_cvt_pk_bf16_f32 v{V_E}, v{T}, v{T+1}
    v_mov_b32 v{V_E+1}, v{V_E}
    v_mov_b32 v{V_E+2}, v{V_E}
    v_mov_b32 v{V_E+3}, v{V_E}
    v_and_b32 v{T+1}, 0xffff0000, v{V_E}
    v_rcp_f32 v{T+1}, v{T+1}
    v_and_b32 v{T+2}, 15, v{V_LN}
    v_lshlrev_b32 v{T+2}, 4, v{T+2}
    v_mul_f32 v{T}, v{T+1}, v{T+1}
    v_mul_f32 v{T+1}, v{T+1}, v{T+1}
    v_bfe_u32 v{T+3}, v{V_LN}, 4, 1
    v_lshl_add_u32 v{T+2}, v{T+3}, 10, v{T+2}
    v_lshrrev_b32 v{T+3}, 5, v{V_LN}
    v_lshl_add_u32 v{T+2}, v{T+3}, 8, v{T+2}""")
    st_math = [x.text for x in q.items]
    q = Prog()
    for i in range(7):
        q(f"""s_add_u32 s{S_T0}, s{S_CG}, {i}
        s_lshr_b32 s{S_T1}, s{S_T0}, 1
        s_lshl_b32 s{S_T1}, s{S_T1}, 12
        s_and_b32 s{S_T0}, s{S_T0}, 1
        s_lshl_b32 s{S_T0}, s{S_T0}, 9
        s_add_u32 s{S_HO+i}, s{S_T0}, s{S_T1}""")
    ho_math = [x.text for x in q.items]
    pend4 = [x for j in range(NP4) for x in aloads(afr4, j, S_A4, S_AO4)]
    p.sync(regs=[a(A_B, 4)], lgkm=0)
    for t in range(41):
        if OPT.get('st4') and t % 4 == 0: stamp(p)
        bsrc = a(A_B + 4 * (t % RB3), 4) if t < 40 else v(V_E, 4)
        M = [f"v_mfma_f32_32x32x16_bf16 {v(16*i,16)}, {a(A_A+28*(t%2)+4*i,4)}, {bsrc}, {'0' if t == 0 else v(16*i,16)}" for i in range(7)]
        f = {}
        mem = []
        abuf = lambda k, lo, n: a(A_A + 28 * (k % 2) + 4 * lo, 4 * n)
        if t > 0 and t % 4 != 3:
            put(f, [mksync(regs=[abuf(t, 4, 3)])], [2])
        if t < 40:
            if t % 4 == 3:
                keep = sum(2 if g_ == 10 else 7 for g_ in range(t // 4 + 2, min(t // 4 + 4, 10) + 1))
                put(f, [mksync(dma_keep=keep, lgkm=0), "s_barrier"], [1, 1])
                put(f, ard(t + 1), [2, 2, 3, 3, 4, 4, 5])
                slots = [0, 5, 6, 6, 6, 6, 6, 6, 6]
            else:
                put(f, ard(t + 1), [0, 0, 1, 1, 3, 3, 4])
                slots = [0, 1, 2, 4, 5, 5, 6, 6, 6]
            if t + RB3 - 1 < 40: mem += b_load(t + RB3 - 1)
            g = t // 4 + 4
            if 5 <= g <= 10 and t % 4 < 3:
                dg = p3_dma(g)
                mem += (dg[:4], dg[4:7], dg[7:])[t % 4]
            if t == 0: mem += st_loads[:7]
            if t == 1: mem += st_loads[7:]
            n4 = {2: 2, 3: 1, 24: 1, 25: 1, 26: 2, 27: 1}.get(t, 0) if t < 28 else (2 if (t < 31 or t % 4 == 3) else 3)
            while pend4 and n4 > 0:
                x = pend4.pop(0); mem.append(x)
                if x.startswith('buffer'): n4 -= 1
            if pend4 and not pend4[0].startswith('buffer'): mem.append(pend4.pop(0))
            nv = sum(1 for x in mem if x.startswith('buffer'))
            if t % 4 != 3 and nv <= 4: slots = [2, 4, 5, 6][-nv:] if nv else []
            gi = 0
            for x in mem:
                if x.startswith('buffer'):
                    put(f, [x], [slots[gi]]); gi += 1
                else:
                    put(f, [x], [slots[gi - 1] if gi else 0])
            nb = [a(A_B + 4 * ((t + 1) % RB3), 4)] if t < 39 else []
            put(f, [mksync(regs=nb + [abuf(t + 1, 0, 4)])], [6])
        stream = st_math[:22] if t == 12 else st_math[22:] if t == 13 else ho_math[:21] if t == 15 else ho_math[21:] if t == 19 else []
        p.extend(pack(M, f, stream, verbose=OPT.get('verbose') and f'p3_{t}'))
    assert not pend4
    stamp(p)
    for i in range(7):
        b = 16 * i
        for r in range(4): p(f"v_pk_mul_f32 {v(b+2*r,2)}, {v(T,2)}, {v(b+2*r,2)}")
        for r in range(4): p(f"v_pk_mul_f32 {v(b+2*r,2)}, {v(b+2*r,2)}, {v(b+8+2*r,2)}")
        for d in range(4): p(f"v_cvt_pk_bf16_f32 v{b+8+d}, v{b+2*d}, v{b+2*d+1}")
        p(f"buffer_store_dwordx4 {v(b+8,4)}, v{T+2}, s[{S_H3}:{S_H3+3}], s{S_HO+i} offen sc1")
    return NP4


def phase4(p, NP4):
    S_B4, S_X, S_BO = 8, 20, 24
    T = 88
    p(f"""s_mul_i32 s{S_T0}, s{S_Q2}, {4*54*4096}
    s_lshl_b32 s{S_T1}, s{S_KQ}, 10
    s_add_u32 s{S_T0}, s{S_T0}, s{S_T1}
    s_add_u32 s{S_T0}, s{S_T0}, {WS_HH}""")
    mksrd(p, S_B4, P_WS, f"s{S_T0}", 4 * 54 * 4096 - 3072)
    mksrd(p, S_X, P_OUT, None, SZ_X)
    p(f"s_mul_i32 s{S_BO}, s{S_WAVE}, {14*4096}\ns_add_u32 s3, s{S_TL}, {C_F3}\ns_waitcnt vmcnt(0)")
    signal(p, 3, 0, 1)
    stamp(p)
    for j in range(NP4, 14):
        p.extend(aloads(afr4, j, S_A4, S_AO4))
    rot_addrs(p)
    p(f"""s_lshl_b32 s{S_T0}, s{S_Q2}, 3
    s_lshr_b32 s{S_T1}, s{S_KQ}, 1
    s_add_u32 s{S_T0}, s{S_T0}, s{S_T1}
    s_lshl_b32 s{S_T0}, s{S_T0}, 8
    s_add_u32 s{S_T0}, s{S_T0}, {WS_CNT + C_F3*256}
    v_and_b32 v{T+2}, 1, v{V_G4}
    v_lshlrev_b32 v{T}, 9, v{V_G4}
    v_add_u32 v{T}, s{S_T0}, v{T}
    v_mul_u32_u24 v{T+2}, 24, v{T+2}
    v_add_u32 v{T+2}, v{V_RM}, v{T+2}
    s_cmp_lg_u32 s{S_WAVE}, 0
    s_cbranch_scc1 {NM}_p4_nopoll""")
    p.begin_cond()
    poll(p, T, T + 1, 16)
    p.end_cond()
    p(f"{NM}_p4_nopoll:\ns_barrier")
    stamp(p)
    for j in range(3):
        p.extend(bloads(j, S_B4, S_BO))
    gemm_steps(p, 14, afr4, lambda t: bloads(t + 3, S_B4, S_BO) if t + 3 < 14 else [])
    stamp(p)
    reduce_tile(p, [])
    p.extend(residual(V_GB, V_X1, 20))
    for t in (0, 2):
        p(f"v_permlane16_swap_b32 v{20+2*t}, v{22+2*t}\nv_permlane16_swap_b32 v{21+2*t}, v{23+2*t}")
    p(f"buffer_store_dwordx4 v[20:23], v{T+2}, s[{S_X}:{S_X+3}], 0 offen {OPT.get('outflag', '')}")
    p(f"buffer_store_dwordx4 v[24:27], v{T+2}, s[{S_X}:{S_X+3}], 0 offen offset:64 {OPT.get('outflag', '')}")
    p(f"buffer_store_dwordx2 v[28:29], v{V_RM}, s[{S_X}:{S_X+3}], 0 offen offset:128 {OPT.get('outflag', '')}")


def gen_mega(opt=None):
    global nstamp, npoll
    nstamp = 0; npoll = 0
    OPT.clear(); OPT.update(opt or {})
    p = Prog()
    outl = []
    p(f"s_cmp_ge_u32 s2, 256\ns_cbranch_scc1 {NM}_end")
    stamp(p)
    if OPT.get('probe'): p("s_memrealtime s[96:97]\ns_waitcnt lgkmcnt(0)\ns_mov_b32 s95, s96")
    phase0(p)
    phase1(p, outl)
    phase2(p)
    phase4(p, phase3(p))
    if OPT.get('stamps'):
        p("s_waitcnt vmcnt(0)")
        p(f"{TIMER()} s[{S_ST}:{S_ST+1}]\ns_waitcnt lgkmcnt(0)")
        p(f"s_lshl_b32 s3, s2, 2\ns_add_u32 s3, s3, s{S_WAVE}\ns_lshl_b32 s3, s3, 7\ns_add_u32 s3, s3, {WS_STAMP}\nv_mov_b32 v0, s3")
        p(f"v_accvgpr_write_b32 a{224+nstamp}, s{S_ST}")
        for i in range(8):
            p(f"global_store_dwordx4 v0, a[{224+4*i}:{227+4*i}], s[{P_WS}:{P_WS+1}] offset:{16*i}")
    if OPT.get('probe'):
        if 'pseg' in OPT:
            p(f"v_accvgpr_read_b32 v0, a{224+OPT['pseg']}\ns_nop 1\nv_readfirstlane_b32 s95, v0")
        p(f"""s_cmp_lg_u32 s2, {OPT.get('pwg', 0)}
        s_cbranch_scc1 {NM}_end
        {NM}_probe:
        s_memrealtime s[96:97]
        s_waitcnt lgkmcnt(0)
        s_sub_u32 s96, s96, s95
        s_cmp_lt_u32 s96, {OPT['probe']*100}
        s_cbranch_scc1 {NM}_probe""")
    if OPT.get('dbgout'):
        p(f"s_cmp_lg_u32 s2, 77\ns_cbranch_scc1 {NM}_end\ns_cmp_lg_u32 s{S_WAVE}, 0\ns_cbranch_scc1 {NM}_end")
        p("v_accvgpr_read_b32 v1, a224\nv_mov_b32 v0, 0")
        sel = [1, 2, 3, 4, 5, 6, 8, 9, 10, 11, 12, 13, 15, 17]
        for n_, k_ in enumerate(sel):
            w_ = n_ + 1 if n_ < 7 else n_ + 2
            p(f"v_accvgpr_read_b32 v2, a{224+k_}\nv_sub_u32 v2, v2, v1\nglobal_store_dword v0, v2, s[{P_DBG}:{P_DBG+1}] offset:{4*w_}")
    p(f"{NM}_end:\ns_endpgm")
    p.finalize(verbose=OPT.get('nopverbose'))
    for q in outl:
        p.items += q.items
    p(f'{NM}_codeend:')
    if not OPT.get('noalign'): align_pass(p)
    return p


NAME = 'adaLN_cond__sliding_block_cached__glu_gated_bilinear__prompt'
def build_file(out, opt=None):
    p = gen_mega(opt)
    head = open('cdna_kernels/' + NAME + '.s.ref').read().split('; Override launch')[0]
    kn = NAME + '_kernel'
    c, d = kernel_text(kn, p, force_vgpr=512)
    if (opt or {}).get('list'):
        launch = f"; @launch kernel={kn} grid=(256,1,1) block=(256,1,1) lds={LDS_TOTAL}\n"
    else:
        launch = f"; @launch grid=(256,1,1) block=(256,1,1) lds={LDS_TOTAL}\n"
    open(out, 'w').write(head + launch + '.amdgcn_target "amdgcn-amd-amdhsa--gfx950"\n' + c + d)
    return p

if __name__ == '__main__':
    opt = {}
    for k in sys.argv[2:]:
        if '=' in k:
            a_, b_ = k.split('='); opt[a_] = int(b_) if b_.isdigit() else b_.replace('+', ' ')
        else: opt[k] = 1
    p = build_file(sys.argv[1], opt)
    print(p.stats(), p.maxregs(), 'stamps', nstamp)
```

```python
from common import *
import math, sys, re

OPT = {}
NM = 'L'

P_X, P_K, P_V, P_WQ, P_WO, P_BX, P_WG, P_WU, P_WD, P_C, P_WMOD, P_OUT, P_DBG, P_WS = range(64, 92, 2)
S_WAVE, S_T0, S_T1, S_T2 = 60, 61, 62, 63
S_EX = 92
S_SPIN = 94
S_ST = 96

C_WP, C_F1, C_F2, C_F3, C_G, C_N = 0, 32, 160, 224, 288, 544
C_B0 = 768
SPIN_MAX = 1 << 16

SLOT, WBLK, PADI = 16768, 4192, 1040
PAIR = 2 * SLOT
LDS_TOTAL = 163840
RING0 = LDS_TOTAL - 4 * PAIR
LDS_TABW = 0
LDS_TABG = 640
LDS_CONST = 1280
LDS_JUNK = LDS_CONST + 10240
IMG_W, IMG_B, IMG_A = 1280, 1280 + 20480, 1280 + 40960
POS = lambda i: RING0 + i * PAIR
WO_PIECE = [[5, 6, 7, 8], [19, 20, 21, 22], [9, 10, 11, 23], [24, 25, 26, 27], [28, 29, 30, 31],
            [0, 1, 2, 3], [12, 13, 14, 15], [16, 17, 18, 4]]
QSCALE = LOG2E / math.sqrt(128.0)

nstamp = 0
def TIMER(): return "s_memtime" if OPT.get("cyc") else "s_memrealtime"
def stamp(p):
    global nstamp
    if OPT.get('stamps'):
        p(f"{TIMER()} s[{S_ST}:{S_ST+1}]\ns_waitcnt lgkmcnt(0)\nv_accvgpr_write_b32 a{224+nstamp}, s{S_ST}")
        nstamp += 1
        assert nstamp <= 31

def lane_id(p, r):
    p(f"v_mbcnt_lo_u32_b32 v{r}, -1, 0")
    p(f"v_mbcnt_hi_u32_b32 v{r}, -1, v{r}")

def mksrd(p, d, ptr, off, size):
    if off is None or off == 0:
        p(f"s_mov_b32 s{d}, s{ptr}\ns_mov_b32 s{d+1}, s{ptr+1}")
    else:
        p(f"s_add_u32 s{d}, s{ptr}, {off}\ns_addc_u32 s{d+1}, s{ptr+1}, 0")
    p(f"s_mov_b32 s{d+2}, {size}\ns_mov_b32 s{d+3}, 0x00020000")

def signal(p, sidx, va, vb, base=P_WS, shift=8, add=WS_CNT):
    p(f"""s_lshl_b32 s{S_T2}, s{sidx}, {shift}
    s_add_u32 s{S_T2}, s{S_T2}, {add}
    v_mov_b32 v{va}, s{S_T2}
    v_mov_b32 v{vb}, 1
    s_mov_b64 exec, 1
    global_atomic_add v{va}, v{vb}, s[{base}:{base+1}] sc1
    s_mov_b64 exec, -1""")

npoll = 0
def poll(p, va, vd, expect, base=P_WS, slp=None):
    global npoll
    npoll += 1
    p(f"""s_mov_b32 s{S_SPIN}, 0
    {NM}_poll{npoll}:
    global_load_dword v{vd}, v{va}, s[{base}:{base+1}] {OPT.get('pflag', 'sc1')}
    s_add_u32 s{S_SPIN}, s{S_SPIN}, 1
    s_waitcnt vmcnt(0)
    v_cmp_gt_u32 vcc, {expect}, v{vd}
    s_cmp_gt_u32 s{S_SPIN}, {SPIN_MAX}
    s_cbranch_scc1 {NM}_pdone{npoll}""")
    slp = OPT.get('slp', 4) if slp is None else slp
    if slp:
        p(f"s_cbranch_vccz {NM}_pdone{npoll}\ns_sleep {slp}\ns_branch {NM}_poll{npoll}")
    else:
        p(f"s_cbranch_vccnz {NM}_poll{npoll}")
    p(f"{NM}_pdone{npoll}:")

def dpp_ror_add(p, r, n):
    p(f"v_add_f32_dpp v{r}, v{r}, v{r} row_ror:{n} row_mask:0xf bank_mask:0xf")

def mod_loads(p, srdn, row, vaddr, dst, n4, imms, soff=None):
    for kq in range(4):
        mksrd(p, srdn, P_WS, WS_MOD + kq * 15360 + row * 2560, 2560)
        for i in range(n4):
            p(f"buffer_load_dwordx4 {v(dst+4*(n4*kq+i),4)}, v{vaddr}, s[{srdn}:{srdn+3}], {soff or 0} offen offset:{imms[i]} sc1")

def mod_sum(p, dst, n):
    for e in range(n):
        p(f"v_add_f32 v{dst+e}, v{dst+e}, v{dst+n+e}")
        p(f"v_add_f32 v{dst+2*n+e}, v{dst+2*n+e}, v{dst+3*n+e}")
    for e in range(n):
        p(f"v_add_f32 v{dst+e}, v{dst+e}, v{dst+2*n+e}")
    for e in range(0, n, 2):
        p(f"v_cvt_pk_bf16_f32 v{dst+e}, v{dst+e}, v{dst+e+1}")
        p(f"v_and_b32 v{dst+e+1}, 0xffff0000, v{dst+e}")
        p(f"v_lshlrev_b32 v{dst+e}, 16, v{dst+e}")

V_Q, V_S, V_X, V_C, V_H, V_T, V_AW, V_DMA, V_CA, V_L16, V_LS = 0, 64, 128, 192, 224, 240, 244, 248, 252, 253, 254
V_NEGM, V_AK, V_AV = 192, 240, 244
V_P = [224, 128]
A_O, A_K, A_V = 0, 128, 160
S_KS, S_VS, S_XN, S_O, S_G = 8, 12, 16, 20, 24
S_DA, S_DB = 28, 32
S_DOFF, S_DSTEP, S_XOFF, S_CNT, S_WR, S_DELTA, S_POS, S_WOFF, S_CM3, S_HEAD, S_QB, S_DMASK = range(36, 48)
S_RDB, S_SOFF, S_SWR = S_DSTEP, 4, S_XOFF
S_PW, S_WOO, S_KQ, S_W5 = 48, 49, 50, 51
S_JB = 52
S_JIN = 58
S_JBN = 59
S_WPO = 5
S_WIN = 6
S_WPX = 7
S_Q2, S_CT = 56, 57
S_OOFF = 98
V_SC, V_JO, V_WO, V_PW, V_WD = 144, 145, 146, 147, 148
A_SF = 192
A_SV = 210
A_FF = 216
S_GI, S_FO = 47, 46
A_XR = 200

def acc(dt, qt): return 16 * (2 * dt + qt)
def qfrag(qt, m): return V_Q + 8 * (2 * (m >> 1) + qt) + 4 * (m & 1)
def oacc(dt, qt): return A_O + 16 * (2 * dt + qt)

def dma4():
    L = []
    for i in range(4):
        srdn = S_DA if i < 2 else S_DB
        off = f" offset:{i*PADI}" if i else ""
        L.append(f"buffer_load_dwordx4 v{V_DMA+i}, s[{srdn}:{srdn+3}], s{S_DOFF} offen{off} nt lds")
    return L

def dma_pair_qp():
    adv = [f"s_add_u32 s{S_DOFF}, s{S_DOFF}, s{S_DSTEP}"]
    return [f"s_mov_b32 m0, s{S_WR}"] + dma4() + adv + [f"s_add_u32 m0, m0, {SLOT}"] + dma4() + adv

def dma_pair_at():
    adv = [f"s_add_u32 s{S_DOFF}, s{S_DOFF}, 8192"]
    return [f"s_mov_b32 m0, s{S_WR}"] + dma4() + adv + [f"s_add_u32 m0, m0, {SLOT}"] + dma4() + adv

def pos_update():
    return [f"s_add_u32 s{S_POS}, s{S_POS}, 1",
            f"s_and_b32 s{S_POS}, s{S_POS}, 3",
            f"s_cselect_b32 s{S_DELTA}, {PAIR}, s{S_CM3}"]
def wr_update():
    return [f"s_xor_b32 s{S_WR}, s{S_POS}, 2",
            f"s_mul_i32 s{S_WR}, s{S_WR}, {PAIR}",
            f"s_add_u32 s{S_WR}, s{S_WR}, s{S_WOFF}"]
def pos_update_at():
    return [f"s_add_u32 s{S_POS}, s{S_POS}, 1",
            f"s_cmp_eq_u32 s{S_POS}, 4",
            f"s_cselect_b32 s{S_POS}, 1, s{S_POS}",
            f"s_cselect_b32 s{S_DELTA}, s{S_CM3}, {PAIR}",
            f"s_mov_b32 s{S_WR}, s{S_RDB}",
            f"s_add_u32 s{S_RDB}, s{S_RDB}, s{S_DELTA}"]

def a_reads(buf, kp):
    L = []
    for dt in range(4):
        for jj in range(2):
            r = A_K + 16 * buf + 4 * dt + 2 * jj
            L.append(f"ds_read_b64_tr_b16 a[{r}:{r+1}], v{V_AW+dt} offset:{(kp//4)*SLOT + (kp%4)*WBLK + jj*PADI}")
    return L

def c_reads(buf, off):
    return [f"ds_read_b128 {v(V_C+16*buf+4*i,4)}, v{V_CA} offset:{off+16*i}" for i in range(4)]

def h_valu(xr, cbuf, hbuf):
    L = []
    n = 0
    for qt in range(2):
        for d in range(4):
            x = V_X + 8 * xr + 4 * qt + d
            ca = V_C + 16 * cbuf + 2 * d
            t0 = V_T + 2 * (n % 2); n += 1
            L.append(f"v_fma_mix_f32 v{t0}, v{x}, v{ca}, v{ca+8} op_sel_hi:[1,0,0]")
            L.append(f"v_fma_mix_f32 v{t0+1}, v{x}, v{ca+1}, v{ca+9} op_sel:[1,0,0] op_sel_hi:[1,0,0]")
            L.append(f"v_cvt_pk_bf16_f32 v{V_H+8*hbuf+4*qt+d}, v{t0}, v{t0+1}")
    return L

def x_loads(xr, imm):
    return [f"buffer_load_dwordx4 {v(V_X+8*xr+4*qt,4)}, v{V_XA+qt}, s[{S_XN}:{S_XN+3}], s{S_XOFF} offen offset:{imm} sc1"
            for qt in range(2)]

def k_reads(slotimm):
    return [f"ds_read_b128 {a(A_K+4*m,4)}, v{V_AK+(m>>1)} offset:{slotimm+(m&1)*32}" for m in range(8)]

def v_reads(slotimm, dst=A_V):
    L = []
    for ks in range(2):
        for dt in range(4):
            for jj in range(2):
                r = dst + 16 * ks + 4 * dt + 2 * jj
                L.append(f"ds_read_b64_tr_b16 a[{r}:{r+1}], v{V_AV+dt} offset:{slotimm + 2080 + (2*ks+jj)*WBLK}")
    return L

def qk_mfmas(sbuf, cinit):
    L = []
    for m in range(8):
        for qt in range(2):
            d = V_S + 32 * sbuf + 16 * qt
            c = ('0' if cinit == 'zero' else v(V_NEGM + 16 * qt, 16)) if m == 0 else v(d, 16)
            L.append(f"v_mfma_f32_32x32x16_bf16 {v(d,16)}, {a(A_K+4*m,4)}, {v(qfrag(qt,m),4)}, {c}")
    return L

def pv_mfmas(pbuf, src=A_V):
    L = []
    for ks in range(2):
        for dt in range(4):
            for qt in range(2):
                o = oacc(dt, qt)
                L.append(f"v_mfma_f32_32x32x16_bf16 {a(o,16)}, {a(src+16*ks+4*dt,4)}, {v(V_P[pbuf]+8*qt+4*ks,4)}, {a(o,16)}")
    return L

def softmax_stream(sbuf, pbuf):
    elems = [(qt, r) for ks in range(2) for qt in range(2) for r in range(8 * ks, 8 * ks + 8)]
    L = []
    def post(i):
        qt, r = elems[i]
        x = V_S + 32 * sbuf + 16 * qt + r
        L.append(f"v_add_f32 v{V_LS+qt}, v{V_LS+qt}, v{x}")
        if r % 2 == 1:
            L.append(f"v_cvt_pk_bf16_f32 v{V_P[pbuf]+8*qt+r//2}, v{x-1}, v{x}")
    for i, (qt, r) in enumerate(elems):
        x = V_S + 32 * sbuf + 16 * qt + r
        L.append(f"v_exp_f32 v{x}, v{x}")
        if i >= 1: post(i - 1)
    post(31)
    return L

def put(fixed, items, positions):
    assert len(items) == len(positions), (len(items), len(positions))
    for it, g in zip(items, positions):
        fixed.setdefault(g, []).append(it)

def order_gap(fixed):
    def key(x):
        if not isinstance(x, str): return 1
        if x.startswith('buffer_') or x.startswith('ds_') or x.startswith('global_'): return 0
        if x.startswith('s_'): return 1
        return 2
    for g in fixed:
        fixed[g].sort(key=key)

def prefill(p, lo, hi):
    for i in range(lo, hi):
        p(f"""s_add_u32 s{S_DELTA}, s{S_Q2}, {i}
        s_and_b32 s{S_DELTA}, s{S_DELTA}, 3
        s_lshl_b32 s{S_DOFF}, s{S_DELTA}, 19
        s_mul_i32 s{S_DELTA}, s{S_DELTA}, {SLOT}
        s_add_u32 m0, s{S_DELTA}, s{S_WOFF}""")
        p.extend(dma4())


V_TID = 232
V_ZERO = 234
V_XA = 254
VP_O1, VP_O2, VP_SC, VP_AD, VP_LA = 240, 241, 242, 243, 233

def joined(q):
    out = []; hold = False
    for x in q.items:
        if out and (hold or 'scc' in x.src):
            out[-1] += '\n' + x.text
        else:
            out.append(x.text)
        if 'exec' in x.dst: hold = not x.text.rstrip().endswith('-1')
    return out

def texts(fn):
    q = Prog(); fn(q); return joined(q)

def merge(*lists):
    lists = [list(l) for l in lists if l]
    n = [len(l) for l in lists]; idx = [0] * len(lists); out = []
    while any(idx[k] < n[k] for k in range(len(lists))):
        k = min((k for k in range(len(lists)) if idx[k] < n[k]), key=lambda k: idx[k] / n[k])
        out.append(lists[k][idx[k]]); idx[k] += 1
    return out

def phase0(p):
    XL, XF, M, Q, C, W, SI, AC, U = 128, 140, 160, 164, 172, 180, 200, 210, 218
    AX, ACc, AW, AIM, AJW, AIR, AXS, T0, T1 = range(222, 231)
    p(f"""
    s_load_dwordx16 s[64:79], s[0:1], 0
    s_load_dwordx8 s[80:87], s[0:1], 64
    s_load_dwordx4 s[88:91], s[0:1], 96
    v_lshrrev_b32 v1, 6, v0
    v_mov_b32 v{V_TID}, v0
    v_readfirstlane_b32 s{S_WAVE}, v1
    """)
    if not OPT.get('nocodepf'):
        p(f"""
        s_getpc_b64 s[4:5]
        {NM}_pc:
        s_lshr_b32 s3, s2, 3
        s_lshl_b32 s3, s3, 11
        v_lshlrev_b32 v1, 3, v0
        v_add_u32 v1, s3, v1
        v_min_u32 v1, {NM}_codeend-{NM}_pc-8, v1
        global_load_dwordx2 a[220:221], v1, s[4:5]
        """)
    p(f"""
    s_lshl_b32 s3, s2, 3
    v_lshrrev_b32 v1, 5, v0
    v_add_u32 v{AX}, s3, v1
    v_and_b32 v2, 31, v0
    v_mul_u32_u24 v{AX}, 1280, v{AX}
    v_lshl_add_u32 v{AX}, v2, 3, v{AX}
    s_and_b32 s6, s2, 3
    s_mul_i32 s6, s6, 160
    s_lshr_b32 s7, s2, 2
    s_lshl_b32 s3, s7, 7
    s_cmp_ge_u32 s2, 240
    s_cselect_b32 s3, 0x40000000, s3
    v_lshrrev_b32 v4, 3, v0
    v_add_u32 v4, s6, v4
    v_mul_u32_u24 v{AW}, 7680, v4
    v_and_b32 v6, 7, v0
    v_lshlrev_b32 v6, 4, v6
    v_add3_u32 v{AW}, v{AW}, v6, s3
    v_lshlrev_b32 v{ACc}, 1, v4
    s_mov_b32 s10, {SZ_X}
    s_mov_b32 s11, 0x00020000
    s_mov_b32 s14, {SZ_C}
    s_mov_b32 s15, 0x00020000
    s_mov_b32 s18, {SZ_WMOD}
    s_mov_b32 s19, 0x00020000
    """)
    for i in range(1, 5):
        p(f"s_mov_b32 s{97+i}, {i*32*7680}")
    p(f"""
    s_bfe_u32 s{S_KQ}, s2, 0x20001
    s_and_b32 s{S_Q2}, s2, 1
    s_lshl_b32 s{S_Q2}, s{S_Q2}, 2
    s_bfe_u32 s{S_T0}, s2, 0x20003
    s_add_u32 s{S_Q2}, s{S_Q2}, s{S_T0}
    s_lshr_b32 s{S_CT}, s2, 5
    s_lshl_b32 s{S_HEAD}, s{S_KQ}, 3
    s_add_u32 s{S_HEAD}, s{S_HEAD}, s{S_CT}
    s_mul_i32 s{S_WOFF}, s{S_WAVE}, {WBLK}
    s_add_u32 s{S_WOFF}, s{S_WOFF}, {RING0}
    v_and_b32 v7, 63, v0
    v_lshlrev_b32 v{V_L16}, 4, v7
    v_lshrrev_b32 v8, 4, v7
    v_and_b32 v9, 15, v7
    v_lshlrev_b32 v10, 2, v8
    v_xor_b32 v9, v10, v9
    v_lshlrev_b32 v9, 4, v9
    v_lshl_add_u32 v9, v8, 13, v9
    s_lshl_b32 s{S_T0}, s{S_WAVE}, 17
    v_add_u32 v{V_DMA}, s{S_T0}, v9
    """)
    for i in range(1, 4):
        p(f"v_add_u32 v{V_DMA+i}, {i*(4*8192-PADI)}, v{V_DMA}")
    p("s_waitcnt lgkmcnt(0)")
    if OPT.get('st0'): stamp(p)
    if OPT.get('wsoff'):
        p(f"s_add_u32 s{P_WS}, s{P_WS}, {OPT['wsoff'] << 20}\ns_addc_u32 s{P_WS+1}, s{P_WS+1}, 0")
    p(f"""
    s_mov_b32 s8, s{P_X}
    s_mov_b32 s9, s{P_X+1}""")
    for i in range(5):
        p(f"buffer_load_dwordx2 {v(XL+2*i,2)}, v{AX}, s[8:11], 0 offen offset:{i*256} {'' if OPT.get('xplain') else 'nt'}")
    p(f"s_mov_b32 s12, s{P_C}\ns_mov_b32 s13, s{P_C+1}\ns_mov_b32 s16, s{P_WMOD}\ns_mov_b32 s17, s{P_WMOD+1}")
    for i in range(5):
        p(f"buffer_load_ushort v{C+i}, v{ACc}, s[12:15], 0 offen offset:{i*64}")
    for i in range(5):
        p(f"buffer_load_dwordx4 {v(W+4*i,4)}, v{AW}, s[16:19], {'s%d' % (97+i) if i else 0} offen nt")
    if not OPT.get('b0dbg'):
        p(f"s_lshl_b32 s3, s2, 2\ns_add_u32 s3, s3, s{S_WAVE}\ns_cmp_lg_u32 s3, 1\ns_cbranch_scc1 {NM}_p0_noclr")
        p.begin_cond()
        p(f"""v_lshlrev_b32 v10, 4, v{V_L16}
        v_add_u32 v10, {WS_CNT + C_B0*256}, v10
        v_mov_b32 v11, 0
        global_store_dword v10, v11, s[{P_WS}:{P_WS+1}] sc1
        v_mov_b32 v12, 1
        s_waitcnt vmcnt(0)
        s_mov_b64 exec, 1
        global_store_dword v11, v12, s[{P_DBG}:{P_DBG+1}] sc1
        s_mov_b64 exec, -1""")
        p.end_cond()
        p(f"{NM}_p0_noclr:")
    p(f"""
    s_lshl_b32 s{S_T0}, s{S_HEAD}, 8
    s_add_u32 s{S_DA}, s{P_WQ}, s{S_T0}
    s_addc_u32 s{S_DA+1}, s{P_WQ+1}, 0
    s_sub_u32 s{S_DA+2}, {SZ_WQ}, s{S_T0}
    s_mov_b32 s{S_DA+3}, 0x00020000
    s_mov_b32 s{S_DB}, s{S_DA}
    s_mov_b32 s{S_DB+1}, s{S_DA+1}
    s_mov_b32 s{S_DB+2}, s{S_DA+2}
    s_mov_b32 s{S_DB+3}, 0x00020000
    """)
    p(f"""
    v_lshrrev_b32 v{AIM}, 1, v2
    v_lshlrev_b32 v{AIM}, 7, v{AIM}
    v_lshl_add_u32 v{AIM}, v1, 4, v{AIM}
    v_and_b32 v7, 1, v2
    v_lshl_add_u32 v{AIM}, v7, 3, v{AIM}
    v_add_u32 v{AIM}, {LDS_CONST}, v{AIM}
    v_lshrrev_b32 v1, 4, v0
    v_lshlrev_b32 v{AJW}, 8, v1
    v_lshl_add_u32 v{AJW}, v6, 1, v{AJW}
    v_add_u32 v{AJW}, {LDS_JUNK}, v{AJW}
    v_lshlrev_b32 v{AIR}, 4, v0
    v_add_u32 v{AIR}, {LDS_CONST}, v{AIR}
    v_lshl_add_u32 v{AXS}, v1, 11, v6
    v_bfe_u32 v3, v0, 3, 1
    v_lshl_add_u32 v{AXS}, v3, 9, v{AXS}
    s_and_b32 s100, s2, 3
    s_mul_i32 s100, s100, 15360
    s_lshl_b32 s7, s7, 8
    s_add_u32 s100, s100, s7
    """)
    p1_setup(p)
    pf = [texts(lambda q, i=i: prefill(q, i, i + 1)) for i in range(4)]
    NB = OPT.get('nb1', 1)
    late = pf[NB:]
    pf = pf[:NB] + [[]] * 8
    p.extend(pf[0])
    p(f"v_mov_b32 v{V_ZERO}, 0")
    p(f"""
    s_lshr_b32 s3, s2, 3
    s_mul_i32 s3, s3, 81920
    s_bfe_u32 s{S_T0}, s2, 0x10002
    s_lshl_b32 s{S_T0}, s{S_T0}, 10
    s_add_u32 s3, s3, s{S_T0}
    s_and_b32 s{S_T0}, s2, 3
    s_lshl_b32 s{S_T0}, s{S_T0}, 7
    s_add_u32 s3, s3, s{S_T0}
    s_add_u32 s3, s3, {WS_XN}
    s_mov_b32 s98, 32768
    s_mov_b32 s99, 65536
    """)
    mksrd(p, S_G, P_WS, 's3', 40 * 2048 - 1024)
    p(f"s_mov_b32 s3, 0x3f803f80\ns_mov_b32 s101, {fhex(-LOG2E)}")
    if OPT.get('st0'): stamp(p)
    def red32(q, r):
        for n in (1, 2, 4, 8):
            dpp_ror_add(q, r, n)
        q(f"v_mov_b32 v{r+1}, v{r}\nv_permlane16_swap_b32 v{r}, v{r+1}\nv_add_f32 v{r}, v{r}, v{r+1}")
    def ln1(q):
        q(f"v_dot2_f32_bf16 v{M}, v{XL}, s3, 0\nv_dot2_f32_bf16 v{M+1}, v{XL+1}, s3, 0")
        for i in range(2, 10):
            q(f"v_dot2_f32_bf16 v{M+i%2}, v{XL+i}, s3, v{M+i%2}")
    def unp(q):
        for i in range(10):
            q(f"v_lshlrev_b32 v{XF+2*i}, 16, v{XL+i}\nv_and_b32 v{XF+2*i+1}, 0xffff0000, v{XL+i}")
    def ln2(q):
        q(f"v_add_f32 v{M}, v{M}, v{M+1}")
        red32(q, M)
        q(f"v_mul_f32 v{M}, {fhex(-1.0/640)}, v{M}")
    def ln3(q):
        for i in range(10):
            t = Q + 2 + 2 * (i % 2)
            q(f"v_pk_add_f32 {v(t,2)}, {v(XF+2*i,2)}, {v(M,2)} op_sel_hi:[1,0]")
            q(f"v_pk_mul_f32 {v(Q,2)}, {v(t,2)}, {v(t,2)}" if i == 0 else f"v_pk_fma_f32 {v(Q,2)}, {v(t,2)}, {v(t,2)}, {v(Q,2)}")
    def ln4(q):
        q(f"v_add_f32 v{Q}, v{Q}, v{Q+1}")
        red32(q, Q)
        q(f"v_mul_f32 v{Q}, {fhex(1.0/640)}, v{Q}")
        round_bf16(q, Q, Q)
        q(f"v_add_f32 v{Q}, {fhex(1e-5)}, v{Q}")
        round_bf16(q, Q, Q)
        q(f"v_sqrt_f32 v{Q}, v{Q}")
        round_bf16(q, M, M)
        round_bf16(q, Q, Q)
        q(f"v_rcp_f32 v{Q}, v{Q}")
    def silu(q):
        for i in range(5):
            q(f"v_lshlrev_b32 v{C+i}, 16, v{C+i}\nv_mul_f32 v{SI+2*i}, s101, v{C+i}\nv_exp_f32 v{SI+2*i}, v{SI+2*i}")
        for i in range(5):
            q(f"v_add_f32 v{SI+2*i}, 1.0, v{SI+2*i}\nv_rcp_f32 v{SI+2*i}, v{SI+2*i}")
        for i in range(5):
            q(f"v_mul_f32 v{SI+2*i}, v{C+i}, v{SI+2*i}")
            round_bf16(q, SI + 2 * i, SI + 2 * i)
    p.sync(regs=[v(XL, 10)])
    if OPT.get('st0'): stamp(p)
    p.extend(texts(ln1))
    p.extend(merge(texts(ln2), texts(unp)))
    p.extend(pf[1])
    p.extend(texts(ln3))
    p.sync(regs=[v(C, 5)])
    p.extend(merge(texts(ln4), texts(silu)))
    p.extend(pf[2])
    for i in range(10):
        x0, x1 = XF + 2 * i, XF + 2 * i + 1
        p(f"""v_pk_add_f32 {v(x0,2)}, {v(x0,2)}, {v(M,2)} op_sel_hi:[1,0]
        v_cvt_pk_bf16_f32 v{x0}, v{x0}, v{x1}
        v_and_b32 v{x1}, 0xffff0000, v{x0}
        v_lshlrev_b32 v{x0}, 16, v{x0}
        v_pk_mul_f32 {v(x0,2)}, {v(x0,2)}, {v(Q,2)} op_sel_hi:[1,0]
        v_cvt_pk_bf16_f32 v{x0}, v{x0}, v{x1}
        v_and_b32 v{x1}, 0xffff0000, v{x0}
        v_lshlrev_b32 v{x0}, 16, v{x0}
        v_cvt_pk_f16_f32 v{XL+i}, v{x0}, v{x1}""")
        if i % 2 == 1:
            p(f"ds_write_b64 v{AIM}, {v(XL+i-1,2)} offset:{(i//2)*2048}")
        if i == 4: p.extend(pf[3])
    p.extend(pf[4])
    if OPT.get('st0'): stamp(p)
    p.sync(regs=[v(W, 20)])
    if OPT.get('st0'): stamp(p)
    for i in range(5):
        for d in range(4):
            w = W + 4 * i + d
            u = U + 2 * (d % 2)
            p(f"v_lshlrev_b32 v{u}, 16, v{w}\nv_and_b32 v{u+1}, 0xffff0000, v{w}")
            p(f"v_pk_mul_f32 {v(AC+2*d,2)}, {v(u,2)}, {v(SI,2)} op_sel_hi:[1,0]" if i == 0 else
              f"v_pk_fma_f32 {v(AC+2*d,2)}, {v(u,2)}, {v(SI+2*i,2)}, {v(AC+2*d,2)} op_sel_hi:[1,0,1]")
    p(f"v_and_b32 v{T0}, 8, v{V_TID}\nv_cmp_eq_u32 vcc, 0, v{T0}")
    for e in range(8):
        dpp_ror_add(p, AC + e, 8)
    p(f"""
    s_and_saveexec_b64 s[{S_EX}:{S_EX+1}], vcc
    ds_write_b128 v{AJW}, {v(AC,4)}
    ds_write_b128 v{AJW}, {v(AC+4,4)} offset:16
    s_mov_b64 exec, s[{S_EX}:{S_EX+1}]
    """)
    p.sync(lgkm=0)
    p("s_barrier")
    if OPT.get('st0'): stamp(p)
    for i in range(3):
        p(f"ds_read_b128 {v(XF+4*i,4)}, v{AIR} offset:{4096*i}")
    p(f"""
    s_cmp_lg_u32 s{S_WAVE}, 3
    s_cbranch_scc1 {NM}_p0_nomod
    """)
    p.begin_cond()
    p(f"""
    s_cmp_ge_u32 s2, 240
    s_cbranch_scc1 {NM}_p0_nomod
    v_lshrrev_b32 v{T0}, 2, v{V_L16}
    v_add_u32 v{T1}, {LDS_JUNK}, v{T0}
    """)
    for i in range(8):
        p(f"ds_read2st64_b32 {v(W+2*i,2)}, v{T1} offset0:{2*i} offset1:{2*i+1}")
    p(f"v_add_u32 v{T0}, s100, v{T0}")
    for st in (4, 2, 1):
        for i in range(st):
            p(f"v_pk_add_f32 {v(W+2*i,2)}, {v(W+2*i,2)}, {v(W+2*i+2*st,2)}")
    p(f"""
    v_add_f32 v{W}, v{W}, v{W+1}
    global_store_dword v{T0}, v{W}, s[{P_WS}:{P_WS+1}] sc1
    """)
    p.end_cond()
    p(f"""
    {NM}_p0_nomod:
    s_waitcnt lgkmcnt(0)
    buffer_store_dwordx4 {v(XF,4)}, v{AXS}, s[{S_G}:{S_G+3}], 0 offen sc1
    buffer_store_dwordx4 {v(XF+4,4)}, v{AXS}, s[{S_G}:{S_G+3}], s98 offen sc1
    buffer_store_dwordx4 {v(XF+8,4)}, v{AXS}, s[{S_G}:{S_G+3}], s99 offen sc1
    """)
    mksrd(p, S_G, P_WS, WS_CNT, C_N * 256)
    p(f"""
    s_cmp_lg_u32 s{S_WAVE}, 2
    s_cbranch_scc1 {NM}_p0_nozero
    """)
    p.begin_cond()
    p(f"""
    v_lshlrev_b32 v{T0}, 12, v{V_L16}
    s_lshl_b32 s3, s2, 8
    buffer_store_dword v{V_ZERO}, v{T0}, s[{S_G}:{S_G+3}], s3 offen sc1
    """)
    p.end_cond()
    NSH = OPT.get('nsh', 32)
    p(f"{NM}_p0_nozero:")
    if not OPT.get('b0dbg'):
        p(f"global_load_dword v{U}, v{V_ZERO}, s[{P_DBG}:{P_DBG+1}] sc1")
    p(f"""
    s_waitcnt vmcnt(0)
    s_barrier
    s_cmp_lg_u32 s{S_WAVE}, 0
    s_cbranch_scc1 {NM}_p0_nosig
    """)
    p.begin_cond()
    if OPT.get('b0dbg'):
        p("s_and_b32 s3, s2, 7")
        signal(p, 3, T0, T1, base=P_DBG, shift=5, add=0)
    else:
        p(f"v_cmp_gt_u32 vcc, 1, v{U}\ns_cbranch_vccz {NM}_p0_clr")
        poll(p, V_ZERO, U, 1, base=P_DBG)
        p(f"{NM}_p0_clr:\ns_and_b32 s3, s2, {NSH-1}\ns_add_u32 s3, s3, {C_B0}")
        signal(p, 3, T0, T1)
    p.end_cond()
    p(f"{NM}_p0_nosig:")
    stamp(p)
    zero = [f"v_accvgpr_write_b32 a{i}, 0" for i in range(128)] + [f"v_mov_b32 v{i}, 0" for i in range(128)]
    p.extend(merge(zero, ['\n'.join(g[:5]) if k == 0 else x for g in late for k, x in enumerate(g) if k == 0 or k >= 5]))
    if OPT.get('st0'): stamp(p)
    mksrd(p, S_G, P_WS, WS_MOD, 4 * 15360)
    p(f"""
    s_mov_b32 s{S_POS}, 0
    s_mov_b32 s{S_CM3}, {(-3*PAIR) & 0xffffffff}
    s_add_u32 s{S_WR}, s{S_WOFF}, {2*PAIR}
    s_mov_b32 s{S_DOFF}, {4*64*8192}
    s_mov_b32 s{S_DSTEP}, {64*8192}
    s_mov_b32 s{S_CNT}, 0
    s_mov_b32 s{S_XOFF}, 0
    s_mov_b32 s98, 15360
    s_mov_b32 s99, 30720
    s_mov_b32 s100, 46080
    s_cmp_lg_u32 s{S_WAVE}, 0
    s_cbranch_scc1 {NM}_p0_nopoll
    """)
    p.begin_cond()
    if OPT.get('b0dbg'):
        p(f"v_and_b32 v{T0}, 7, v{V_TID}\nv_lshlrev_b32 v{T0}, 5, v{T0}")
        poll(p, T0, T1, 32, base=P_DBG, slp=OPT.get('slp0', 8))
    else:
        p(f"v_and_b32 v{T0}, {NSH-1}, v{V_TID}\nv_lshlrev_b32 v{T0}, 8, v{T0}\nv_add_u32 v{T0}, {WS_CNT + C_B0*256}, v{T0}")
        poll(p, T0, T1, 256 // NSH, slp=OPT.get('slp0', 4))
    p.end_cond()
    p(f"""{NM}_p0_nopoll:
    s_barrier""")
    stamp(p)


KOFF = 4096 + 8192
VOFF = 4096 + 2080 + 4 * 8192

def tile_addr(p, vl, vg, vtok, vrm):
    p(f"""
    v_lshrrev_b32 v{vg}, 4, v{vl}
    v_and_b32 v{vtok}, 15, v{vl}
    s_lshl_b32 s{S_T0}, s{S_Q2}, 2
    s_add_u32 s{S_T0}, s{S_T0}, s{S_WAVE}
    s_lshl_b32 s{S_T0}, s{S_T0}, 2
    s_add_u32 s{S_T0}, s{S_T0}, s{S_KQ}
    s_lshl_b32 s{S_T0}, s{S_T0}, 4
    v_add_u32 v{vtok}, s{S_T0}, v{vtok}
    v_mul_u32_u24 v{vrm}, 1280, v{vtok}
    v_lshl_add_u32 v{vrm}, v{vg}, 3, v{vrm}
    s_mul_i32 s{S_T0}, s{S_CT}, 160
    v_add_u32 v{vrm}, s{S_T0}, v{vrm}
    """)


def p1_setup(p):
    p(f"""
    s_lshl_b32 s{S_T0}, s{S_Q2}, 2
    s_add_u32 s{S_T0}, s{S_T0}, s{S_WAVE}
    s_mul_i32 s{S_T1}, s{S_T0}, 81920
    s_add_u32 s{S_T1}, s{S_T1}, {WS_XN}
    """)
    mksrd(p, S_XN, P_WS, f"s{S_T1}", 81920)
    p(f"""
    s_lshl_b32 s{S_T0}, s{S_T0}, 19
    s_lshl_b32 s{S_T1}, s{S_HEAD}, 14
    s_add_u32 s{S_T0}, s{S_T0}, s{S_T1}
    s_add_u32 s{S_T0}, s{S_T0}, {WS_O}
    """)
    mksrd(p, S_O, P_WS, f"s{S_T0}", 16384)
    p(f"s_lshl_b32 s{S_T0}, s{S_HEAD}, 19\ns_add_u32 s{S_T1}, s{S_T0}, {1536*256 - VOFF}")
    mksrd(p, S_VS, P_V, f"s{S_T1}", VOFF + 512 * 256)
    p(f"s_add_u32 s{S_T1}, s{S_T0}, {1536*256 - KOFF}")
    mksrd(p, S_KS, P_K, f"s{S_T1}", KOFF + 512 * 256)
    p(f"""
    v_and_b32 v2, 63, v0
    v_lshrrev_b32 v3, 5, v2
    v_mul_u32_u24 v3, 2080, v3
    v_bfe_u32 v4, v2, 2, 2
    v_lshl_add_u32 v3, v4, 8, v3
    v_bfe_u32 v5, v2, 4, 1
    v_lshl_add_u32 v3, v5, 5, v3
    v_and_b32 v5, 1, v2
    v_lshl_add_u32 v3, v5, 4, v3
    v_bfe_u32 v5, v2, 1, 1
    v_lshl_add_u32 v3, v5, 3, v3
    v_add_u32 v3, {RING0}, v3
    """)
    for dt in range(4):
        p(f"v_xor_b32 v5, {dt}, v4\nv_lshl_add_u32 v{V_AW+dt}, v5, 6, v3")
    p(f"""
    s_lshr_b32 s{S_T0}, s2, 1
    s_and_b32 s{S_T1}, s2, 1
    s_lshl_b32 s{S_T2}, s{S_T0}, 2
    s_add_u32 s{S_T2}, s{S_T2}, s{S_WAVE}
    s_mul_i32 s{S_JIN}, s{S_T2}, {8*1280}
    s_mul_i32 s{S_T2}, s{S_T1}, 640
    s_add_u32 s{S_JIN}, s{S_JIN}, s{S_T2}
    s_mul_i32 s{S_T0}, s2, 20
    s_add_u32 s{S_T0}, s{S_T0}, s{S_WAVE}
    s_lshl_b32 s{S_T0}, s{S_T0}, 10
    """)
    p(f"s_add_u32 s{S_T2}, s{S_T0}, {WS_WDF}")
    mksrd(p, S_JB, P_WS, f"s{S_T2}", 4 * 4096 + 1024)
    p(f"""
    s_cmp_lt_u32 s2, 108
    s_cselect_b32 s{S_JB+2}, s{S_JB+2}, 0
    s_cselect_b32 s{S_JBN}, {SZ_WD}, 0
    """)
    p(f"""
    s_and_b32 s3, s2, 7
    s_lshr_b32 s{S_T0}, s2, 3
    s_mul_i32 s{S_WIN}, s3, 80
    s_and_b32 s{S_T1}, s{S_WAVE}, 1
    s_lshl_b32 s{S_T1}, s{S_T1}, 3
    s_add_u32 s{S_WIN}, s{S_WIN}, s{S_T1}
    s_mul_i32 s{S_WIN}, s{S_WIN}, 3456
    s_lshl_b32 s{S_T1}, s{S_T0}, 7
    s_add_u32 s{S_WIN}, s{S_WIN}, s{S_T1}
    s_lshl_b32 s{S_T0}, s{S_T0}, 2
    s_add_u32 s{S_T0}, s{S_T0}, s{S_WAVE}
    s_lshl_b32 s{S_T0}, s{S_T0}, 10
    s_mul_i32 s{S_WPO}, s3, {5*108*1024}
    s_add_u32 s{S_WPO}, s{S_WPO}, s{S_T0}
    s_add_u32 s{S_WPX}, s{S_T0}, {40*108*1024}
    s_lshl_b32 s{S_T2}, s3, 7
    s_add_u32 s{S_WPX}, s{S_WPX}, s{S_T2}
    """)
    p(f"""
    s_mul_i32 s{S_T0}, s{S_KQ}, {1024*1280}
    s_lshr_b32 s{S_PW}, s2, 3
    s_lshl_b32 s{S_PW}, s{S_PW}, 2
    s_add_u32 s{S_PW}, s{S_PW}, s{S_WAVE}
    s_mul_i32 s{S_PW}, s{S_PW}, 10240
    s_add_u32 s{S_PW}, s{S_PW}, s{S_T0}
    s_mul_i32 s{S_WOO}, s{S_WAVE}, {32*1280}
    s_add_u32 s{S_WOO}, s{S_WOO}, s{S_T0}
    s_mul_i32 s{S_T0}, s{S_CT}, 160
    s_add_u32 s{S_WOO}, s{S_WOO}, s{S_T0}
    s_mul_i32 s{S_W5}, s{S_WAVE}, 5120
    s_lshl_b32 s{S_GI}, s{S_Q2}, 2
    s_add_u32 s{S_GI}, s{S_GI}, s{S_WAVE}
    s_lshl_b32 s{S_GI}, s{S_GI}, 3
    s_add_u32 s{S_GI}, s{S_GI}, s{S_CT}
    """)

    for i in range(5):
        p(f"""v_add_u32 v3, {64*i}, v2
        v_mul_u32_u24 v4, 6554, v3
        v_lshrrev_b32 v4, 16, v4
        v_mul_u32_u24 v5, 160, v4
        v_lshlrev_b32 v3, 4, v3
        v_sub_u32 v3, v3, v5
        v_lshrrev_b32 v5, 2, v4
        v_xor_b32 v5, v5, v4
        v_and_b32 v5, 4, v5
        v_mul_u32_u24 v5, 5, v5
        v_xor_b32 v4, v5, v4
        v_mul_u32_u24 v5, 1280, v4
        v_add_u32 v5, v5, v3""")
        if 0 < i < 4: p(f"v_subrev_u32 v5, {1024*i}, v5")
        p(f"v_accvgpr_write_b32 a{A_SV+i}, v5")
    tile_addr(p, 2, 3, 4, 5)
    p(f"v_mul_u32_u24 v3, 44, v3\nv_add_u32 v5, v5, v3\nv_accvgpr_write_b32 a{A_SV+5}, v5")
    p(f"""v_and_b32 v3, 15, v2
    v_lshrrev_b32 v4, 5, v2
    v_lshlrev_b32 v3, 4, v3
    v_lshl_add_u32 v3, v4, 9, v3
    v_bfe_u32 v4, v2, 4, 1
    v_add_u32 v4, s{S_KQ}, v4
    v_and_b32 v5, 1, v4
    v_lshl_add_u32 v3, v5, 8, v3
    v_bfe_u32 v5, v4, 1, 1
    v_lshl_add_u32 v{V_XA}, v5, 10, v3
    v_xor_b32 v{V_XA+1}, 1024, v{V_XA}""")
    p(f"""
    v_lshrrev_b32 v3, 5, v2
    v_lshlrev_b32 v3, 6, v3
    v_add_u32 v{V_CA}, {LDS_CONST}, v3
    v_lshlrev_b32 v6, 4, v0
    v_add_u32 v1, 2560, v6
    v_add_u32 v7, 40, v0
    v_mov_b32 v2, {fhex(QSCALE)}
    v_mov_b32 v3, 1.0
    s_mul_i32 s3, s3, 320
    s_add_u32 s3, s3, {3*2560 - 160*16}
    v_add_u32 v4, s3, v6
    v_cmp_lt_u32 vcc, 159, v0
    v_add_u32 v5, 2560, v4
    v_subrev_u32 v8, 160, v0
    v_cndmask_b32 v1, v1, v5, vcc
    v_cndmask_b32 v7, v7, v8, vcc
    v_cndmask_b32 v{VP_SC}, v2, v3, vcc
    v_cndmask_b32 v9, v6, v4, vcc
    s_mul_i32 s3, s{S_CT}, 320
    s_add_u32 s3, s3, {2*2560 - 180*16}
    v_cmp_lt_u32 vcc, 179, v0
    v_add_u32 v4, s3, v6
    v_add_u32 v5, {3*2560}, v4
    v_cndmask_b32 v{VP_O1}, v9, v4, vcc
    v_cndmask_b32 v{VP_O2}, v1, v5, vcc
    v_cndmask_b32 v{VP_AD}, v3, 0, vcc
    v_cmp_lt_u32 vcc, 199, v0
    v_cndmask_b32 v7, v7, v0, vcc
    v_lshrrev_b32 v4, 1, v7
    v_lshlrev_b32 v4, 6, v4
    v_and_b32 v5, 1, v7
    v_lshl_add_u32 v{VP_LA}, v5, 4, v4
    """)


def kv_switch(q):
    tl, t1, t2 = V_T, V_T + 1, V_T + 2
    lane_id(q, tl)
    q(f"""
    v_lshrrev_b32 v{t1}, 4, v{tl}
    v_and_b32 v{t2}, 15, v{tl}
    v_lshlrev_b32 v{tl}, 2, v{t1}
    v_xor_b32 v{t2}, v{tl}, v{t2}
    v_lshlrev_b32 v{t2}, 4, v{t2}
    v_lshl_add_u32 v{t2}, v{t1}, 8, v{t2}
    s_lshl_b32 s{S_T0}, s{S_WAVE}, 11
    s_add_u32 s{S_T0}, s{S_T0}, 4096
    v_add_u32 v{V_DMA}, s{S_T0}, v{t2}
    v_subrev_u32 v{V_DMA+1}, 16, v{V_DMA}
    v_mov_b32 v{V_DMA+2}, v{V_DMA}
    v_mov_b32 v{V_DMA+3}, v{V_DMA+1}
    s_mov_b32 s{S_DA}, s{S_KS}
    s_mov_b32 s{S_DA+1}, s{S_KS+1}
    s_mov_b32 s{S_DA+2}, s{S_KS+2}
    s_mov_b32 s{S_DB}, s{S_VS}
    s_mov_b32 s{S_DB+1}, s{S_VS+1}
    s_mov_b32 s{S_DB+2}, 0
    s_mov_b32 s{S_DOFF}, 0
    s_mov_b32 s{S_DSTEP}, 8192
    """)


def wo_dma(sl):
    pc = WO_PIECE[sl]
    L = [f"s_mov_b32 s{S_T1}, s{S_CT}" if sl == 0 else f"s_cmp_gt_u32 s{S_CT}, {sl-1}\ns_cselect_b32 s{S_T1}, {sl-1}, {sl}",
         f"s_mul_i32 s{S_T1}, s{S_T1}, {128*1280}",
         f"s_add_u32 s{S_T1}, s{S_T1}, s{S_WOO}", f"s_add_u32 m0, s{S_W5}, {pc[0]*5120}"]
    if pc[3] != pc[0] + 3:
        L[-1] += f"\ns_cmp_eq_u32 s{S_WAVE}, 3\ns_cselect_b32 m0, {pc[3]*5120}, m0"
    L += [f"buffer_load_dwordx4 v{V_WD+i}, s[{S_XN}:{S_XN+3}], s{S_T1} offen offset:{1024*i} lds" for i in range(4)]
    L += [f"s_add_u32 m0, m0, 4096", f"buffer_load_dwordx4 v{V_WD+4}, s[{S_XN}:{S_XN+3}], s{S_T1} offen lds"]
    return L

def spread(f, L, slots):
    gi = 0; k = 0
    for x in L:
        if x.startswith('buffer') or x.startswith('global'):
            put(f, [x], [slots[gi]]); gi += 1; k = 0
        else:
            lo = slots[gi - 1] if gi else max(slots[0] - 3, 0)
            hi = max(lo, slots[gi] - 1) if gi < len(slots) else lo
            put(f, [x], [min(lo + k // 2, hi)]); k += 1

def attn_body(p, last=False):
    M = qk_mfmas(0, 'negm') + pv_mfmas(0) + qk_mfmas(1, 'negm') + pv_mfmas(1)
    f1, f2 = {}, {}
    put(f1, ["s_barrier"], [0])
    put(f1, v_reads(0), [1, 1, 2, 3, 4, 5, 6, 7, 8, 9, 10, 11, 12, 13, 13, 14])
    put(f1, [mksync(regs=[a(A_V, 16)])], [15])
    put(f1, [mksync(regs=[a(A_V + 16, 16)])], [22])
    put(f1, k_reads(0), [16, 17, 18, 19, 20, 21, 23, 24])
    put(f1, [mksync(lgkm=0)], [31])
    put(f2, v_reads(SLOT), [0, 1, 2, 3, 4, 5, 6, 7, 8, 9, 10, 11, 12, 13, 13, 14])
    put(f2, [mksync(regs=[a(A_V, 16)])], [15])
    put(f2, [mksync(regs=[a(A_V + 16, 16)])], [22])
    if not last:
        dg = dma_pair_at()
        put(f1, dg[:6], [17, 18, 20, 23, 29, 30])
        put(f1, [f"s_mov_b32 m0, s{S_SWR}",
                 f"buffer_load_dwordx4 v{V_WO}, s[{S_KS}:{S_KS+3}], s{S_WIN} offen nt lds",
                 f"s_add_u32 m0, m0, 20480",
                 f"buffer_load_dwordx4 v{V_JO}, s[{S_G}:{S_G+3}], s{S_JIN} offen nt lds",
                 f"buffer_load_dword a{A_SF+4}, v{V_PW}, s[{S_XN}:{S_XN+3}], s{S_PW} offen"], [2, 3, 5, 6, 9])
        put(f1, [f"ds_read_b64_tr_b16 {a(A_SF+2*i,2)}, v{V_SC} offset:{i*1024}" for i in range(2)], [25, 26])
        put(f2, [f"buffer_store_dwordx4 {a(A_SF,4)}, v{V_L16}, s[{S_JB}:{S_JB+3}], s{S_SOFF} offen sc1"], [1])
        put(f2, [f"s_lshl_b32 s{S_SOFF}, s{S_CNT}, 12",
                 f"s_add_u32 s{S_JIN}, s{S_JIN}, 128", f"s_add_u32 s{S_WIN}, s{S_WIN}, {16*3456}", f"s_add_u32 s{S_SWR}, s{S_SWR}, 4096",
                 f"s_add_u32 s{S_PW}, s{S_PW}, 2048"], [5, 2, 3, 6, 7])
        put(f2, [f"v_add_u32 v{V_SC}, 4096, v{V_SC}"], [14])
        put(f2, k_reads(SLOT), [16, 17, 18, 19, 20, 21, 23, 24])
        put(f2, dg[6:], [0, 16, 18, 20, 25, 29])
        put(f2, pos_update_at(), [10, 11, 11, 11, 12, 12])
        put(f2, [f"v_add_u32 v{V_AV+i}, s{S_DELTA}, v{V_AV+i}" for i in range(4)], [17, 19, 21, 23])
        put(f2, [f"v_add_u32 v{V_AK+i}, s{S_DELTA}, v{V_AK+i}" for i in range(4)], [26, 27, 28, 29])
        put(f2, [f"s_add_u32 s{S_CNT}, s{S_CNT}, 1", f"s_cmp_lt_u32 s{S_CNT}, 6", mksync(dma_keep=8, lgkm=0)], [30, 30, 30])
        put(f2, [f"s_cbranch_scc1 {NM}_at"], [31])
    else:
        put(f1, [f"v_accvgpr_read_b32 v{V_WD+i}, a{A_SV+i}" for i in range(5)], [1, 2, 2, 3, 3])
        spread(f1, wo_dma(0) + wo_dma(1)[:7], [6, 8, 11, 15, 19, 25, 27, 29])
        spread(f2, wo_dma(1)[7:] + wo_dma(2), [2, 6, 16, 19, 23, 26, 29])
        put(f2, [f"v_subrev_u32 v{V_AV+i}, {2*PAIR}, v{V_AV+i}" for i in range(4)], [17, 18, 20, 21])
        put(f2, [mksync(dma_keep=10, lgkm=0)], [31])
    order_gap(f1); order_gap(f2)
    vb = OPT.get('verbose')
    p.extend(pack(M[:32], f1, softmax_stream(1, 1), verbose=vb and 'at1'))
    p.extend(pack(M[32:], f2, softmax_stream(0, 0), stop=32 if last else 31, verbose=vb and 'at2'))


def row_sums(p, T):
    for qt in range(2):
        p(f"v_mov_b32 v{T+qt}, v{V_LS+qt}")
    for qt in range(2):
        p(f"v_permlane32_swap_b32 v{V_LS+qt}, v{T+qt}")
    for qt in range(2):
        p(f"v_add_f32 v{V_LS+qt}, v{V_LS+qt}, v{T+qt}")


def exact_path():
    q = Prog()
    VL, VK, VD, VRD, MX = 156, 157, 158, 160, 164
    AK2, SK, SV, SC, SO = 192, 8, 12, S_CNT, S_DOFF
    q(f"{NM}_exact:\ns_waitcnt vmcnt(0) lgkmcnt(0)\ns_nop 15")
    q(f"s_lshl_b32 s{S_T0}, s{S_HEAD}, 19\ns_add_u32 s{S_T0}, s{S_T0}, {1536*256}")
    mksrd(q, SK, P_K, f"s{S_T0}", 512 * 256)
    mksrd(q, SV, P_V, f"s{S_T0}", 512 * 256)
    lane_id(q, VL)
    q(f"""
    v_and_b32 v{VK}, 31, v{VL}
    v_lshlrev_b32 v{VK}, 8, v{VK}
    v_lshrrev_b32 v{MX}, 5, v{VL}
    v_lshl_add_u32 v{VK}, v{MX}, 4, v{VK}
    v_lshrrev_b32 v{MX+1}, 4, v{VL}
    v_and_b32 v{VD}, 15, v{VL}
    v_lshlrev_b32 v{MX+2}, 2, v{MX+1}
    v_xor_b32 v{VD}, v{MX+2}, v{VD}
    v_lshlrev_b32 v{VD}, 4, v{VD}
    v_lshl_add_u32 v{VD}, v{MX+1}, 8, v{VD}
    s_add_u32 s{S_T0}, s{S_W5}, {WO_PIECE[4][0]*5120}
    s_mov_b32 m0, s{S_T0}
    v_lshlrev_b32 v{MX}, 10, v{MX}
    v_bfe_u32 v{MX+2}, v{VL}, 2, 2
    v_lshl_add_u32 v{MX}, v{MX+2}, 8, v{MX}
    v_and_b32 v{MX+1}, 1, v{MX+1}
    v_lshl_add_u32 v{MX}, v{MX+1}, 5, v{MX}
    v_and_b32 v{MX+1}, 3, v{VL}
    v_lshl_add_u32 v{MX}, v{MX+1}, 3, v{MX}
    v_add_u32 v{MX}, s{S_T0}, v{MX}
    """)
    for dt in range(4):
        q(f"v_xor_b32 v{MX+1}, {dt}, v{MX+2}\nv_lshl_add_u32 v{VRD+dt}, v{MX+1}, 6, v{MX}")
    def qk(cinit):
        for m in range(8):
            q(f"buffer_load_dwordx4 {a(AK2+4*m,4)}, v{VK}, s[{SK}:{SK+3}], s{SO} offen offset:{32*m}")
        q("s_waitcnt vmcnt(0)")
        for x in qk_mfmas(0, cinit):
            for m in range(8):
                x = x.replace(f", {a(A_K+4*m,4)},", f", {a(AK2+4*m,4)},")
            q(x)
    q(f"v_mov_b32 v{MX}, 0xff800000\nv_mov_b32 v{MX+2}, 0xff800000\ns_mov_b32 s{SO}, 0")
    q.begin_loop()
    q(f"{NM}_ex1:")
    qk('zero')
    for qt in range(2):
        for i in range(0, 16, 2):
            q(f"v_max3_f32 v{MX+2*qt}, v{MX+2*qt}, v{V_S+16*qt+i}, v{V_S+16*qt+i+1}")
    q(f"s_add_u32 s{SO}, s{SO}, 8192\ns_cmp_lt_u32 s{SO}, {16*8192}\ns_cbranch_scc1 {NM}_ex1")
    q.end_loop(16)
    for qt in range(2):
        m_ = MX + 2 * qt
        q(f"v_mov_b32 v{m_+1}, v{m_}\nv_permlane32_swap_b32 v{m_}, v{m_+1}\nv_max_f32 v{m_}, v{m_}, v{m_+1}")
        for i in range(16):
            q(f"v_sub_f32 v{V_NEGM+16*qt+i}, 0, v{m_}")
    for i in range(128):
        q(f"v_accvgpr_write_b32 a{i}, 0")
    q(f"v_mov_b32 v{V_LS}, 0\nv_mov_b32 v{V_LS+1}, 0\ns_mov_b32 s{SO}, 0")
    q.begin_loop()
    q(f"{NM}_ex2:")
    qk('negm')
    q.extend(softmax_stream(0, 0))
    pv = pv_mfmas(0)
    for ks in range(2):
        for i in range(4):
            q(f"buffer_load_dwordx4 v{VD}, s[{SV}:{SV+3}], s{SO} offen offset:{1024*i} lds")
        q(f"s_add_u32 s{SO}, s{SO}, 4096\ns_waitcnt vmcnt(0)")
        for dt in range(4):
            for jj in range(2):
                q(f"ds_read_b64_tr_b16 {a(A_V+16*ks+4*dt+2*jj,2)}, v{VRD+dt} offset:{2048*jj}")
        q("s_waitcnt lgkmcnt(0)")
        q.extend(pv[8 * ks:8 * ks + 8])
    q(f"s_cmp_lt_u32 s{SO}, {16*8192}\ns_cbranch_scc1 {NM}_ex2")
    q.end_loop(16)
    row_sums(q, MX)
    for i in range(16):
        q(f"v_mov_b32 v{V_P[1]+i}, 0")
    lane_id(q, 90)
    q(f"s_nop 15\ns_branch {NM}_exact_ret")
    q.finalize()
    return q


def phase1(p, outl):
    vb = OPT.get('verbose')
    B1, B2 = V_C, V_C + 16
    for kq in range(4):
        so = f"s{97+kq}" if kq else 0
        p(f"buffer_load_dwordx4 {v(B1+4*kq,4)}, v{VP_O1}, s[{S_G}:{S_G+3}], {so} offen sc1")
        p(f"buffer_load_dwordx4 {v(B2+4*kq,4)}, v{VP_O2}, s[{S_G}:{S_G+3}], {so} offen sc1")
    def xl(lo, hi):
        for t in range(lo, hi):
            p.extend(x_loads(t, (t % 2) * 2048))
            if t % 2 == 1:
                p(f"s_add_u32 s{S_XOFF}, s{S_XOFF}, 4096")
    xl(0, 2)
    p.sync(regs=[v(B1, 32)])
    if OPT.get('st0'): stamp(p)
    for b in (B1, B2):
        p(f"""v_pk_add_f32 {v(b,2)}, {v(b,2)}, {v(b+4,2)}
        v_pk_add_f32 {v(b+2,2)}, {v(b+2,2)}, {v(b+6,2)}
        v_pk_add_f32 {v(b+8,2)}, {v(b+8,2)}, {v(b+12,2)}
        v_pk_add_f32 {v(b+10,2)}, {v(b+10,2)}, {v(b+14,2)}
        v_pk_add_f32 {v(b,2)}, {v(b,2)}, {v(b+8,2)}
        v_pk_add_f32 {v(b+2,2)}, {v(b+2,2)}, {v(b+10,2)}""")
    def rnd(b):
        for e in (0, 2):
            p(f"v_cvt_pk_bf16_f32 v{b+e}, v{b+e}, v{b+e+1}\nv_and_b32 v{b+e+1}, 0xffff0000, v{b+e}\nv_lshlrev_b32 v{b+e}, 16, v{b+e}")
    rnd(B1); rnd(B2)
    for e in range(4):
        p(f"v_add_f32 v{B2+e}, v{VP_AD}, v{B2+e}")
    rnd(B2)
    for b in (B1, B2):
        for e in (0, 2):
            p(f"v_pk_mul_f32 {v(b+e,2)}, {v(b+e,2)}, {v(VP_SC,2)} op_sel_hi:[1,0]")
    p(f"ds_write_b128 v{VP_LA}, {v(B2,4)}\nds_write_b128 v{VP_LA}, {v(B1,4)} offset:32")
    xl(2, 4)
    p.sync(dma_keep=0, lgkm=0)
    p("s_barrier")
    if OPT.get('st0'): stamp(p)
    p.extend(c_reads(0, 0))
    p.extend(a_reads(0, 0))
    p.extend(c_reads(1, 128))
    p.extend(a_reads(1, 1))
    xl(4, 8)
    p.extend(h_valu(0, 0, 0))
    p.sync(regs=[a(A_K, 16), v(V_C + 16, 16), v(V_X + 8, 8)])
    stamp(p)
    p(f"s_mov_b32 m0, s{S_WR}")
    p.begin_loop()
    p(f"{NM}_qp:")
    dg = dma_pair_qp()
    xadv = f"s_add_u32 s{S_XOFF}, s{S_XOFF}, 4096"
    for t in range(8):
        M = [f"v_mfma_f32_32x32x16_bf16 {v(acc(dt,qt),16)}, {a(A_K+16*(t%4)+4*dt,4)}, {v(V_H+8*(t%2)+4*qt,4)}, {v(acc(dt,qt),16)}"
             for dt in range(4) for qt in range(2)]
        f = {}
        ar = a_reads((t + 2) % 4, (t + 2) % 8)
        cr = c_reads(t % 2, (t + 2) * 128)
        sy = mksync(regs=[a(A_K + 16 * ((t + 1) % 4), 16), v(V_C + 16 * (t % 2), 16), v(V_X + 8 * ((t + 2) % 8), 8)],
                    dma_keep=8 if t == 5 else None)
        if t == 6:
            put(f, ["s_barrier"], [0])
            put(f, [f"v_add_u32 v{V_AW+i}, s{S_DELTA}, v{V_AW+i}" for i in range(4)], [0, 1, 2, 2])
            put(f, cr, [1, 1, 2, 2])
            put(f, x_loads(t, 0), [3, 5])
            put(f, ar, [3, 4, 4, 5, 6, 6, 7, 7])
            put(f, [sy], [7])
        else:
            put(f, cr, [0, 0, 1, 1])
            put(f, x_loads(t, (t % 2) * 2048), [2, 4])
            put(f, ar, [2, 3, 3, 4, 5, 5, 6, 7] if t != 7 else [2, 3, 3, 4, 5, 5, 6, 6])
            put(f, [sy], [7] if t != 7 else [6])
        pu = pos_update(); wu = wr_update()
        if t == 0: put(f, dg[1:2] + pu[:1], [6, 7])
        if t == 1: put(f, dg[2:4] + [xadv], [6, 7, 7])
        if t == 2: put(f, dg[4:7], [6, 7, 7])
        if t == 3: put(f, dg[7:8] + [xadv], [6, 7])
        if t == 4: put(f, dg[8:10] + pu[1:], [6, 7, 7, 7])
        if t == 5: put(f, dg[10:12] + [xadv], [6, 7, 7])
        if t == 6: put(f, wu, [2, 4, 7])
        if t == 7:
            put(f, [f"v_add_u32 v{V_CA}, 1024, v{V_CA}", xadv, dg[0], f"s_add_u32 s{S_CNT}, s{S_CNT}, 1"], [3, 4, 5, 5])
            put(f, [f"s_bitcmp1_b32 22, s{S_CNT}", f"s_cbranch_scc1 {NM}_qp"], [6, 7])
        order_gap(f)
        p.extend(pack(M, f, h_valu((t + 1) % 8, (t + 1) % 2, (t + 1) % 2), stop=7 if t == 7 else 8, verbose=vb and f'qp{t}'))
    p.begin_cond()
    p(f"s_cmp_eq_u32 s{S_CNT}, 3\ns_cbranch_scc1 {NM}_switch")
    p.end_cond()
    p.end_loop(5)
    q = Prog()
    q(f"{NM}_switch:")
    kv_switch(q)
    q(f"s_branch {NM}_qp")
    q.finalize()
    outl.append(q)
    stamp(p)
    T = V_H
    BASE = RING0 + PAIR
    lane_id(p, T)
    p(f"""
    v_bfe_u32 v{T+1}, v{T}, 3, 2
    v_mul_u32_u24 v{T+1}, {WBLK}, v{T+1}
    v_bfe_u32 v{T+2}, v{T}, 2, 1
    v_mul_u32_u24 v{T+2}, {PADI}, v{T+2}
    v_add_u32 v{T+1}, v{T+1}, v{T+2}
    v_add_u32 v{T+1}, {BASE}, v{T+1}
    v_and_b32 v{T+2}, 3, v{T}
    v_lshl_add_u32 v{T+1}, v{T+2}, 8, v{T+1}
    v_lshrrev_b32 v{T+3}, 5, v{T}
    v_lshl_add_u32 v{T+1}, v{T+3}, 4, v{T+1}
    """)
    for mm in range(4):
        p(f"v_xor_b32 v{T+4}, {mm}, v{T+2}\nv_lshl_add_u32 v{V_AK+mm}, v{T+4}, 6, v{T+1}")
    p.sync(lgkm=0)
    p.extend(k_reads(SLOT))
    p(f"""s_mov_b32 s{S_DB+2}, s{S_VS+2}
    s_add_u32 s{S_RDB}, s{S_WOFF}, {PAIR}
    s_mov_b32 s{S_CM3}, {(-2*PAIR) & 0xffffffff}
    s_mov_b32 s{S_SOFF}, 20480""")
    p.extend(dma_pair_at())
    p(f"""
    v_mul_u32_u24 v{T+1}, {PADI}, v{T+3}
    v_bfe_u32 v{T+2}, v{T}, 2, 2
    v_lshl_add_u32 v{T+1}, v{T+2}, 8, v{T+1}
    v_bfe_u32 v{T+4}, v{T}, 4, 1
    v_lshl_add_u32 v{T+1}, v{T+4}, 5, v{T+1}
    v_and_b32 v{T+4}, 3, v{T}
    v_lshl_add_u32 v{T+1}, v{T+4}, 3, v{T+1}
    v_add_u32 v{T+1}, {BASE}, v{T+1}
    """)
    for dt in range(4):
        p(f"v_xor_b32 v{T+5}, {dt}, v{T+2}\nv_lshl_add_u32 v{V_AV+dt}, v{T+5}, 6, v{T+1}")
    p(f"v_mov_b32 v{V_LS}, 0\nv_mov_b32 v{V_LS+1}, 0")
    for tile in range(8):
        for i in range(8):
            p(f"v_cvt_pk_bf16_f32 v{8*tile+i}, v{16*tile+2*i}, v{16*tile+2*i+1}")
    upd = lambda: pos_update_at() + [f"v_add_u32 v{V_AV+i}, s{S_DELTA}, v{V_AV+i}" for i in range(4)] + \
        [f"v_add_u32 v{V_AK+i}, s{S_DELTA}, v{V_AK+i}" for i in range(4)]
    p.extend(upd())
    mksrd(p, S_XN, P_WO, None, SZ_WO)
    mksrd(p, S_G, P_WD, None, f"s{S_JBN}")
    p(f"""s_cmp_lt_u32 s{S_WAVE}, 2
    s_cselect_b32 s{S_KS}, s{P_WG}, s{P_WU}
    s_cselect_b32 s{S_KS+1}, s{P_WG+1}, s{P_WU+1}
    s_cmp_lt_u32 s2, 216
    s_cselect_b32 s{S_KS+2}, {SZ_WG}, 0""")
    p.sync(dma_keep=8, lgkm=0)
    f = {}
    put(f, ["s_barrier"], [0])
    dg = dma_pair_at()
    put(f, dg, [0, 1, 3, 5, 7, 7, 8, 9, 10, 12, 14, 14])
    if not OPT.get('noxw'):
        put(f, [f"v_accvgpr_read_b32 v{T+8}, a{A_SV+5}", f"global_load_dword a{A_SF+5}, v{T+8}, s[{P_X}:{P_X+1}]"], [11, 13])
    put(f, k_reads(0), [15] * 8)
    order_gap(f)
    p.extend(pack(qk_mfmas(0, 'zero'), f, [], verbose=vb and 'it-1'))
    for qt in range(2):
        S = V_S + 16 * qt
        m = V_NEGM + 16 * qt
        p(f"""v_max3_f32 v{m}, v{S}, v{S+1}, v{S+2}
        v_max3_f32 v{m+1}, v{S+3}, v{S+4}, v{S+5}
        v_max3_f32 v{m}, v{m}, v{S+6}, v{S+7}
        v_max3_f32 v{m+1}, v{m+1}, v{S+8}, v{S+9}
        v_max3_f32 v{m}, v{m}, v{S+10}, v{S+11}
        v_max3_f32 v{m+1}, v{m+1}, v{S+12}, v{S+13}
        v_max3_f32 v{m}, v{m}, v{S+14}, v{S+15}
        v_max_f32 v{m}, v{m}, v{m+1}
        v_mov_b32 v{m+1}, v{m}""")
    for qt in range(2):
        p(f"v_permlane32_swap_b32 v{V_NEGM+16*qt}, v{V_NEGM+16*qt+1}")
    for qt in range(2):
        m = V_NEGM + 16 * qt
        p(f"v_max_f32 v{m}, v{m}, v{m+1}\nv_sub_f32 v{m}, 0, v{m}")
    for qt in range(2):
        for i in range(1, 16):
            p(f"v_mov_b32 v{V_NEGM+16*qt+i}, v{V_NEGM+16*qt}")
    p(f"""
    v_lshrrev_b32 v{T+1}, 5, v{T}
    v_bfe_u32 v{T+3}, v{T}, 2, 3
    v_lshl_add_u32 v{T+1}, v{T+1}, 4, v{T+3}
    v_lshlrev_b32 v{T+1}, 7, v{T+1}
    v_lshl_add_u32 v{T+1}, v{T+4}, 3, v{T+1}
    s_lshl_b32 s{S_T0}, s{S_WAVE}, 5
    s_add_u32 s{S_T0}, s{S_T0}, {IMG_B - 4096}
    v_lshlrev_b32 v{V_PW}, 5, v{T}
    v_add_u32 v{V_SC}, s{S_T0}, v{T+1}
    v_lshrrev_b32 v{T+1}, 3, v{T}
    v_and_b32 v{T+3}, 7, v{T}
    v_lshlrev_b32 v{T+3}, 4, v{T+3}
    v_mul_u32_u24 v{V_JO}, 1280, v{T+1}
    v_add_u32 v{V_JO}, v{V_JO}, v{T+3}
    v_mul_u32_u24 v{V_WO}, 3456, v{T+1}
    v_add_u32 v{V_WO}, v{V_WO}, v{T+3}
    s_lshl_b32 s{S_SWR}, s{S_WAVE}, 10
    s_add_u32 s{S_SWR}, s{S_SWR}, {IMG_W}
    """)
    stamp(p)
    sub = [f"v_add_f32 v{V_S+16*qt+r}, v{V_NEGM+16*qt}, v{V_S+16*qt+r}" for ks in range(2) for qt in range(2) for r in range(8*ks, 8*ks+8)]
    sm = softmax_stream(0, 0)
    st = sub[:2]; k = 2
    for x in sm:
        st.append(x)
        if x.startswith('v_exp') and k < 32:
            st.append(sub[k]); k += 1
    p.sync(lgkm=0)
    f = {}
    put(f, k_reads(SLOT), [15] * 8)
    p.extend(pack(qk_mfmas(1, 'negm'), f, st, verbose=vb and 'it0'))
    p.extend(upd())
    p(f"s_mov_b32 s{S_CNT}, 0")
    p.sync(dma_keep=8, lgkm=0)
    p.begin_loop()
    p(f"{NM}_at:")
    attn_body(p)
    p.end_loop(6)
    attn_body(p, last=True)
    p("s_barrier")
    p.extend(v_reads(0))
    sm = softmax_stream(1, 1)
    p.extend(sm[:10])
    f = {}
    put(f, v_reads(SLOT, A_K), [i * 12 // 16 for i in range(16)])
    spread(f, wo_dma(3), [4, 7, 12, 13, 14])
    order_gap(f)
    p.extend(pack(pv_mfmas(0), f, sm[10:], verbose=vb and 'it15'))
    T = 88
    row_sums(p, T)
    p(f"""s_mov_b32 s3, {fhex(0.0 if OPT.get('forcefb') else 2.0**80)}
    v_add_f32 v{T}, v{V_LS}, v{V_LS+1}
    v_cmp_ngt_f32 vcc, s3, v{T}""")
    lane_id(p, T + 2)
    p(f"s_cbranch_vccnz {NM}_exact\n{NM}_exact_ret:")
    outl.append(exact_path())
    q = Prog()
    for qt in range(2):
        q(f"v_rcp_f32 v{T+4+2*qt}, v{V_LS+qt}")
    q(f"""
    v_lshrrev_b32 v{T}, 5, v{T+2}
    v_bfe_u32 v{T+1}, v{T+2}, 2, 3
    v_lshl_add_u32 v{T}, v{T}, 4, v{T+1}
    v_mul_u32_u24 v{T}, 160, v{T}
    v_and_b32 v{T+1}, 3, v{T+2}
    v_lshl_add_u32 v{V_AR}, v{T+1}, 3, v{T}
    v_add_u32 v{V_AR+1}, 57344, v{V_AR}
    v_add_u32 v{V_AR+2}, {2*57344}, v{V_AR}
    """)
    for dt in range(4):
        q(f"s_mov_b32 s{S_OOFF+dt}, {dt*4096}")
    head = [x.text for x in q.items]
    def norm(n, packed):
        dt, qt = n >> 1, n & 1
        B = 16 * (n % 4)
        O = V_OF + 8 * n
        L = [f"v_accvgpr_read_b32 v{B+i}, a{oacc(dt,qt)+i}" for i in range(16)]
        if packed:
            L += [f"v_pk_mul_f32 {v(B+2*i,2)}, {v(B+2*i,2)}, {v(T+4+2*qt,2)} op_sel_hi:[1,0]" for i in range(8)]
        else:
            L += [f"v_mul_f32 v{B+i}, v{T+4+2*qt}, v{B+i}" for i in range(16)]
        L += [f"v_cvt_pk_bf16_f32 v{O+i}, v{B+2*i}, v{B+2*i+1}" for i in range(8)]
        L += [f"v_permlane16_swap_b32 v{O+i}, v{O+4+i}" for i in range(4)]
        L += [f"buffer_store_dwordx4 {v(O+4*h,4)}, v{V_L16}, s[{S_O}:{S_O+3}], s{S_OOFF+dt} offen offset:{qt*2048+h*1024} sc1" for h in range(2)]
        return L
    M = pv_mfmas(1, A_K)
    M = [M[8 * ks + i] for i in range(8) for ks in range(2)]
    f = {}
    spread(f, wo_dma(4), [2, 3, 4, 5, 6])
    p.extend(pack(M, f, head + norm(0, False), verbose=vb and 'it16'))
    stamp(p)
    for n in range(1, 8):
        p.extend(norm(n, True))
        if n == 5: p.extend(p2_ard(0))
    stamp(p)


V_OF = 160
V_AR = 84
V_CK = 153
V_GC = 155
V_WR = 192
A_A2 = 160
A_GA = 200
S_F1I = 4

def p2_ard(t):
    base = WO_PIECE[t // 4][t % 4] * 5120
    k = base // 57344
    return [f"ds_read_b64_tr_b16 {a(A_A2+20*(t%2)+4*c+2*jj,2)}, v{V_AR+k} offset:{base-k*57344+32*c+1280*jj}" for c in range(5) for jj in range(2)]

def check_then_poll(p, va, vd, expect):
    global npoll
    lab = f"{NM}_ck{npoll}"
    p(f"v_cmp_gt_u32 vcc, {expect}, v{vd}\ns_cbranch_vccz {lab}")
    p.begin_cond()
    poll(p, va, vd, expect)
    p.end_cond()
    p(f"{lab}:")


WP_CB = [96, 112, 128, 160, 176]
def wp_reads(p, VL):
    A = 214
    p(f"""
    v_lshrrev_b32 v{A}, 5, v{VL}
    v_lshlrev_b32 v218, 6, v{A}
    v_lshlrev_b32 v219, 10, v{A}
    v_bfe_u32 v{A}, v{VL}, 2, 2
    v_lshl_add_u32 v219, v{A}, 7, v219
    v_bfe_u32 v{A}, v{VL}, 4, 1
    v_lshl_add_u32 v219, v{A}, 11, v219
    v_and_b32 v{A}, 3, v{VL}
    v_lshl_add_u32 v219, v{A}, 3, v219
    s_lshl_b32 s3, s{S_WAVE}, 5
    v_add_u32 v219, s3, v219
    """)
    for s_ in range(5):
        for jj in range(2):
            p(f"ds_read_b64_tr_b16 {v(V_WR+4*s_+2*jj,2)}, v219 offset:{IMG_W+4096*s_+512*jj}")
        for i in range(4):
            p(f"ds_read_b128 {v(WP_CB[s_]+4*i,4)}, v218 offset:{LDS_TABW+128*s_+16*i}")

def wp_compute(p):
    A, B_, CS, BI = 214, 215, 216, 217
    RW = V_WR
    p(f"s_mov_b32 s3, 0x3f803f80\nv_mov_b32 v{CS}, 0\nv_mov_b32 v{BI}, 0")
    for s_ in range(5):
        for d in range(4):
            w = RW + 4 * s_ + d
            c = WP_CB[s_] + 2 * d
            p(f"""v_lshlrev_b32 v{A}, 16, v{w}
            v_and_b32 v{B_}, 0xffff0000, v{w}
            v_fmac_f32 v{BI}, v{c+8}, v{A}
            v_fmac_f32 v{BI}, v{c+9}, v{B_}
            v_pk_mul_f32 {v(A,2)}, {v(c,2)}, {v(A,2)}
            v_cvt_pk_bf16_f32 v{w}, v{A}, v{B_}
            v_dot2_f32_bf16 v{CS}, v{w}, s3, v{CS}""")
    p(f"""
    v_mov_b32 v{B_}, v{BI}
    v_mov_b32 v{A}, v{CS}
    v_permlane32_swap_b32 v{BI}, v{B_}
    v_permlane32_swap_b32 v{CS}, v{A}
    v_add_f32 v{CS}, v{CS}, v{A}
    v_add_f32 v{BI}, v{BI}, v{B_}
    v_cvt_pk_bf16_f32 v{V_WR+20}, v{CS}, v{BI}
    v_lshrrev_b32 v{V_WR+21}, 2, v{V_L16}
    """)

def wp_stores(srdn):
    L = []
    for s_ in range(5):
        L.append(f"buffer_store_dwordx4 {v(V_WR+4*s_,4)}, v{V_L16}, s[{srdn}:{srdn+3}], s{S_WPO} offen sc1")
        if s_ < 4: L.append(f"s_add_u32 s{S_WPO}, s{S_WPO}, {108*1024}")
    L += ["s_mov_b32 exec_hi, 0", f"buffer_store_dword v{V_WR+20}, v{V_WR+21}, s[{srdn}:{srdn+3}], s{S_WPX} offen sc1", "s_mov_b32 exec_hi, -1"]
    return L


V_X1 = 240
V_RM = 250
V_TOK, V_G4 = 251, 252
V_GB = 220
V_L16B = 254
AST = 40960
RED = LDS_TOTAL - 61440
S_B2, S_A2 = 8, 12
S_A4 = 40
S_AO4 = 44
V_VB, V_RW, V_RR = 80, 84, 87

def shard_addr(p, vd, cbase):
    p(f"v_and_b32 v{vd}, 0x1f0, v{V_L16}\nv_lshlrev_b32 v{vd}, 4, v{vd}\nv_add_u32 v{vd}, {WS_CNT + cbase*256}, v{vd}")

def a_srd(p, srdn, NKS, PER, WS_A):
    p(f"""
    s_mul_i32 s{S_T2}, s{S_WAVE}, {PER}
    s_lshl_b32 s{S_T1}, s{S_T2}, 3
    s_add_u32 s{S_T1}, s{S_T1}, s{S_CT}
    s_mul_i32 s{S_T1}, s{S_T1}, 5120
    s_add_u32 s{S_T1}, s{S_T1}, {WS_A}
    s_sub_u32 s{S_T2}, {NKS}, s{S_T2}
    s_min_u32 s{S_T2}, s{S_T2}, {PER}
    s_mul_i32 s{S_T2}, s{S_T2}, {AST}
    s_sub_u32 s{S_T2}, s{S_T2}, {AST-5120}
    """)
    mksrd(p, srdn, P_WS, f"s{S_T1}", f"s{S_T2}")

def rot_addrs(p):
    for r in range(4):
        p(f"s_add_u32 s{S_T0}, s{S_WAVE}, {r}\ns_and_b32 s{S_T0}, s{S_T0}, 3\ns_mul_i32 s{S_T1}, s{S_T0}, {HH_RB}\nv_add_u32 v{V_VB+r}, s{S_T1}, v{V_L16}")
        p(f"s_mul_i32 s{S_T1}, s{S_T0}, 15360\ns_add_u32 s{S_T1}, s{S_T1}, {RED + max(r-1,0)*5120}")
        p(f"v_add_u32 v{V_RW+r-1 if r else V_RR}, s{S_T1}, v{V_L16}")

def aloads(afr, j, srdn, so):
    L = [f"buffer_load_dwordx4 {afr(j,i)}, v{V_L16}, s[{srdn}:{srdn+3}], s{so} offen offset:{1024*i} sc1" for i in range(4)]
    L.append(f"buffer_load_dwordx4 {afr(j,4)}, v{V_L16B}, s[{srdn}:{srdn+3}], s{so} offen sc1")
    L.append(f"s_add_u32 s{so}, s{so}, {AST}")
    return L

def bfr(j, i, n=4): return v(96 + 16 * (j % 4) + 4 * i, n)
def bloads(j, srdn, so):
    return [f"buffer_load_dwordx4 {bfr(j,i)}, v{V_VB+i}, s[{srdn}:{srdn+3}], s{so} offen {OPT.get('bflag', 'sc1')}" for i in range(4)] + [f"s_add_u32 s{so}, s{so}, 4096"]

def afr4(j, i, n=4):
    if j < 6: return a(96 + 20 * j + 4 * i, n)
    if j < 9: return v(160 + 20 * (j - 6) + 4 * i, n)
    if j < 13: return a(20 * (j - 9) + 4 * i, n)
    assert n == 4
    return a(80 + 4 * i, 4) if i < 4 else a(216, 4)

def gemm_steps(p, N, afr, extra):
    for t in range(N):
        order = [(r, c) for r in ((1, 2, 3, 0) if t == N - 1 else range(4)) for c in range(5)]
        M = [f"v_mfma_f32_16x16x32_bf16 {v(4*(5*r+c),4)}, {afr(t,c)}, {bfr(t,r)}, {'0' if t == 0 else v(4*(5*r+c),4)}" for r, c in order]
        p.sync(regs=[afr(t, i) for i in range(5)] + [bfr(t, 0, 16)])
        if OPT.get('st3') and N == 32 and t in (0, 1, 4, 8, 12, 16, 20, 24, 28): stamp(p)
        L = list(extra(t))
        f = {}
        if t == N - 1:
            wr = [f"ds_write_b128 v{V_RW+r-1}, {v(4*(5*r+c),4)} offset:{c*1024}" for r in (1, 2) for c in range(5)]
            put(f, wr, [9, 10, 11, 12, 13, 14, 15, 16, 17, 18])
        p.extend(pack(M, f, L, budget=8))

def reduce_tile(p, side):
    side = list(side)
    def mix(L, every):
        for i, x in enumerate(L):
            p.add(x)
            if i % every == every - 1:
                while side:
                    y = side.pop(0); p.add(y)
                    if y.startswith('buffer'): break
    mix([f"ds_write_b128 v{V_RW+2}, {v(4*(15+c),4)} offset:{c*1024}" for c in range(5)], 1)
    p.sync(lgkm=0)
    p("s_barrier")
    for s_ in range(3):
        for c in range(5):
            p(f"ds_read_b128 {v(20+20*s_+4*c,4)}, v{V_RR} offset:{s_*5120+c*1024}")
    L = [f"v_pk_add_f32 {v(2*i,2)}, {v(2*i,2)}, {v(20+2*i,2)}" for i in range(10)]
    L += [f"v_pk_add_f32 {v(40+2*i,2)}, {v(40+2*i,2)}, {v(60+2*i,2)}" for i in range(10)]
    L += [f"v_pk_add_f32 {v(2*i,2)}, {v(2*i,2)}, {v(40+2*i,2)}" for i in range(10)]
    mix(L, 3)
    return side, mix

def residual(G, XR, dst):
    L = []
    for d in range(10):
        L += [f"v_lshlrev_b32 v40, 16, v{XR+d}", f"v_and_b32 v41, 0xffff0000, v{XR+d}",
              f"v_pk_fma_f32 v[40:41], {v(G+2*d,2)}, {v(2*d,2)}, v[40:41]",
              f"v_cvt_pk_bf16_f32 v{dst+d}, v40, v41"]
    return L


def phase2(p):
    V_GA, T = 160, 88
    S_BO, S_WS_, S_PB, S_O2, S_O3, S_PO = 12, 52, 52, 8, 16, 13
    RB2 = OPT.get('rb2', 6)
    afr = lambda t, c, n=4: a(A_A2 + 20 * (t % 2) + 4 * c, n)
    S_B0 = 98
    def bfr2(t, r, n=4):
        if t < 4: return v(V_OF + 16 * t + 4 * r, n)
        if r == 0: return a((12 * RB2 + 4 * (t - 4)) % 160, n)
        return a(12 * (t % RB2) + 4 * (r - 1), n)
    ard = p2_ard
    def adv(t, so):
        nx = (t + 1) // 4
        return [f"s_cmp_gt_u32 s{S_CT}, {nx-1}\ns_cselect_b32 s{so}, {nx-1}, {nx}\ns_lshl_b32 s{so}, s{so}, 14"] if t % 4 == 3 else [f"s_add_u32 s{so}, s{so}, 4096"]
    def bl(t):
        return [f"buffer_load_dwordx4 {bfr2(t,r)}, v{V_L16}, s[{S_B2}:{S_B2+3}], s{S_BO} offen offset:{1024*r} sc1" for r in (1, 2, 3)] + adv(t, S_BO)
    def bl0(t):
        return [f"buffer_load_dwordx4 {bfr2(t,0)}, v{V_L16}, s[{S_B2}:{S_B2+3}], s{S_B0} offen sc1"] + adv(t, S_B0)
    def mf(t):
        rs = range(4) if t < 4 else (1, 2, 3)
        order = [(r, c) for r in rs for c in range(5)] if t == 31 else [(r, c) for c in range(5) for r in rs]
        return [f"v_mfma_f32_16x16x32_bf16 {v(4*(5*r+c),4)}, {afr(t,c)}, {bfr2(t,r)}, {'0' if t == 0 else v(4*(5*r+c),4)}" for r, c in order]
    def setup(q):
        q(f"""
        s_lshl_b32 s{S_T1}, s{S_Q2}, 2
        s_add_u32 s{S_T1}, s{S_T1}, s{S_WAVE}
        s_lshl_b32 s{S_T1}, s{S_T1}, 2
        s_add_u32 s{S_T1}, s{S_T1}, s{S_KQ}
        s_add_u32 s{S_F1I}, s{S_T1}, {C_F1}
        s_lshl_b32 s{S_T0}, s{S_T1}, 17
        s_add_u32 s{S_T0}, s{S_T0}, {WS_O}
        s_cmp_eq_u32 s{S_CT}, 0
        s_cselect_b32 s{S_BO}, 16384, 0
        s_mov_b32 s{S_B0}, s{S_BO}
        """)
        mksrd(q, S_B2, P_WS, f"s{S_T0}", 32 * 4096)
        tile_addr(q, T + 2, V_G4, V_TOK, V_RM)
        q(f"v_add_u32 v{V_L16B}, 4096, v{V_L16}")
        q(f"v_lshrrev_b32 v{T}, 1, v{V_G4}\nv_lshlrev_b32 v{T}, 6, v{T}\nv_and_b32 v{T+1}, 1, v{V_G4}\nv_lshl_add_u32 v{T}, v{T+1}, 4, v{T}")
    su = texts(setup)
    n4 = (len(su) + 3) // 4
    p.sync(lgkm=0)
    for t in range(4):
        f = {}
        if t < 3:
            put(f, ard(t + 1), [1, 2, 3, 4, 6, 7, 8, 10, 11, 12])
            put(f, [mksync(regs=[afr(t + 1, 0, 20)])], [19])
        p.extend(pack(mf(t), f, su[n4 * t:n4 * t + n4], budget=8))
    p("s_waitcnt vmcnt(0)")
    signal(p, S_F1I, T + 3, T + 4)
    stamp(p)
    for t in range(5):
        p(f"ds_read_b128 {v(V_GB+4*t,4)}, v{T} offset:{LDS_TABG+128*t}")
        p(f"ds_read_b128 {a(A_GA+4*t,4)}, v{T} offset:{LDS_TABG+128*t+32}")
    wp_reads(p, T + 2)
    p.sync(lgkm=0)
    p("s_barrier")
    p.extend(ard(4))
    def rest(q):
        wp_compute(q)
        mksrd(q, S_WS_, P_WS, WS_WP, 41 * 108 * 1024)
        q(f"s_cmp_lt_u32 s2, 216\ns_cselect_b32 s{S_WS_+2}, s{S_WS_+2}, 0")
        for r in range(1, 4):
            q(f"s_add_u32 s{S_T0}, s{S_KQ}, {r}\ns_and_b32 s{S_T0}, s{S_T0}, 3\ns_mul_i32 s{S_PO+r-1}, s{S_T0}, 7680\ns_add_u32 s{S_PO+r-1}, s{S_PO+r-1}, {(r-1)*2560}")
    p.extend(merge(texts(rest), wo_dma(5) + wo_dma(6) + wo_dma(7)))
    poll(p, T + 3, T + 4, 8)
    stamp(p)
    nxt = 8
    for t in range(4, nxt):
        p.extend(bl(t))
    p3_setup(p)
    def pk(r):
        return [f"v_cvt_pk_bf16_f32 v{20*r+d}, v{20*r+2*d}, v{20*r+2*d+1}" for d in range(10)] + \
               [f"buffer_store_dwordx4 {v(20*r,4)}, v{V_L16}, s[{S_PB}:{S_PB+3}], s{S_PO+r-1} offen sc1",
                f"buffer_store_dwordx4 {v(20*r+4,4)}, v{V_L16}, s[{S_PB}:{S_PB+3}], s{S_PO+r-1} offen offset:1024 sc1",
                f"buffer_store_dwordx2 {v(20*r+8,2)}, v{T+4}, s[{S_PB}:{S_PB+3}], s{S_PO+r-1} offen offset:2048 sc1"]
    A3 = [96, 116, 160]
    def ard2(t):
        L = []
        for x, (c, jj) in zip(ard(t), [(c, jj) for c in range(5) for jj in range(2)]):
            L.append(re.sub(r'a\[\d+:\d+\]', v(A3[t % 3] + 4 * c + 2 * jj, 2), x))
        return L
    p.sync(regs=[bfr2(4, 1, 12)], lgkm=0)
    n0 = 4
    NE = OPT.get('ne', 8)
    WPS = OPT.get('wps', 4)
    for t in range(4, 32):
        M = mf(t)
        if OPT.get('st3') and t % 4 == 0: stamp(p)
        f = {}
        if t == 19:
            put(f, ["s_barrier"], [0])
        if t < 31:
            put(f, ard(t + 1), [1, 1, 2, 3, 5, 5, 6, 7, 9, 9])
            if nxt < 32:
                if nxt < t + RB2 - 1 and t % 2 == 0 and nxt < 31:
                    spread(f, bl(nxt) + bl(nxt + 1), [0, 4, 8, 10, 11, 12]); nxt += 2
                else:
                    spread(f, bl(nxt), [4, 8, 11]); nxt += 1
            elif t == 30:
                put(f, [f"global_load_dwordx2 {v(V_X1+2*i,2)}, v{V_RM}, s[{P_X}:{P_X+1}] offset:{32*i}" for i in range(5)], [0, 4, 8, 10, 11])
            else:
                k = min(4, 4 + NE - n0)
                spread(f, [x for u in range(n0, n0 + k) for x in bl0(u)], [0, 4, 8, 11]); n0 += k
            if WPS <= t < WPS + 6:
                ws = wp_stores(S_WS_)
                ws = [ws[0:2], ws[2:4], ws[4:6], ws[6:8], ws[8:9], ['\n'.join(ws[9:])]][t - WPS]
                put(f, ws, [13] * len(ws))
            put(f, [mksync(regs=[afr(t + 1, 0, 20), bfr2(t + 1, 1, 12)])], [14])
        else:
            put(f, ard2(4), [0, 0, 1, 1, 2, 2, 3, 3, 4, 4])
        q = Prog()
        if t == WPS + 12:
            q(f"s_and_b32 s3, s2, 7\ns_lshl_b32 s3, s3, 2\ns_add_u32 s3, s3, s{S_WAVE}\ns_add_u32 s3, s3, {C_WP}")
            signal(q, 3, T, T + 1)
        if t == 24:
            shard_addr(q, V_CK, C_WP)
            q(f"v_lshrrev_b32 v{T+4}, 1, v{V_L16}")
        if t == 25:
            q(f"s_mul_i32 s3, s{S_GI}, 30720\ns_add_u32 s3, s3, {WS_PB}")
            mksrd(q, S_PB, P_WS, "s3", 30720)
        L = joined(q)
        order_gap(f)
        if t == 31:
            p.extend(pack(M, f, pk(1), budget=8, start=9))
        else:
            p.extend(pack(M, f, L, budget=8, start=10 if L else 0))
    stamp(p)
    p.extend(pk(2) + pk(3))
    nst = n0; nx5 = 0
    p.extend(ard2(5))
    for t in range(4, 32):
        M = [f"v_mfma_f32_16x16x32_bf16 {v(4*c,4)}, {v(A3[t%3]+4*c,4)}, {bfr2(t,0)}, {v(4*c,4)}" for c in range(5)]
        if t == nst:
            p.sync(regs=[bfr2(t, 0)])
            p(f"s_add_u32 s3, s{S_GI}, {C_G}")
            signal(p, 3, V_GC, V_GC + 1)
            p(f"global_load_dword v{V_CK+1}, v{V_CK}, s[{P_WS}:{P_WS+1}] sc1")
            stamp(p)
        if t == OPT.get('gr', 28):
            RB_ = 40
            p(f"s_mul_i32 s{S_PO}, s{S_KQ}, 7680\ns_add_u32 s{S_PO+1}, s{S_PO}, 2560\ns_add_u32 s{S_PO+2}, s{S_PO}, 5120")
            check_then_poll(p, V_GC, V_GC + 1, 4)
            for s_ in range(3):
                b = RB_ + 2 + 10 * s_
                p(f"""buffer_load_dwordx4 {v(b,4)}, v{V_L16}, s[{S_PB}:{S_PB+3}], s{S_PO+s_} offen sc1
                buffer_load_dwordx4 {v(b+4,4)}, v{V_L16}, s[{S_PB}:{S_PB+3}], s{S_PO+s_} offen offset:1024 sc1
                buffer_load_dwordx2 {v(b+8,2)}, v{T+4}, s[{S_PB}:{S_PB+3}], s{S_PO+s_} offen offset:2048 sc1""")
        p.sync(regs=[v(A3[t % 3], 20), bfr2(t, 0)])
        if OPT.get('st5') and t in (4, 8, 13, 18, 22, 26, 30): stamp(p)
        f = {}
        if t + 2 < 32: put(f, ard2(t + 2), [0, 0, 1, 1, 2, 2, 3, 3, 4, 4])
        if n0 < 32 and (n0 < nst + 8 or t >= nst):
            spread(f, bl0(n0), [2]); n0 += 1
        if t == OPT.get('gs', 23): put(f, [f"global_load_dword v{V_GC+1}, v{V_GC}, s[{P_WS}:{P_WS+1}] {OPT.get('pflag', 'sc1')}"], [4])
        order_gap(f)
        p.extend(pack(M, f, [], budget=8))
    assert n0 == 32
    if OPT.get('st5'): stamp(p)
    check_then_poll(p, V_CK, V_CK + 1, 32)
    p("s_barrier")
    if OPT.get('st5'): stamp(p)
    mksrd(p, S_O2, P_WS, WS_X1F, 64 * 40 * 1024)
    mksrd(p, S_O3, P_WS, WS_STATS, 8 * 2048 * 8)
    p(f"""
    v_lshrrev_b32 v{T}, 5, v{V_TOK}
    v_mul_u32_u24 v{T}, 40960, v{T}
    v_and_b32 v{T+1}, 31, v{V_TOK}
    v_lshl_add_u32 v{T}, v{T+1}, 4, v{T}
    v_lshrrev_b32 v{T+1}, 1, v{V_G4}
    v_lshl_add_u32 v{T}, v{T+1}, 9, v{T}
    v_and_b32 v{T+1}, 1, v{V_G4}
    v_lshl_add_u32 v{T+2}, v{T+1}, 10, v{T}
    v_lshl_add_u32 v{T}, v{T+1}, 3, v{T}
    v_lshlrev_b32 v{T+3}, 3, v{V_TOK}""")
    S_AO = 12
    p(f"""s_mul_i32 s{S_AO}, s{S_CT}, 5120
    s_add_u32 s98, s{S_AO}, 4096
    s_lshl_b32 s99, s{S_CT}, 14
    s_lshl_b32 s3, s{S_Q2}, 2
    s_add_u32 s3, s3, s{S_WAVE}
    s_lshl_b32 s3, s3, 1
    s_lshr_b32 s{S_T0}, s{S_KQ}, 1
    s_add_u32 s3, s3, s{S_T0}
    s_add_u32 s{S_F1I}, s3, {C_F2}
    s_mov_b32 s100, 0x00003f80
    s_mov_b32 s101, 0x3f800000
    s_mov_b32 s3, 0x3f803f80""")
    stamp(p)
    for g in range(OPT.get('pf3', 1)):
        p.extend(p3_dma(g))
    for i in range(20):
        p(f"v_accvgpr_read_b32 v{V_GA+i}, a{A_GA+i}")
    for s_ in range(3):
        b = RB_ + 2 + 10 * s_
        p.sync(regs=[v(b, 10)])
        for d in range(10):
            p(f"v_dot2_f32_bf16 v{2*d}, v{b+d}, s100, v{2*d}\nv_dot2_f32_bf16 v{2*d+1}, v{b+d}, s101, v{2*d+1}")
    p.extend(residual(V_GA, V_X1, V_X1))
    for d in range(10):
        p(f"v_mov_b32 v{20+d}, v{V_X1+d}")
    p("v_mov_b32 v46, 0\nv_mov_b32 v47, 0")
    for t in (0, 2):
        p(f"v_permlane16_swap_b32 v{20+2*t}, v{22+2*t}\nv_permlane16_swap_b32 v{21+2*t}, v{23+2*t}")
    p(f"""
    buffer_store_dwordx4 v[20:23], v{T+2}, s[{S_O2}:{S_O2+3}], s{S_AO} offen sc1
    buffer_store_dwordx4 v[24:27], v{T+2}, s[{S_O2}:{S_O2+3}], s{S_AO} offen offset:2048 sc1
    buffer_store_dwordx2 v[28:29], v{T}, s[{S_O2}:{S_O2+3}], s98 offen sc1
    """)
    for d in range(10):
        p(f"v_dot2_f32_bf16 v46, v{V_X1+d}, s3, v46\nv_dot2_f32_bf16 v47, v{V_X1+d}, v{V_X1+d}, v47")
    for sw in ('16', '32'):
        p(f"""v_mov_b32 v48, v46
        v_mov_b32 v49, v47
        v_permlane{sw}_swap_b32 v46, v48
        v_permlane{sw}_swap_b32 v47, v49
        v_add_f32 v46, v46, v48
        v_add_f32 v47, v47, v49""")
    p(f"""
    s_mov_b64 exec, 0xffff
    buffer_store_dwordx2 v[46:47], v{T+3}, s[{S_O3}:{S_O3+3}], s99 offen sc1
    s_mov_b64 exec, -1
    s_waitcnt vmcnt(0)
    """)
    signal(p, S_F1I, 0, 1)
    stamp(p)


K3_SLOT, K3_NS = 28672, 5
S_A3, S_B3, S_H3 = 20, 24, 28
S_CG, S_AO3, S_W3, S_TL, S_BO3 = 32, 33, 34, 35, 36

def p3_setup(p):
    p(f"""
    s_and_b32 s{S_TL}, s2, 1
    s_lshl_b32 s{S_TL}, s{S_TL}, 3
    s_lshr_b32 s{S_T0}, s2, 5
    s_add_u32 s{S_TL}, s{S_TL}, s{S_T0}
    s_lshl_b32 s{S_TL}, s{S_TL}, 2
    s_add_u32 s{S_TL}, s{S_TL}, s{S_WAVE}
    s_bfe_u32 s{S_CG}, s2, 0x20001
    s_lshl_b32 s{S_CG}, s{S_CG}, 2
    s_bfe_u32 s{S_T0}, s2, 0x20003
    s_add_u32 s{S_CG}, s{S_CG}, s{S_T0}
    s_mul_i32 s{S_CG}, s{S_CG}, 27
    s_lshr_b32 s{S_CG}, s{S_CG}, 2
    s_mul_i32 s{S_AO3}, s{S_WAVE}, {108*1024}
    s_mul_i32 s{S_W3}, s{S_WAVE}, 7168
    s_mov_b32 s{S_BO3}, 0
    s_lshl_b32 s{S_T0}, s{S_CG}, 10
    s_add_u32 s{S_T0}, s{S_T0}, {WS_WP}
    s_mul_i32 s{S_T1}, s{S_TL}, 40960
    s_add_u32 s{S_T1}, s{S_T1}, {WS_X1F}
    """)
    mksrd(p, S_A3, P_WS, f"s{S_T0}", 40 * 108 * 1024 + 7168)
    mksrd(p, S_B3, P_WS, f"s{S_T1}", 40960)
    p(f"""
    s_lshr_b32 s{S_T0}, s{S_TL}, 1
    s_mul_i32 s{S_T0}, s{S_T0}, {HH_RB}
    s_and_b32 s{S_T1}, s{S_TL}, 1
    s_lshl_b32 s{S_T1}, s{S_T1}, 11
    s_add_u32 s{S_T0}, s{S_T0}, s{S_T1}
    s_add_u32 s{S_T0}, s{S_T0}, {WS_HH}
    """)
    mksrd(p, S_H3, P_WS, f"s{S_T0}", 54 * 4096 - 2048)
    a_srd(p, S_A4, 54, 14, WS_WDF)
    p(f"s_mov_b32 s{S_AO4}, 0")

def p3_dma(g):
    base = (g % K3_NS) * K3_SLOT
    if g == 10:
        return [f"s_lshl_b32 s{S_W3}, s{S_WAVE}, 11", f"s_add_u32 s{S_AO3}, s{S_W3}, {40*108*1024}", f"s_add_u32 m0, s{S_W3}, {base}"] + \
               [f"buffer_load_dwordx4 v{V_L16}, s[{S_A3}:{S_A3+3}], s{S_AO3} offen offset:{1024*i} sc1 lds" for i in range(2)]
    L = [f"s_add_u32 m0, s{S_W3}, {base}"]
    L += [f"buffer_load_dwordx4 v{V_L16}, s[{S_A3}:{S_A3+3}], s{S_AO3} offen offset:{1024*i} sc1 lds" for i in range(4)]
    L += [f"s_add_u32 m0, s{S_W3}, {base+4096}"]
    L += [f"buffer_load_dwordx4 v{V_L16B}, s[{S_A3}:{S_A3+3}], s{S_AO3} offen offset:{1024*i} sc1 lds" for i in range(3)]
    L += [f"s_add_u32 s{S_AO3}, s{S_AO3}, {4*108*1024}"]
    return L

def phase3(p):
    V_RD, V_LN, V_ST, V_E, T = 112, 115, 116, 132, 136
    S_STT, S_HO = 8, 12
    A_B, A_A, RB3 = 0, 40, 10
    NP4 = OPT.get('np4', 7)
    def ard(ks):
        slot = (ks // 4) % K3_NS
        if ks == 40:
            return [f"ds_read2st64_b32 {a(A_A+4*i,2)}, v{T+4} offset0:{4*i} offset1:{4*i+1}\nds_read2st64_b32 {a(A_A+4*i+2,2)}, v{T+4} offset0:{4*i+2} offset1:{4*i+3}" for i in range(7)]
        return [f"ds_read_b128 {a(A_A+28*(ks%2)+4*i,4)}, v{V_RD+slot//2} offset:{(slot%2)*K3_SLOT+(ks%4)*7168+i*1024}" for i in range(7)]
    def b_load(t):
        L = [f"buffer_load_dwordx4 {a(A_B+4*(t%RB3),4)}, v{V_L16}, s[{S_B3}:{S_B3+3}], s{S_BO3} offen offset:{(t%4)*1024} sc1"]
        if t % 4 == 3: L.append(f"s_add_u32 s{S_BO3}, s{S_BO3}, 4096")
        return L
    p("s_barrier")
    for g in range(OPT.get('pf3', 1), 5):
        p.extend(p3_dma(g))
    lane_id(p, V_LN)
    p(f"v_mov_b32 v{V_RD}, v{V_L16}\nv_add_u32 v{V_RD+1}, {2*K3_SLOT}, v{V_L16}\nv_add_u32 v{V_RD+2}, {4*K3_SLOT}, v{V_L16}")
    mksrd(p, S_STT, P_WS, WS_STATS, 8 * 2048 * 8)
    p(f"""s_lshl_b32 s{S_T0}, s{S_TL}, 8
    s_add_u32 s{S_T1}, s{S_T0}, {WS_CNT + C_F2*256}
    v_mov_b32 v{T}, s{S_T1}
    v_and_b32 v{T+2}, 31, v{V_LN}
    v_lshlrev_b32 v{T+2}, 3, v{T+2}
    v_lshrrev_b32 v{T+4}, 2, v{V_L16}""")
    p.extend(ard(0))
    poll(p, T, T + 1, 16)
    stamp(p)
    for t in range(RB3 - 1):
        p.extend(b_load(t))
    q = Prog()
    for i in range(8):
        q(f"buffer_load_dwordx2 {v(V_ST+2*i,2)}, v{T+2}, s[{S_STT}:{S_STT+3}], s{S_T0} offen sc1")
        if i < 7: q(f"s_add_u32 s{S_T0}, s{S_T0}, 16384")
    st_loads = [x.text for x in q.items]
    q = Prog()
    q(f"v_add_f32 v{T}, v{V_ST}, v{V_ST+2}\nv_add_f32 v{T+1}, v{V_ST+1}, v{V_ST+3}")
    for i in range(2, 8):
        q(f"v_add_f32 v{T}, v{T}, v{V_ST+2*i}\nv_add_f32 v{T+1}, v{T+1}, v{V_ST+2*i+1}")
    q(f"""v_mul_f32 v{T}, {fhex(1.0/640)}, v{T}
    v_mul_f32 v{T+1}, {fhex(1.0/640)}, v{T+1}
    v_fma_f32 v{T+1}, -v{T}, v{T}, v{T+1}
    v_max_f32 v{T+1}, 0, v{T+1}""")
    round_bf16(q, T + 1, T + 1)
    q(f"v_add_f32 v{T+1}, {fhex(1e-5)}, v{T+1}")
    round_bf16(q, T + 1, T + 1)
    q(f"""v_sqrt_f32 v{T+1}, v{T+1}
    v_sub_f32 v{T}, 0, v{T}
    v_cvt_pk_bf16_f32 v{V_E}, v{T}, v{T+1}
    v_mov_b32 v{V_E+1}, v{V_E}
    v_mov_b32 v{V_E+2}, v{V_E}
    v_mov_b32 v{V_E+3}, v{V_E}
    v_and_b32 v{T+1}, 0xffff0000, v{V_E}
    v_rcp_f32 v{T+1}, v{T+1}
    v_and_b32 v{T+2}, 15, v{V_LN}
    v_lshlrev_b32 v{T+2}, 4, v{T+2}
    v_mul_f32 v{T}, v{T+1}, v{T+1}
    v_mul_f32 v{T+1}, v{T+1}, v{T+1}
    v_bfe_u32 v{T+3}, v{V_LN}, 4, 1
    v_lshl_add_u32 v{T+2}, v{T+3}, 10, v{T+2}
    v_lshrrev_b32 v{T+3}, 5, v{V_LN}
    v_lshl_add_u32 v{T+2}, v{T+3}, 8, v{T+2}""")
    st_math = [x.text for x in q.items]
    q = Prog()
    for i in range(7):
        q(f"""s_add_u32 s{S_T0}, s{S_CG}, {i}
        s_lshr_b32 s{S_T1}, s{S_T0}, 1
        s_lshl_b32 s{S_T1}, s{S_T1}, 12
        s_and_b32 s{S_T0}, s{S_T0}, 1
        s_lshl_b32 s{S_T0}, s{S_T0}, 9
        s_add_u32 s{S_HO+i}, s{S_T0}, s{S_T1}""")
    ho_math = [x.text for x in q.items]
    pend4 = [x for j in range(NP4) for x in aloads(afr4, j, S_A4, S_AO4)]
    p.sync(regs=[a(A_B, 4)], lgkm=0)
    for t in range(41):
        if OPT.get('st4') and t % 4 == 0: stamp(p)
        bsrc = a(A_B + 4 * (t % RB3), 4) if t < 40 else v(V_E, 4)
        M = [f"v_mfma_f32_32x32x16_bf16 {v(16*i,16)}, {a(A_A+28*(t%2)+4*i,4)}, {bsrc}, {'0' if t == 0 else v(16*i,16)}" for i in range(7)]
        f = {}
        mem = []
        abuf = lambda k, lo, n: a(A_A + 28 * (k % 2) + 4 * lo, 4 * n)
        if t > 0 and t % 4 != 3:
            put(f, [mksync(regs=[abuf(t, 4, 3)])], [2])
        if t < 40:
            if t % 4 == 3:
                keep = sum(2 if g_ == 10 else 7 for g_ in range(t // 4 + 2, min(t // 4 + 4, 10) + 1))
                put(f, [mksync(dma_keep=keep, lgkm=0), "s_barrier"], [1, 1])
                put(f, ard(t + 1), [2, 2, 3, 3, 4, 4, 5])
                slots = [0, 5, 6, 6, 6, 6, 6, 6, 6]
            else:
                put(f, ard(t + 1), [0, 0, 1, 1, 3, 3, 4])
                slots = [0, 1, 2, 4, 5, 5, 6, 6, 6]
            if t + RB3 - 1 < 40: mem += b_load(t + RB3 - 1)
            g = t // 4 + 4
            if 5 <= g <= 10 and t % 4 < 3:
                dg = p3_dma(g)
                mem += (dg[:4], dg[4:7], dg[7:])[t % 4]
            if t == 0: mem += st_loads[:7]
            if t == 1: mem += st_loads[7:]
            n4 = {2: 2, 3: 1, 24: 1, 25: 1, 26: 2, 27: 1}.get(t, 0) if t < 28 else (2 if (t < 31 or t % 4 == 3) else 3)
            while pend4 and n4 > 0:
                x = pend4.pop(0); mem.append(x)
                if x.startswith('buffer'): n4 -= 1
            if pend4 and not pend4[0].startswith('buffer'): mem.append(pend4.pop(0))
            nv = sum(1 for x in mem if x.startswith('buffer'))
            if t % 4 != 3 and nv <= 4: slots = [2, 4, 5, 6][-nv:] if nv else []
            gi = 0
            for x in mem:
                if x.startswith('buffer'):
                    put(f, [x], [slots[gi]]); gi += 1
                else:
                    put(f, [x], [slots[gi - 1] if gi else 0])
            nb = [a(A_B + 4 * ((t + 1) % RB3), 4)] if t < 39 else []
            put(f, [mksync(regs=nb + [abuf(t + 1, 0, 4)])], [6])
        stream = st_math[:22] if t == 12 else st_math[22:] if t == 13 else ho_math[:21] if t == 15 else ho_math[21:] if t == 19 else []
        p.extend(pack(M, f, stream, verbose=OPT.get('verbose') and f'p3_{t}'))
    assert not pend4
    stamp(p)
    for i in range(7):
        b = 16 * i
        for r in range(4): p(f"v_pk_mul_f32 {v(b+2*r,2)}, {v(T,2)}, {v(b+2*r,2)}")
        for r in range(4): p(f"v_pk_mul_f32 {v(b+2*r,2)}, {v(b+2*r,2)}, {v(b+8+2*r,2)}")
        for d in range(4): p(f"v_cvt_pk_bf16_f32 v{b+8+d}, v{b+2*d}, v{b+2*d+1}")
        p(f"buffer_store_dwordx4 {v(b+8,4)}, v{T+2}, s[{S_H3}:{S_H3+3}], s{S_HO+i} offen sc1")
    return NP4


def phase4(p, NP4):
    S_B4, S_X, S_BO = 8, 20, 24
    T = 88
    p(f"""s_mul_i32 s{S_T0}, s{S_Q2}, {4*HH_RB}
    s_lshl_b32 s{S_T1}, s{S_KQ}, 10
    s_add_u32 s{S_T0}, s{S_T0}, s{S_T1}
    s_add_u32 s{S_T0}, s{S_T0}, {WS_HH}""")
    mksrd(p, S_B4, P_WS, f"s{S_T0}", 3 * HH_RB + 54 * 4096 - 3072)
    mksrd(p, S_X, P_OUT, None, SZ_X)
    p(f"s_mul_i32 s{S_BO}, s{S_WAVE}, {14*4096}\ns_add_u32 s3, s{S_TL}, {C_F3}\ns_waitcnt vmcnt(0)")
    signal(p, 3, 0, 1)
    stamp(p)
    for j in range(NP4, 14):
        p.extend(aloads(afr4, j, S_A4, S_AO4))
    rot_addrs(p)
    p(f"""s_lshl_b32 s{S_T0}, s{S_Q2}, 3
    s_lshr_b32 s{S_T1}, s{S_KQ}, 1
    s_add_u32 s{S_T0}, s{S_T0}, s{S_T1}
    s_lshl_b32 s{S_T0}, s{S_T0}, 8
    s_add_u32 s{S_T0}, s{S_T0}, {WS_CNT + C_F3*256}
    v_and_b32 v{T+2}, 1, v{V_G4}
    v_lshlrev_b32 v{T}, 9, v{V_G4}
    v_add_u32 v{T}, s{S_T0}, v{T}
    v_mul_u32_u24 v{T+2}, 24, v{T+2}
    v_add_u32 v{T+2}, v{V_RM}, v{T+2}
    s_cmp_lg_u32 s{S_WAVE}, 0
    s_cbranch_scc1 {NM}_p4_nopoll""")
    p.begin_cond()
    poll(p, T, T + 1, 16)
    p.end_cond()
    p(f"{NM}_p4_nopoll:\ns_barrier")
    stamp(p)
    for j in range(3):
        p.extend(bloads(j, S_B4, S_BO))
    gemm_steps(p, 14, afr4, lambda t: bloads(t + 3, S_B4, S_BO) if t + 3 < 14 else [])
    stamp(p)
    reduce_tile(p, [])
    p.extend(residual(V_GB, V_X1, 20))
    for t in (0, 2):
        p(f"v_permlane16_swap_b32 v{20+2*t}, v{22+2*t}\nv_permlane16_swap_b32 v{21+2*t}, v{23+2*t}")
    p(f"buffer_store_dwordx4 v[20:23], v{T+2}, s[{S_X}:{S_X+3}], 0 offen {OPT.get('outflag', '')}")
    p(f"buffer_store_dwordx4 v[24:27], v{T+2}, s[{S_X}:{S_X+3}], 0 offen offset:64 {OPT.get('outflag', '')}")
    p(f"buffer_store_dwordx2 v[28:29], v{V_RM}, s[{S_X}:{S_X+3}], 0 offen offset:128 {OPT.get('outflag', '')}")


HH_RB = 54 * 4096
def gen_mega(opt=None):
    global nstamp, npoll, WS_X1F, WS_HH, HH_RB
    import common
    WS_X1F, WS_HH, HH_RB = common.WS_X1F, common.WS_HH, 54 * 4096
    if (opt or {}).get('alias'):
        WS_X1F, WS_HH, HH_RB = WS_XN, WS_O, 128 * 4096
    nstamp = 0; npoll = 0
    OPT.clear(); OPT.update(opt or {})
    p = Prog()
    outl = []
    p(f"s_cmp_ge_u32 s2, 256\ns_cbranch_scc1 {NM}_end")
    stamp(p)
    if OPT.get('probe'): p("s_memrealtime s[96:97]\ns_waitcnt lgkmcnt(0)\ns_mov_b32 s95, s96")
    phase0(p)
    phase1(p, outl)
    phase2(p)
    phase4(p, phase3(p))
    if OPT.get('stamps'):
        p("s_waitcnt vmcnt(0)")
        p(f"{TIMER()} s[{S_ST}:{S_ST+1}]\ns_waitcnt lgkmcnt(0)")
        p(f"s_lshl_b32 s3, s2, 2\ns_add_u32 s3, s3, s{S_WAVE}\ns_lshl_b32 s3, s3, 7\ns_add_u32 s3, s3, {WS_STAMP}\nv_mov_b32 v0, s3")
        p(f"v_accvgpr_write_b32 a{224+nstamp}, s{S_ST}")
        for i in range(8):
            p(f"global_store_dwordx4 v0, a[{224+4*i}:{227+4*i}], s[{P_WS}:{P_WS+1}] offset:{16*i}")
    if OPT.get('probe'):
        if 'pseg' in OPT:
            p(f"v_accvgpr_read_b32 v0, a{224+OPT['pseg']}\ns_nop 1\nv_readfirstlane_b32 s95, v0")
        p(f"""s_cmp_lg_u32 s2, {OPT.get('pwg', 0)}
        s_cbranch_scc1 {NM}_end
        {NM}_probe:
        s_memrealtime s[96:97]
        s_waitcnt lgkmcnt(0)
        s_sub_u32 s96, s96, s95
        s_cmp_lt_u32 s96, {OPT['probe']*100}
        s_cbranch_scc1 {NM}_probe""")
    if OPT.get('dbgout'):
        p(f"s_cmp_lg_u32 s2, 77\ns_cbranch_scc1 {NM}_end\ns_cmp_lg_u32 s{S_WAVE}, 0\ns_cbranch_scc1 {NM}_end")
        p("v_accvgpr_read_b32 v1, a224\nv_mov_b32 v0, 0")
        sel = [1, 2, 3, 4, 5, 6, 8, 9, 10, 11, 12, 13, 15, 17]
        for n_, k_ in enumerate(sel):
            w_ = n_ + 1 if n_ < 7 else n_ + 2
            p(f"v_accvgpr_read_b32 v2, a{224+k_}\nv_sub_u32 v2, v2, v1\nglobal_store_dword v0, v2, s[{P_DBG}:{P_DBG+1}] offset:{4*w_}")
    p(f"{NM}_end:\ns_endpgm")
    p.finalize(verbose=OPT.get('nopverbose'))
    for q in outl:
        p.items += q.items
    p(f'{NM}_codeend:')
    if not OPT.get('noalign'): align_pass(p)
    return p


NAME = 'adaLN_cond__sliding_block_cached__glu_gated_bilinear__prompt'
def build_file(out, opt=None):
    p = gen_mega(opt)
    head = open('cdna_kernels/' + NAME + '.s.ref').read().split('; Override launch')[0]
    kn = NAME + '_kernel'
    c, d = kernel_text(kn, p, force_vgpr=512)
    if (opt or {}).get('list'):
        launch = f"; @launch kernel={kn} grid=(256,1,1) block=(256,1,1) lds={LDS_TOTAL}\n"
    else:
        launch = f"; @launch grid=(256,1,1) block=(256,1,1) lds={LDS_TOTAL}\n"
    open(out, 'w').write(head + launch + '.amdgcn_target "amdgcn-amd-amdhsa--gfx950"\n' + c + d)
    return p

if __name__ == '__main__':
    opt = {}
    for k in sys.argv[2:]:
        if '=' in k:
            a_, b_ = k.split('='); opt[a_] = int(b_) if b_.isdigit() else b_.replace('+', ' ')
        else: opt[k] = 1
    p = build_file(sys.argv[1], opt)
    print(p.stats(), p.maxregs(), 'stamps', nstamp)
```

```python
import re

def v(i, n=1):
    return f"v{i}" if n == 1 else f"v[{i}:{i+n-1}]"
def a(i, n=1):
    return f"a{i}" if n == 1 else f"a[{i}:{i+n-1}]"
def s(i, n=1):
    return f"s{i}" if n == 1 else f"s[{i}:{i+n-1}]"

_REG = re.compile(r'^(-|\|)?(abs\()?([vas])(\d+|\[(\d+):(\d+)\])\)?\|?$')

def parse_reg(tok):
    tok = tok.strip()
    if tok in ('vcc', 'exec', 'm0', 'scc'):
        return [tok]
    if tok in ('vcc_lo', 'vcc_hi'):
        return ['vcc']
    if tok in ('exec_lo', 'exec_hi'):
        return ['exec']
    m = _REG.match(tok)
    if not m:
        return []
    cls = m.group(3)
    if m.group(5) is not None:
        return [(cls, i) for i in range(int(m.group(5)), int(m.group(6)) + 1)]
    return [(cls, int(m.group(4)))]

TRANS = ('v_exp_f32', 'v_log_f32', 'v_rcp_f32', 'v_rsq_f32', 'v_sqrt_f32', 'v_sin_f32', 'v_cos_f32',
         'v_rcp_iflag_f32')

class Ins:
    __slots__ = ('text', 'op', 'dst', 'src', 'kind', 'passes', 'srcA', 'srcB', 'srcC', 'tag',
                 'need', 'wide', 'dpp', 'comment', 'pos', 'nops', 'cost', 'cond')

    def __init__(self, text, tag=None, need=None):
        self.text = text
        self.tag = tag
        self.need = need
        self.passes = 0
        self.cond = None
        self.srcA = self.srcB = self.srcC = ()
        self.wide = False
        self.dpp = False
        mt = re.search(r';@(\w+)', text)
        if mt: self.tag = mt.group(1); self.text = text = text.split(';')[0].rstrip()
        body = text.split(';')[0].strip()
        parts = body.split(None, 1)
        self.op = op = parts[0]
        ops = []
        if len(parts) > 1:
            depth = 0; cur = ''
            for ch in parts[1]:
                if ch in '[(':
                    depth += 1
                if ch in '])':
                    depth -= 1
                if ch == ',' and depth == 0:
                    ops.append(cur.strip()); cur = ''
                else:
                    cur += ch
            ops.append(cur.strip())
        mods = ''
        if ops:
            last = ops[-1].split(None, 1)
            if len(last) > 1:
                ops[-1] = last[0]; mods = last[1]
        R = [parse_reg(o) for o in ops]
        flat = lambda L: [r for x in L for r in x]
        dst = []; src = []
        if op.endswith(':') or op.startswith('.'):
            kind = 'label'
        elif op.startswith('v_mfma'):
            kind = 'mfma'
            dst = R[0]; self.srcA = tuple(R[1]); self.srcB = tuple(R[2]); self.srcC = tuple(R[3])
            src = R[1] + R[2] + R[3]
            self.passes = 8 if '32x32x16' in op else 4
            assert '32x32x16' in op or '16x16x32' in op
        elif op.startswith('buffer_load') or op.startswith('global_load') :
            if ' lds' in (' ' + mods) or 'load_lds' in op:
                kind = 'dma'; src = flat(R) + ['m0']
            else:
                kind = 'vload'; dst = R[0]; src = flat(R[1:])
        elif op.startswith('buffer_store') or op.startswith('global_store'):
            kind = 'vstore'; src = flat(R)
            self.wide = 'x3' in op or 'x4' in op
            self.srcA = tuple(R[0] if op.startswith('buffer') else R[1])
        elif op.startswith('global_atomic') or op.startswith('buffer_atomic'):
            if 'sc0' in mods and op.startswith('global'):
                kind = 'vload'; dst = R[0]; src = flat(R[1:])
            elif 'sc0' in mods:
                kind = 'vload'; dst = R[0]; src = flat(R)
            else:
                kind = 'vstore'; src = flat(R)
        elif op in ('buffer_wbl2', 'buffer_inv'):
            kind = 'vstore'
        elif op.startswith('ds_read') or op.startswith('ds_bpermute') or op.startswith('ds_swizzle') or op.startswith('ds_permute'):
            kind = 'dsread'; dst = R[0]; src = flat(R[1:])
        elif op.startswith('ds_write') or op.startswith('ds_add') or op.startswith('ds_max') or op.startswith('ds_or'):
            kind = 'dswrite'; src = flat(R)
        elif op.startswith('s_load') or op.startswith('s_memtime') or op.startswith('s_memrealtime'):
            kind = 'smem'; dst = R[0]; src = flat(R[1:])
        elif op == 's_waitcnt':
            kind = 'wait'
        elif op == 'waittag':
            kind = 'waittag'
        elif op == 's_nop':
            kind = 'nop'
        elif op == 's_barrier':
            kind = 'barrier'
        elif op.startswith('s_cbranch') or op == 's_branch' or op == 's_endpgm':
            kind = 'branch'
            if 'vcc' in op: src = ['vcc']
            if 'exec' in op: src = ['exec']
            if 'scc' in op: src = ['scc']
        elif op.startswith('s_cmp') or op.startswith('s_bitcmp'):
            kind = 'salu'; dst = ['scc']; src = flat(R)
        elif op in ('s_setprio', 's_sleep', 's_setreg_imm32_b32'):
            kind = 'salu'
        elif op.startswith('s_'):
            kind = 'salu'; dst = R[0] + ['scc']; src = flat(R[1:])
            if 'saveexec' in op:
                dst = dst + ['exec']; src = src + ['exec']
            if op.startswith('s_addc') or op.startswith('s_cselect') or op.startswith('s_subb'):
                src = src + ['scc']
            if op.startswith('s_addk') or op.startswith('s_mulk'):
                src = src + R[0]
            if op.startswith('s_mov') or op.startswith('s_getreg') or op.startswith('s_mul_') or op.startswith('s_cselect'):
                dst = R[0]
        elif op.startswith('v_'):
            kind = 'trans' if op.replace('_e32', '').replace('_e64', '') in TRANS else 'valu'
            if op.startswith('v_cmp'):
                dst = R[0]; src = flat(R[1:])
            elif '_co_' in op:
                dst = R[0] + R[1]; src = flat(R[2:])
            elif op.startswith('v_permlane') and 'swap' in op:
                dst = R[0] + R[1]; src = R[0] + R[1]
            elif op.startswith('v_div_scale'):
                dst = R[0] + R[1]; src = flat(R[2:])
            else:
                dst = R[0]; src = flat(R[1:])
                if op.startswith('v_fmac') or op.startswith('v_dot2c') or op.startswith('v_writelane') or op.startswith('v_mac'):
                    src = src + R[0]
                if op.startswith('v_div_fmas'):
                    src = src + ['vcc']
                if op.startswith('v_cndmask') and len(ops) == 3:
                    src = src + ['vcc']
            if '_dpp' in op or 'row_' in mods or 'quad_perm' in mods:
                self.dpp = True
                src = src + R[0]
        else:
            raise ValueError('unknown instruction: ' + text)
        self.kind = kind
        self.dst = tuple(dst)
        self.src = tuple(src)

    def states(self):
        if self.kind in ('label', 'waittag'):
            return 0
        if self.kind == 'nop':
            return int(self.text.split()[1], 0) + 1
        return 1


def mksync(regs=(), dma_keep=None, lgkm=None, tags=()):
    rs = []
    for r in regs:
        rs += parse_reg(r)
    return Ins('waittag', need=dict(regs=rs, dma_keep=dma_keep, lgkm=lgkm, tags=tuple(tags)))


class Loop:
    def __init__(self, body, n):
        self.body = body
        self.n = n


class Prog:
    def __init__(self):
        self.items = []
        self.cur = self.items
        self.cond = None
        self._nc = 0

    def begin_cond(self):
        self._nc += 1
        self.cond = self._nc

    def end_cond(self):
        self.cond = None

    def __call__(self, text, tag=None):
        for line in text.split('\n'):
            line = line.strip()
            if not line or line.startswith(';'):
                continue
            ins = Ins(line, tag=tag); ins.cond = self.cond
            self.cur.append(ins)

    def add(self, ins):
        if isinstance(ins, str):
            self(ins)
        else:
            ins.cond = self.cond
            self.cur.append(ins)

    def extend(self, lst):
        for i in lst:
            self.add(i)

    def sync(self, regs=(), dma_keep=None, lgkm=None, tags=()):
        self.add(mksync(regs, dma_keep, lgkm, tags))

    def begin_loop(self):
        self.cur = []

    def end_loop(self, n):
        self.items.append(Loop(self.cur, n))
        self.cur = self.items

    def _trace(self, maxrep=4):
        for it in self.items:
            if isinstance(it, Loop):
                for rep in range(min(it.n, maxrep)):
                    for ins in it.body:
                        yield ins
            else:
                yield it

    def _flat(self):
        for it in self.items:
            if isinstance(it, Loop):
                yield from it.body
            else:
                yield it

    def resolve_waits(self):
        waits = {}
        def simulate(existing, record):
            vmq = []
            lgq = []
            def younger(q, i, c):
                return sum(1 for e in q[i + 1:] if e[2] is None or e[2] == c)
            def apply(q, n, c):
                q[:] = [e for i, e in enumerate(q) if not (younger(q, i, c) >= n and (c is None or e[2] == c))]
            for ins in self._trace():
                vm_need = None; lg_need = None
                c = ins.cond
                if ins.kind == 'wait':
                    m = re.search(r'vmcnt\((\d+)\)', ins.text)
                    if m: apply(vmq, int(m.group(1)), c)
                    m = re.search(r'lgkmcnt\((\d+)\)', ins.text)
                    if m: apply(lgq, int(m.group(1)), c)
                    continue
                touched = set(ins.src) | set(ins.dst)
                if ins.kind == 'waittag':
                    touched = set(ins.need['regs'])
                    keep = ins.need['dma_keep']
                    if keep is not None:
                        idx = [i for i, e in enumerate(vmq) if e[1] == 'dma']
                        if len(idx) > keep:
                            vm_need = younger(vmq, idx[len(idx) - keep - 1], c)
                    for i, e in enumerate(vmq):
                        if e[1] in ins.need['tags']:
                            n = younger(vmq, i, c)
                            vm_need = n if vm_need is None else min(vm_need, n)
                    if ins.need['lgkm'] is not None and len(lgq) > ins.need['lgkm']:
                        lg_need = ins.need['lgkm']
                vtouched = set(ins.src) if ins.kind == 'vload' else touched
                for i, e in enumerate(vmq):
                    if e[0] & vtouched:
                        n = younger(vmq, i, c)
                        vm_need = n if vm_need is None else min(vm_need, n)
                for i, e in enumerate(lgq):
                    if e[0] & touched:
                        n = younger(lgq, i, c)
                        if any(x[1] for x in lgq):
                            n = 0
                        lg_need = n if lg_need is None else min(lg_need, n)
                if vm_need is not None: vm_need = min(vm_need, 63)
                if lg_need is not None: lg_need = min(lg_need, 15)
                if record is not None and (vm_need is not None or lg_need is not None):
                    o = record.get(id(ins), (None, None))
                    mn = lambda x, y: y if x is None else (x if y is None else min(x, y))
                    record[id(ins)] = (mn(o[0], vm_need), mn(o[1], lg_need))
                w = existing.get(id(ins)) if existing is not None else (vm_need, lg_need)
                if existing is not None:
                    ew = w or (None, None)
                    if vm_need is not None:
                        assert ew[0] is not None and ew[0] <= vm_need, ('vm wait insufficient', ins.text)
                    if lg_need is not None:
                        assert ew[1] is not None and ew[1] <= lg_need, ('lgkm wait insufficient', ins.text)
                if w:
                    if w[0] is not None: apply(vmq, w[0], c)
                    if w[1] is not None: apply(lgq, w[1], c)
                if ins.kind in ('vload', 'vstore', 'dma'):
                    vmq.append((set(ins.dst), 'dma' if ins.kind == 'dma' else ins.tag, c))
                    assert len(vmq) <= 63, 'more than 63 VMEM ops outstanding at ' + ins.text
                elif ins.kind in ('dsread', 'dswrite'):
                    lgq.append((set(ins.dst), False, c))
                elif ins.kind == 'smem':
                    lgq.append((set(ins.dst), True, c))
        simulate(None, waits)
        for _ in range(3):
            w2 = {}
            simulate(waits, w2)
            neww = {}
            for k, val in waits.items():
                if k in w2:
                    neww[k] = (val[0] if w2[k][0] is not None else None, val[1] if w2[k][1] is not None else None)
            if neww == waits:
                break
            waits = neww
        simulate(waits, None)
        return waits

    def apply_waits(self):
        waits = self.resolve_waits()
        def rebuild(lst):
            out = []
            for ins in lst:
                if isinstance(ins, Loop):
                    ins.body = rebuild(ins.body); out.append(ins); continue
                w = waits.get(id(ins))
                if w and (w[0] is not None or w[1] is not None):
                    t = 's_waitcnt'
                    if w[0] is not None: t += f' vmcnt({w[0]})'
                    if w[1] is not None: t += f' lgkmcnt({w[1]})'
                    wi = Ins(t); wi.cond = ins.cond; out.append(wi)
                if ins.kind != 'waittag':
                    out.append(ins)
            return out
        self.items = rebuild(self.items)
        self.cur = self.items

    def required_gap(self, p, c):
        need = 0
        pk, ck = p.kind, c.kind
        pd = set(p.dst)
        isvalu_p = pk in ('valu', 'trans')
        isvalu_c = ck in ('valu', 'trans')
        csrc = set(c.src); cdst = set(c.dst)
        if isvalu_p:
            pv = {r for r in pd if isinstance(r, tuple) and r[0] in 'va'}
            ps = {r for r in pd if (isinstance(r, tuple) and r[0] == 's') or r == 'vcc'}
            if ck == 'mfma' and pv & csrc: need = max(need, 2)
            if isvalu_c:
                if c.op.startswith('v_permlane') and pv & csrc: need = max(need, 2)
                if c.dpp and pv & csrc: need = max(need, 2)
                if (c.op.startswith('v_readlane') or c.op.startswith('v_readfirstlane')) and pv & csrc: need = max(need, 1)
                if pk == 'trans' and ck != 'trans' and pv & csrc: need = max(need, 1)
                if pk == 'trans' and ck == 'trans' and pv & csrc: need = max(need, 1)
                if ps & csrc:
                    need = max(need, 4 if (c.op.startswith('v_readlane') or c.op.startswith('v_writelane') or c.op.startswith('v_div_fmas')) else 2)
                if ('sdwa' in p.op and 'dst_sel:DWORD' not in p.text) and pv & (csrc | cdst): need = max(need, 1)
            if p.op.startswith('v_dot') and pv & (csrc | cdst) and c.op != p.op: need = max(need, 3)
            if ck in ('vload', 'vstore', 'dma') and ps & csrc: need = max(need, 5)
            if pk == 'trans' and ck in ('vstore', 'dswrite', 'dsread', 'vload', 'dma') and pv & csrc: need = max(need, 1)
            if ck == 'branch' and 'vcc' in ps and 'vcc' in csrc: need = max(need, 5)
            if ck == 'salu' and ps & csrc: need = max(need, 1)
            if 'exec' in pd: need = max(need, 5)
        if pk == 'mfma':
            P = p.passes
            if ck == 'mfma':
                C = set(c.srcC)
                if pd & C:
                    if not (tuple(p.dst) == tuple(c.srcC) and p.passes == c.passes):
                        need = max(need, P + 2)
                if pd & (set(c.srcA) | set(c.srcB)): need = max(need, P + 4)
                if pd & cdst and not (pd & C):
                    if tuple(p.dst) != tuple(c.dst): need = max(need, P + 2)
            elif isvalu_c or ck in ('vload', 'vstore', 'dma', 'dsread', 'dswrite'):
                if pd & (csrc | cdst): need = max(need, P + 4)
                if isvalu_c and set(p.srcC) & cdst: need = max(need, P - 1)
        if pk == 'salu' and 'm0' in pd and ck == 'dma': need = max(need, 1)
        if pk == 'vstore' and p.wide and set(p.srcA) & cdst:
            need = max(need, 2 if isvalu_c else 1)
        if pk == 'salu' and 'exec' in pd and c.dpp: need = max(need, 1)
        return need

    def apply_nops(self, verbose=False):
        WIN = 24
        extra = {}
        changed = True
        while changed:
            changed = False
            hist = []
            pos = 0
            uhist = []; upos = 0
            for ins in self._trace():
                if ins.kind == 'label':
                    continue
                pos += extra.get(id(ins), 0)
                short = 0
                cands = hist[-WIN:]
                if ins.cond is None:
                    cands = cands + [(q_, pos - (upos + extra.get(id(ins), 0) - up_)) for (q_, up_) in uhist[-WIN:]]
                for (p, ppos) in cands:
                    gap = pos - ppos
                    if gap >= 20: continue
                    need = self.required_gap(p, ins)
                    if need > gap:
                        short = max(short, need - gap)
                if short:
                    extra[id(ins)] = extra.get(id(ins), 0) + short
                    pos += short
                    changed = True
                pos += ins.states()
                hist.append((ins, pos))
                if ins.cond is None:
                    upos += extra.get(id(ins), 0) + ins.states()
                    uhist.append((ins, upos))
        total = 0
        def rebuild(lst):
            nonlocal total
            out = []
            for ins in lst:
                if isinstance(ins, Loop):
                    ins.body = rebuild(ins.body); out.append(ins); continue
                n = extra.get(id(ins), 0)
                if n and verbose:
                    print(f'  nop x{n} before: {ins.text}')
                total += n
                while n > 0:
                    k = min(n, 16)
                    out.append(Ins(f's_nop {k-1}'))
                    n -= k
                out.append(ins)
            return out
        self.items = rebuild(self.items)
        self.cur = self.items
        return total

    def finalize(self, verbose=False):
        self.apply_waits()
        n = self.apply_nops(verbose)
        return n

    def text(self):
        out = []
        for ins in self._flat():
            if ins.kind == 'label':
                out.append(ins.text)
            else:
                out.append('    ' + ins.text)
        return '\n'.join(out) + '\n'

    def stats(self):
        from collections import Counter
        c = Counter()
        for it in self.items:
            if isinstance(it, Loop):
                for ins in it.body: c[ins.kind] += it.n
            else:
                c[it.kind] += 1
        return dict(c)

    def maxregs(self):
        mv = ma = ms = -1
        for ins in self._flat():
            for r in list(ins.dst) + list(ins.src):
                if isinstance(r, tuple):
                    if r[0] == 'v': mv = max(mv, r[1])
                    if r[0] == 'a': ma = max(ma, r[1])
                    if r[0] == 's': ms = max(ms, r[1])
        return mv + 1, ma + 1, ms + 1


def interleave(backbone, fillers):
    out = []
    for m, f in zip(backbone, fillers):
        out.append(m)
        out.extend(f)
    return out


def kernel_text(name, prog, lds_static=0, force_vgpr=None):
    nv, na, ns = prog.maxregs()
    acc = max(4, (nv + 3) // 4 * 4)
    nfv = acc + na if na > 0 else max(nv, 1)
    if force_vgpr:
        nfv = max(nfv, force_vgpr)
    if na == 0:
        acc = min(256, (nfv + 3) // 4 * 4)
    code = f""".text
.globl {name}
.p2align 8
.type {name},@function
{name}:
{prog.text()}"""
    desc = f""".section .rodata,"a"
.p2align 6
.amdhsa_kernel {name}
  .amdhsa_next_free_vgpr {nfv}
  .amdhsa_next_free_sgpr {max(ns, 8)}
  .amdhsa_accum_offset {acc}
  .amdhsa_group_segment_fixed_size 0
  .amdhsa_kernarg_size 112
  .amdhsa_user_sgpr_count 2
  .amdhsa_user_sgpr_kernarg_segment_ptr 1
  .amdhsa_system_sgpr_workgroup_id_x 1
  .amdhsa_float_denorm_mode_32 3
  .amdhsa_float_denorm_mode_16_64 3
.end_amdhsa_kernel
"""
    return code, desc


def icost(x):
    if not isinstance(x, str):
        return 4
    op = x.split()[0]
    if op.startswith('buffer_') or op.startswith('global_'): return 8
    if op.startswith('ds_'): return 5
    if op == 's_barrier': return 18
    if op.startswith('s_cbranch'): return 22
    if op.replace('_e32', '').replace('_e64', '') in TRANS: return 8
    return 4

def gcost(L):
    nl = sum(1 for x in L if isinstance(x, str) and x.startswith('ds_'))
    c = sum(icost(x) for x in L if not (isinstance(x, str) and x.startswith('ds_')))
    return c + (0 if nl == 0 else 4 + 6 * (nl - 1))

def pack(M, fixed, stream, budget=24, start=0, stop=None, verbose=None):
    n = len(M)
    stop = n if stop is None else stop
    gaps = [list(fixed.get(g, [])) for g in range(n)]
    base = [gcost(gaps[g]) for g in range(n)]
    m = len(stream)
    pre = [0]
    for x in stream: pre.append(pre[-1] + icost(x))
    INF = float('inf')
    best = [0] + [INF] * m
    back = []
    for g in range(start, stop):
        nb = [INF] * (m + 1); bk = [0] * (m + 1)
        for j in range(m + 1):
            for i in range(max(0, j - 24), j + 1):
                if best[i] == INF: continue
                c = base[g] + pre[j] - pre[i]
                val = best[i] + max(0, c - budget) * 10000 + c * c
                if val < nb[j]: nb[j] = val; bk[j] = i
        best = nb; back.append(bk)
    j = m
    for g in range(stop - 1, start - 1, -1):
        i = back[g - start][j]
        gaps[g] += stream[i:j]
        j = i
    if verbose:
        est = sum(max(budget, gcost(gaps[g])) + 8 for g in range(n))
        print(f'  pack[{verbose}]: {n} MFMA, est {est} cyc ({est/n:.2f}/MFMA), gap costs', [gcost(gaps[g]) for g in range(n)])
    return interleave(M, gaps)


import subprocess, tempfile, os
_NOPROMO = ('v_readfirstlane', 'v_permlane', 'v_accvgpr', 'v_nop', 'v_add_co', 'v_addc_co', 'v_sub_co', 'v_dot2c', 'v_mbcnt')
def _sizes(prog):
    with tempfile.TemporaryDirectory() as d:
        open(d + '/a.s', 'w').write('.amdgcn_target "amdgcn-amd-amdhsa--gfx950"\n.text\n' + prog.text())
        r = subprocess.run(['clang', '-x', 'assembler', '-target', 'amdgcn-amd-amdhsa', '-mcpu=gfx950', '-c', d + '/a.s', '-o', d + '/a.o'], capture_output=True, text=True)
        assert r.returncode == 0, r.stderr[:2000]
        out = subprocess.run(['llvm-objdump', '-d', '--mcpu=gfx950', d + '/a.o'], capture_output=True, text=True).stdout
    sz = []
    for line in out.splitlines():
        m = re.search(r'// [0-9A-F]{12}: ((?:[0-9A-F]{8} ?)+)', line)
        if m: sz.append(4 * len(m.group(1).split()))
    return sz

def align_pass(prog, cmis=0.8, cpro=0.02):
    ins = [x for x in prog._flat() if x.kind != 'label']
    sz = _sizes(prog)
    assert len(sz) == len(ins), (len(sz), len(ins))
    INF = 1e18
    best = [0.0, INF]; back = []
    for x, s_ in zip(ins, sz):
        promo = s_ == 4 and x.kind in ('valu', 'trans') and not x.op.startswith(_NOPROMO) and not x.dpp and not x.op.endswith('_e64')
        mk = re.match(r'^s_add_u32 (\w+), (\w+), (\d+)$', x.text.strip())
        nxt = ins[len(back) + 1] if len(back) + 1 < len(ins) else None
        demo = s_ == 8 and mk and mk.group(1) == mk.group(2) and int(mk.group(3)) < 32768 and not (nxt and 'scc' in nxt.src)
        nb = [INF, INF]; bk = [None, None]
        for par in (0, 1):
            if best[par] >= INF: continue
            opts = [(s_, 0.0, False)] + ([(8, cpro, True)] if promo else []) + ([(4, cpro, 'k')] if demo else [])
            for size, c, pr in opts:
                cost = best[par] + c + (cmis if (size >= 8 and par) else 0)
                np_ = (par + size // 4) & 1
                if cost < nb[np_]: nb[np_] = cost; bk[np_] = (par, pr)
        best = nb; back.append(bk)
    par = 0 if best[0] <= best[1] else 1
    n = 0
    for x, bk in zip(reversed(ins), reversed(back)):
        par, pr = bk[par]
        if pr == 'k':
            mk = re.match(r'^s_add_u32 (\w+), (\w+), (\d+)$', x.text.strip())
            x.text = f"s_addk_i32 {mk.group(1)}, {mk.group(3)}"
        elif pr:
            x.text = x.text.replace(x.op, x.op + '_e64', 1); n += 1
    return n
```

```python
from common import *
import math, sys, re

OPT = {}
NM = 'L'

P_X, P_K, P_V, P_WQ, P_WO, P_BX, P_WG, P_WU, P_WD, P_C, P_WMOD, P_OUT, P_DBG, P_WS = range(64, 92, 2)
S_WAVE, S_T0, S_T1, S_T2 = 60, 61, 62, 63
S_EX = 92
S_SPIN = 94
S_ST = 96

C_WP, C_F1, C_F2, C_G, C_F3, C_N = 0, 32, 160, 224, 480, 992
C_B0 = 1024
SPIN_MAX = 1 << 16

SLOT, WBLK, PADI = 16768, 4192, 1040
PAIR = 2 * SLOT
LDS_TOTAL = 163840
RING0 = LDS_TOTAL - 4 * PAIR
LDS_TABW = 0
LDS_TABG = 640
LDS_CONST = 1280
LDS_JUNK = LDS_CONST + 10240
IMG_W, IMG_B, IMG_A = 1280, 1280 + 20480, 1280 + 40960
POS = lambda i: RING0 + i * PAIR
WO_PIECE = [[5, 6, 7, 8], [19, 20, 21, 22], [9, 10, 11, 23], [24, 25, 26, 27], [28, 29, 30, 31],
            [0, 1, 2, 3], [12, 13, 14, 15], [16, 17, 18, 4]]
QSCALE = LOG2E / math.sqrt(128.0)

nstamp = 0
def TIMER(): return "s_memtime" if OPT.get("cyc") else "s_memrealtime"
def stamp(p):
    global nstamp
    if OPT.get('stamps'):
        p(f"{TIMER()} s[{S_ST}:{S_ST+1}]\ns_waitcnt lgkmcnt(0)\nv_accvgpr_write_b32 a{224+nstamp}, s{S_ST}")
        nstamp += 1
        assert nstamp <= 31

def lane_id(p, r):
    p(f"v_mbcnt_lo_u32_b32 v{r}, -1, 0")
    p(f"v_mbcnt_hi_u32_b32 v{r}, -1, v{r}")

def mksrd(p, d, ptr, off, size):
    if off is None or off == 0:
        p(f"s_mov_b32 s{d}, s{ptr}\ns_mov_b32 s{d+1}, s{ptr+1}")
    else:
        p(f"s_add_u32 s{d}, s{ptr}, {off}\ns_addc_u32 s{d+1}, s{ptr+1}, 0")
    p(f"s_mov_b32 s{d+2}, {size}\ns_mov_b32 s{d+3}, 0x00020000")

def signal(p, sidx, va, vb, base=P_WS, shift=8, add=WS_CNT):
    p(f"""s_lshl_b32 s{S_T2}, s{sidx}, {shift}
    s_add_u32 s{S_T2}, s{S_T2}, {add}
    v_mov_b32 v{va}, s{S_T2}
    v_mov_b32 v{vb}, 1
    s_mov_b64 exec, 1
    global_atomic_add v{va}, v{vb}, s[{base}:{base+1}] sc1
    s_mov_b64 exec, -1""")

npoll = 0
def poll(p, va, vd, expect, base=P_WS, slp=None):
    global npoll
    npoll += 1
    p(f"""s_mov_b32 s{S_SPIN}, 0
    {NM}_poll{npoll}:
    global_load_dword v{vd}, v{va}, s[{base}:{base+1}] {OPT.get('pflag', 'sc1')}
    s_add_u32 s{S_SPIN}, s{S_SPIN}, 1
    s_waitcnt vmcnt(0)
    v_cmp_gt_u32 vcc, {expect}, v{vd}
    s_cmp_gt_u32 s{S_SPIN}, {SPIN_MAX}
    s_cbranch_scc1 {NM}_pdone{npoll}""")
    slp = OPT.get('slp', 4) if slp is None else slp
    if slp:
        p(f"s_cbranch_vccz {NM}_pdone{npoll}\ns_sleep {slp}\ns_branch {NM}_poll{npoll}")
    else:
        p(f"s_cbranch_vccnz {NM}_poll{npoll}")
    p(f"{NM}_pdone{npoll}:")

def dpp_ror_add(p, r, n):
    p(f"v_add_f32_dpp v{r}, v{r}, v{r} row_ror:{n} row_mask:0xf bank_mask:0xf")

def mod_loads(p, srdn, row, vaddr, dst, n4, imms, soff=None):
    for kq in range(4):
        mksrd(p, srdn, P_WS, WS_MOD + kq * 15360 + row * 2560, 2560)
        for i in range(n4):
            p(f"buffer_load_dwordx4 {v(dst+4*(n4*kq+i),4)}, v{vaddr}, s[{srdn}:{srdn+3}], {soff or 0} offen offset:{imms[i]} sc1")

def mod_sum(p, dst, n):
    for e in range(n):
        p(f"v_add_f32 v{dst+e}, v{dst+e}, v{dst+n+e}")
        p(f"v_add_f32 v{dst+2*n+e}, v{dst+2*n+e}, v{dst+3*n+e}")
    for e in range(n):
        p(f"v_add_f32 v{dst+e}, v{dst+e}, v{dst+2*n+e}")
    for e in range(0, n, 2):
        p(f"v_cvt_pk_bf16_f32 v{dst+e}, v{dst+e}, v{dst+e+1}")
        p(f"v_and_b32 v{dst+e+1}, 0xffff0000, v{dst+e}")
        p(f"v_lshlrev_b32 v{dst+e}, 16, v{dst+e}")

V_Q, V_S, V_X, V_C, V_H, V_T, V_AW, V_DMA, V_CA, V_L16, V_LS = 0, 64, 128, 192, 224, 240, 244, 248, 252, 253, 254
V_NEGM, V_AK, V_AV = 192, 240, 244
V_P = [224, 128]
A_O, A_K, A_V = 0, 128, 160
S_KS, S_VS, S_XN, S_O, S_G = 8, 12, 16, 20, 24
S_DA, S_DB = 28, 32
S_DOFF, S_DSTEP, S_XOFF, S_CNT, S_WR, S_DELTA, S_POS, S_WOFF, S_CM3, S_HEAD, S_QB, S_DMASK = range(36, 48)
S_RDB, S_SOFF, S_SWR = S_DSTEP, 4, S_XOFF
S_PW, S_WOO, S_KQ, S_W5 = 48, 49, 50, 51
S_JB = 52
S_JIN = 58
S_JBN = 59
S_WPO = 5
S_WIN = 6
S_WPX = 7
S_Q2, S_CT = 56, 57
S_OOFF = 98
V_SC, V_JO, V_WO, V_PW, V_WD = 144, 145, 146, 147, 148
A_SF = 192
A_SV = 210
A_FF = 216
S_GI, S_FO = 47, 46
A_XR = 200

def acc(dt, qt): return 16 * (2 * dt + qt)
def qfrag(qt, m): return V_Q + 8 * (2 * (m >> 1) + qt) + 4 * (m & 1)
def oacc(dt, qt): return A_O + 16 * (2 * dt + qt)

def dma4():
    L = []
    for i in range(4):
        srdn = S_DA if i < 2 else S_DB
        off = f" offset:{i*PADI}" if i else ""
        L.append(f"buffer_load_dwordx4 v{V_DMA+i}, s[{srdn}:{srdn+3}], s{S_DOFF} offen{off} nt lds")
    return L

def dma_pair_qp():
    adv = [f"s_add_u32 s{S_DOFF}, s{S_DOFF}, s{S_DSTEP}"]
    return [f"s_mov_b32 m0, s{S_WR}"] + dma4() + adv + [f"s_add_u32 m0, m0, {SLOT}"] + dma4() + adv

def dma_pair_at():
    adv = [f"s_add_u32 s{S_DOFF}, s{S_DOFF}, 8192"]
    return [f"s_mov_b32 m0, s{S_WR}"] + dma4() + adv + [f"s_add_u32 m0, m0, {SLOT}"] + dma4() + adv

def pos_update():
    return [f"s_add_u32 s{S_POS}, s{S_POS}, 1",
            f"s_and_b32 s{S_POS}, s{S_POS}, 3",
            f"s_cselect_b32 s{S_DELTA}, {PAIR}, s{S_CM3}"]
def wr_update():
    return [f"s_xor_b32 s{S_WR}, s{S_POS}, 2",
            f"s_mul_i32 s{S_WR}, s{S_WR}, {PAIR}",
            f"s_add_u32 s{S_WR}, s{S_WR}, s{S_WOFF}"]
def pos_update_at():
    return [f"s_add_u32 s{S_POS}, s{S_POS}, 1",
            f"s_cmp_eq_u32 s{S_POS}, 4",
            f"s_cselect_b32 s{S_POS}, 1, s{S_POS}",
            f"s_cselect_b32 s{S_DELTA}, s{S_CM3}, {PAIR}",
            f"s_mov_b32 s{S_WR}, s{S_RDB}",
            f"s_add_u32 s{S_RDB}, s{S_RDB}, s{S_DELTA}"]

def a_reads(buf, kp):
    L = []
    for dt in range(4):
        for jj in range(2):
            r = A_K + 16 * buf + 4 * dt + 2 * jj
            L.append(f"ds_read_b64_tr_b16 a[{r}:{r+1}], v{V_AW+dt} offset:{(kp//4)*SLOT + (kp%4)*WBLK + jj*PADI}")
    return L

def c_reads(buf, off):
    return [f"ds_read_b128 {v(V_C+16*buf+4*i,4)}, v{V_CA} offset:{off+16*i}" for i in range(4)]

def h_valu(xr, cbuf, hbuf):
    L = []
    n = 0
    for qt in range(2):
        for d in range(4):
            x = V_X + 8 * xr + 4 * qt + d
            ca = V_C + 16 * cbuf + 2 * d
            t0 = V_T + 2 * (n % 2); n += 1
            L.append(f"v_fma_mix_f32 v{t0}, v{x}, v{ca}, v{ca+8} op_sel_hi:[1,0,0]")
            L.append(f"v_fma_mix_f32 v{t0+1}, v{x}, v{ca+1}, v{ca+9} op_sel:[1,0,0] op_sel_hi:[1,0,0]")
            L.append(f"v_cvt_pk_bf16_f32 v{V_H+8*hbuf+4*qt+d}, v{t0}, v{t0+1}")
    return L

def x_loads(xr, imm):
    return [f"buffer_load_dwordx4 {v(V_X+8*xr+4*qt,4)}, v{V_XA+qt}, s[{S_XN}:{S_XN+3}], s{S_XOFF} offen offset:{imm} sc1"
            for qt in range(2)]

def k_reads(slotimm):
    return [f"ds_read_b128 {a(A_K+4*m,4)}, v{V_AK+(m>>1)} offset:{slotimm+(m&1)*32}" for m in range(8)]

def v_reads(slotimm, dst=A_V):
    L = []
    for ks in range(2):
        for dt in range(4):
            for jj in range(2):
                r = dst + 16 * ks + 4 * dt + 2 * jj
                L.append(f"ds_read_b64_tr_b16 a[{r}:{r+1}], v{V_AV+dt} offset:{slotimm + 2080 + (2*ks+jj)*WBLK}")
    return L

def qk_mfmas(sbuf, cinit):
    L = []
    for m in range(8):
        for qt in range(2):
            d = V_S + 32 * sbuf + 16 * qt
            c = ('0' if cinit == 'zero' else v(V_NEGM + 16 * qt, 16)) if m == 0 else v(d, 16)
            L.append(f"v_mfma_f32_32x32x16_bf16 {v(d,16)}, {a(A_K+4*m,4)}, {v(qfrag(qt,m),4)}, {c}")
    return L

def pv_mfmas(pbuf, src=A_V):
    L = []
    for ks in range(2):
        for dt in range(4):
            for qt in range(2):
                o = oacc(dt, qt)
                L.append(f"v_mfma_f32_32x32x16_bf16 {a(o,16)}, {a(src+16*ks+4*dt,4)}, {v(V_P[pbuf]+8*qt+4*ks,4)}, {a(o,16)}")
    return L

def softmax_stream(sbuf, pbuf):
    elems = [(qt, r) for ks in range(2) for qt in range(2) for r in range(8 * ks, 8 * ks + 8)]
    L = []
    def post(i):
        qt, r = elems[i]
        x = V_S + 32 * sbuf + 16 * qt + r
        L.append(f"v_add_f32 v{V_LS+qt}, v{V_LS+qt}, v{x}")
        if r % 2 == 1:
            L.append(f"v_cvt_pk_bf16_f32 v{V_P[pbuf]+8*qt+r//2}, v{x-1}, v{x}")
    for i, (qt, r) in enumerate(elems):
        x = V_S + 32 * sbuf + 16 * qt + r
        L.append(f"v_exp_f32 v{x}, v{x}")
        if i >= 1: post(i - 1)
    post(31)
    return L

def put(fixed, items, positions):
    assert len(items) == len(positions), (len(items), len(positions))
    for it, g in zip(items, positions):
        fixed.setdefault(g, []).append(it)

def order_gap(fixed):
    def key(x):
        if not isinstance(x, str): return 1
        if x.startswith('buffer_') or x.startswith('ds_') or x.startswith('global_'): return 0
        if x.startswith('s_'): return 1
        return 2
    for g in fixed:
        fixed[g].sort(key=key)

def prefill(p, lo, hi):
    for i in range(lo, hi):
        p(f"""s_add_u32 s{S_DELTA}, s{S_Q2}, {i}
        s_and_b32 s{S_DELTA}, s{S_DELTA}, 3
        s_lshl_b32 s{S_DOFF}, s{S_DELTA}, 19
        s_mul_i32 s{S_DELTA}, s{S_DELTA}, {SLOT}
        s_add_u32 m0, s{S_DELTA}, s{S_WOFF}""")
        p.extend(dma4())


V_TID = 232
V_ZERO = 234
V_XA = 254
VP_O1, VP_O2, VP_SC, VP_AD, VP_LA = 240, 241, 242, 243, 233

def joined(q):
    out = []; hold = False
    for x in q.items:
        if out and (hold or 'scc' in x.src):
            out[-1] += '\n' + x.text
        else:
            out.append(x.text)
        if 'exec' in x.dst: hold = not x.text.rstrip().endswith('-1')
    return out

def texts(fn):
    q = Prog(); fn(q); return joined(q)

def merge(*lists):
    lists = [list(l) for l in lists if l]
    n = [len(l) for l in lists]; idx = [0] * len(lists); out = []
    while any(idx[k] < n[k] for k in range(len(lists))):
        k = min((k for k in range(len(lists)) if idx[k] < n[k]), key=lambda k: idx[k] / n[k])
        out.append(lists[k][idx[k]]); idx[k] += 1
    return out

def phase0(p):
    XL, XF, M, Q, C, W, SI, AC, U = 128, 140, 160, 164, 172, 180, 200, 210, 218
    AX, ACc, AW, AIM, AJW, AIR, AXS, T0, T1 = range(222, 231)
    p(f"""
    s_load_dwordx16 s[64:79], s[0:1], 0
    s_load_dwordx8 s[80:87], s[0:1], 64
    s_load_dwordx4 s[88:91], s[0:1], 96
    v_lshrrev_b32 v1, 6, v0
    v_mov_b32 v{V_TID}, v0
    v_readfirstlane_b32 s{S_WAVE}, v1
    """)
    if not OPT.get('nocodepf'):
        p(f"""
        s_getpc_b64 s[4:5]
        {NM}_pc:
        s_lshr_b32 s3, s2, 3
        s_lshl_b32 s3, s3, 11
        v_lshlrev_b32 v1, 3, v0
        v_add_u32 v1, s3, v1
        v_min_u32 v1, {NM}_codeend-{NM}_pc-8, v1
        global_load_dwordx2 a[220:221], v1, s[4:5]
        """)
    p(f"""
    s_lshl_b32 s3, s2, 3
    v_lshrrev_b32 v1, 5, v0
    v_add_u32 v{AX}, s3, v1
    v_and_b32 v2, 31, v0
    v_mul_u32_u24 v{AX}, 1280, v{AX}
    v_lshl_add_u32 v{AX}, v2, 3, v{AX}
    s_and_b32 s6, s2, 3
    s_mul_i32 s6, s6, 160
    s_lshr_b32 s7, s2, 2
    s_lshl_b32 s3, s7, 7
    s_cmp_ge_u32 s2, 240
    s_cselect_b32 s3, 0x40000000, s3
    v_lshrrev_b32 v4, 3, v0
    v_add_u32 v4, s6, v4
    v_mul_u32_u24 v{AW}, 7680, v4
    v_and_b32 v6, 7, v0
    v_lshlrev_b32 v6, 4, v6
    v_add3_u32 v{AW}, v{AW}, v6, s3
    v_lshlrev_b32 v{ACc}, 1, v4
    s_mov_b32 s10, {SZ_X}
    s_mov_b32 s11, 0x00020000
    s_mov_b32 s14, {SZ_C}
    s_mov_b32 s15, 0x00020000
    s_mov_b32 s18, {SZ_WMOD}
    s_mov_b32 s19, 0x00020000
    """)
    for i in range(1, 5):
        p(f"s_mov_b32 s{97+i}, {i*32*7680}")
    p(f"""
    s_bfe_u32 s{S_KQ}, s2, 0x20001
    s_and_b32 s{S_Q2}, s2, 1
    s_lshl_b32 s{S_Q2}, s{S_Q2}, 2
    s_bfe_u32 s{S_T0}, s2, 0x20003
    s_add_u32 s{S_Q2}, s{S_Q2}, s{S_T0}
    s_lshr_b32 s{S_CT}, s2, 5
    s_lshl_b32 s{S_HEAD}, s{S_KQ}, 3
    s_add_u32 s{S_HEAD}, s{S_HEAD}, s{S_CT}
    s_mul_i32 s{S_WOFF}, s{S_WAVE}, {WBLK}
    s_add_u32 s{S_WOFF}, s{S_WOFF}, {RING0}
    v_and_b32 v7, 63, v0
    v_lshlrev_b32 v{V_L16}, 4, v7
    v_lshrrev_b32 v8, 4, v7
    v_and_b32 v9, 15, v7
    v_lshlrev_b32 v10, 2, v8
    v_xor_b32 v9, v10, v9
    v_lshlrev_b32 v9, 4, v9
    v_lshl_add_u32 v9, v8, 13, v9
    s_lshl_b32 s{S_T0}, s{S_WAVE}, 17
    v_add_u32 v{V_DMA}, s{S_T0}, v9
    """)
    for i in range(1, 4):
        p(f"v_add_u32 v{V_DMA+i}, {i*(4*8192-PADI)}, v{V_DMA}")
    p("s_waitcnt lgkmcnt(0)")
    if OPT.get('st0'): stamp(p)
    if OPT.get('wsoff'):
        p(f"s_add_u32 s{P_WS}, s{P_WS}, {OPT['wsoff'] << 20}\ns_addc_u32 s{P_WS+1}, s{P_WS+1}, 0")
    p(f"""
    s_mov_b32 s8, s{P_X}
    s_mov_b32 s9, s{P_X+1}""")
    for i in range(5):
        p(f"buffer_load_dwordx2 {v(XL+2*i,2)}, v{AX}, s[8:11], 0 offen offset:{i*256} {'' if OPT.get('xplain') else 'nt'}")
    p(f"s_mov_b32 s12, s{P_C}\ns_mov_b32 s13, s{P_C+1}\ns_mov_b32 s16, s{P_WMOD}\ns_mov_b32 s17, s{P_WMOD+1}")
    for i in range(5):
        p(f"buffer_load_ushort v{C+i}, v{ACc}, s[12:15], 0 offen offset:{i*64}")
    for i in range(5):
        p(f"buffer_load_dwordx4 {v(W+4*i,4)}, v{AW}, s[16:19], {'s%d' % (97+i) if i else 0} offen nt")
    if not OPT.get('b0dbg'):
        p(f"s_lshl_b32 s3, s2, 2\ns_add_u32 s3, s3, s{S_WAVE}\ns_cmp_lg_u32 s3, 1\ns_cbranch_scc1 {NM}_p0_noclr")
        p.begin_cond()
        p(f"""v_lshlrev_b32 v10, 4, v{V_L16}
        v_add_u32 v10, {WS_CNT + C_B0*256}, v10
        v_mov_b32 v11, 0
        global_store_dword v10, v11, s[{P_WS}:{P_WS+1}] sc1
        v_mov_b32 v12, 1
        s_waitcnt vmcnt(0)
        s_mov_b64 exec, 1
        global_store_dword v11, v12, s[{P_DBG}:{P_DBG+1}] sc1
        s_mov_b64 exec, -1""")
        p.end_cond()
        p(f"{NM}_p0_noclr:")
    p(f"""
    s_lshl_b32 s{S_T0}, s{S_HEAD}, 8
    s_add_u32 s{S_DA}, s{P_WQ}, s{S_T0}
    s_addc_u32 s{S_DA+1}, s{P_WQ+1}, 0
    s_sub_u32 s{S_DA+2}, {SZ_WQ}, s{S_T0}
    s_mov_b32 s{S_DA+3}, 0x00020000
    s_mov_b32 s{S_DB}, s{S_DA}
    s_mov_b32 s{S_DB+1}, s{S_DA+1}
    s_mov_b32 s{S_DB+2}, s{S_DA+2}
    s_mov_b32 s{S_DB+3}, 0x00020000
    """)
    p(f"""
    v_lshrrev_b32 v{AIM}, 1, v2
    v_lshlrev_b32 v{AIM}, 7, v{AIM}
    v_lshl_add_u32 v{AIM}, v1, 4, v{AIM}
    v_and_b32 v7, 1, v2
    v_lshl_add_u32 v{AIM}, v7, 3, v{AIM}
    v_add_u32 v{AIM}, {LDS_CONST}, v{AIM}
    v_lshrrev_b32 v1, 4, v0
    v_lshlrev_b32 v{AJW}, 8, v1
    v_lshl_add_u32 v{AJW}, v6, 1, v{AJW}
    v_add_u32 v{AJW}, {LDS_JUNK}, v{AJW}
    v_lshlrev_b32 v{AIR}, 4, v0
    v_add_u32 v{AIR}, {LDS_CONST}, v{AIR}
    v_lshl_add_u32 v{AXS}, v1, 11, v6
    v_bfe_u32 v3, v0, 3, 1
    v_lshl_add_u32 v{AXS}, v3, 9, v{AXS}
    s_and_b32 s100, s2, 3
    s_mul_i32 s100, s100, 15360
    s_lshl_b32 s7, s7, 8
    s_add_u32 s100, s100, s7
    """)
    p1_setup(p)
    pf = [texts(lambda q, i=i: prefill(q, i, i + 1)) for i in range(4)]
    NB = OPT.get('nb1', 1)
    late = pf[NB:]
    pf = pf[:NB] + [[]] * 8
    p.extend(pf[0])
    p(f"v_mov_b32 v{V_ZERO}, 0")
    p(f"""
    s_lshr_b32 s3, s2, 3
    s_mul_i32 s3, s3, 81920
    s_bfe_u32 s{S_T0}, s2, 0x10002
    s_lshl_b32 s{S_T0}, s{S_T0}, 10
    s_add_u32 s3, s3, s{S_T0}
    s_and_b32 s{S_T0}, s2, 3
    s_lshl_b32 s{S_T0}, s{S_T0}, 7
    s_add_u32 s3, s3, s{S_T0}
    s_add_u32 s3, s3, {WS_XN}
    s_mov_b32 s98, 32768
    s_mov_b32 s99, 65536
    """)
    mksrd(p, S_G, P_WS, 's3', 40 * 2048 - 1024)
    p(f"s_mov_b32 s3, 0x3f803f80\ns_mov_b32 s101, {fhex(-LOG2E)}")
    if OPT.get('st0'): stamp(p)
    def red32(q, r):
        for n in (1, 2, 4, 8):
            dpp_ror_add(q, r, n)
        q(f"v_mov_b32 v{r+1}, v{r}\nv_permlane16_swap_b32 v{r}, v{r+1}\nv_add_f32 v{r}, v{r}, v{r+1}")
    def ln1(q):
        q(f"v_dot2_f32_bf16 v{M}, v{XL}, s3, 0\nv_dot2_f32_bf16 v{M+1}, v{XL+1}, s3, 0")
        for i in range(2, 10):
            q(f"v_dot2_f32_bf16 v{M+i%2}, v{XL+i}, s3, v{M+i%2}")
    def unp(q):
        for i in range(10):
            q(f"v_lshlrev_b32 v{XF+2*i}, 16, v{XL+i}\nv_and_b32 v{XF+2*i+1}, 0xffff0000, v{XL+i}")
    def ln2(q):
        q(f"v_add_f32 v{M}, v{M}, v{M+1}")
        red32(q, M)
        q(f"v_mul_f32 v{M}, {fhex(-1.0/640)}, v{M}")
    def ln3(q):
        for i in range(10):
            t = Q + 2 + 2 * (i % 2)
            q(f"v_pk_add_f32 {v(t,2)}, {v(XF+2*i,2)}, {v(M,2)} op_sel_hi:[1,0]")
            q(f"v_pk_mul_f32 {v(Q,2)}, {v(t,2)}, {v(t,2)}" if i == 0 else f"v_pk_fma_f32 {v(Q,2)}, {v(t,2)}, {v(t,2)}, {v(Q,2)}")
    def ln4(q):
        q(f"v_add_f32 v{Q}, v{Q}, v{Q+1}")
        red32(q, Q)
        q(f"v_mul_f32 v{Q}, {fhex(1.0/640)}, v{Q}")
        round_bf16(q, Q, Q)
        q(f"v_add_f32 v{Q}, {fhex(1e-5)}, v{Q}")
        round_bf16(q, Q, Q)
        q(f"v_sqrt_f32 v{Q}, v{Q}")
        round_bf16(q, M, M)
        round_bf16(q, Q, Q)
        q(f"v_rcp_f32 v{Q}, v{Q}")
    def silu(q):
        for i in range(5):
            q(f"v_lshlrev_b32 v{C+i}, 16, v{C+i}\nv_mul_f32 v{SI+2*i}, s101, v{C+i}\nv_exp_f32 v{SI+2*i}, v{SI+2*i}")
        for i in range(5):
            q(f"v_add_f32 v{SI+2*i}, 1.0, v{SI+2*i}\nv_rcp_f32 v{SI+2*i}, v{SI+2*i}")
        for i in range(5):
            q(f"v_mul_f32 v{SI+2*i}, v{C+i}, v{SI+2*i}")
            round_bf16(q, SI + 2 * i, SI + 2 * i)
    p.sync(regs=[v(XL, 10)])
    if OPT.get('st0'): stamp(p)
    p.extend(texts(ln1))
    p.extend(merge(texts(ln2), texts(unp)))
    p.extend(pf[1])
    p.extend(texts(ln3))
    p.sync(regs=[v(C, 5)])
    p.extend(merge(texts(ln4), texts(silu)))
    p.extend(pf[2])
    for i in range(10):
        x0, x1 = XF + 2 * i, XF + 2 * i + 1
        p(f"""v_pk_add_f32 {v(x0,2)}, {v(x0,2)}, {v(M,2)} op_sel_hi:[1,0]
        v_cvt_pk_bf16_f32 v{x0}, v{x0}, v{x1}
        v_and_b32 v{x1}, 0xffff0000, v{x0}
        v_lshlrev_b32 v{x0}, 16, v{x0}
        v_pk_mul_f32 {v(x0,2)}, {v(x0,2)}, {v(Q,2)} op_sel_hi:[1,0]
        v_cvt_pk_bf16_f32 v{x0}, v{x0}, v{x1}
        v_and_b32 v{x1}, 0xffff0000, v{x0}
        v_lshlrev_b32 v{x0}, 16, v{x0}
        v_cvt_pk_f16_f32 v{XL+i}, v{x0}, v{x1}""")
        if i % 2 == 1:
            p(f"ds_write_b64 v{AIM}, {v(XL+i-1,2)} offset:{(i//2)*2048}")
        if i == 4: p.extend(pf[3])
    p.extend(pf[4])
    if OPT.get('st0'): stamp(p)
    p.sync(regs=[v(W, 20)])
    if OPT.get('st0'): stamp(p)
    for i in range(5):
        for d in range(4):
            w = W + 4 * i + d
            u = U + 2 * (d % 2)
            p(f"v_lshlrev_b32 v{u}, 16, v{w}\nv_and_b32 v{u+1}, 0xffff0000, v{w}")
            p(f"v_pk_mul_f32 {v(AC+2*d,2)}, {v(u,2)}, {v(SI,2)} op_sel_hi:[1,0]" if i == 0 else
              f"v_pk_fma_f32 {v(AC+2*d,2)}, {v(u,2)}, {v(SI+2*i,2)}, {v(AC+2*d,2)} op_sel_hi:[1,0,1]")
    p(f"v_and_b32 v{T0}, 8, v{V_TID}\nv_cmp_eq_u32 vcc, 0, v{T0}")
    for e in range(8):
        dpp_ror_add(p, AC + e, 8)
    p(f"""
    s_and_saveexec_b64 s[{S_EX}:{S_EX+1}], vcc
    ds_write_b128 v{AJW}, {v(AC,4)}
    ds_write_b128 v{AJW}, {v(AC+4,4)} offset:16
    s_mov_b64 exec, s[{S_EX}:{S_EX+1}]
    """)
    p.sync(lgkm=0)
    p("s_barrier")
    if OPT.get('st0'): stamp(p)
    for i in range(3):
        p(f"ds_read_b128 {v(XF+4*i,4)}, v{AIR} offset:{4096*i}")
    p(f"""
    s_cmp_lg_u32 s{S_WAVE}, 3
    s_cbranch_scc1 {NM}_p0_nomod
    """)
    p.begin_cond()
    p(f"""
    s_cmp_ge_u32 s2, 240
    s_cbranch_scc1 {NM}_p0_nomod
    v_lshrrev_b32 v{T0}, 2, v{V_L16}
    v_add_u32 v{T1}, {LDS_JUNK}, v{T0}
    """)
    for i in range(8):
        p(f"ds_read2st64_b32 {v(W+2*i,2)}, v{T1} offset0:{2*i} offset1:{2*i+1}")
    p(f"v_add_u32 v{T0}, s100, v{T0}")
    for st in (4, 2, 1):
        for i in range(st):
            p(f"v_pk_add_f32 {v(W+2*i,2)}, {v(W+2*i,2)}, {v(W+2*i+2*st,2)}")
    p(f"""
    v_add_f32 v{W}, v{W}, v{W+1}
    global_store_dword v{T0}, v{W}, s[{P_WS}:{P_WS+1}] sc1
    """)
    p.end_cond()
    p(f"""
    {NM}_p0_nomod:
    s_waitcnt lgkmcnt(0)
    buffer_store_dwordx4 {v(XF,4)}, v{AXS}, s[{S_G}:{S_G+3}], 0 offen sc1
    buffer_store_dwordx4 {v(XF+4,4)}, v{AXS}, s[{S_G}:{S_G+3}], s98 offen sc1
    buffer_store_dwordx4 {v(XF+8,4)}, v{AXS}, s[{S_G}:{S_G+3}], s99 offen sc1
    """)
    mksrd(p, S_G, P_WS, WS_CNT, C_N * 256)
    p(f"""
    s_cmp_lg_u32 s{S_WAVE}, 2
    s_cbranch_scc1 {NM}_p0_nozero
    """)
    p.begin_cond()
    p(f"""
    v_lshlrev_b32 v{T0}, 12, v{V_L16}
    s_lshl_b32 s3, s2, 8
    buffer_store_dword v{V_ZERO}, v{T0}, s[{S_G}:{S_G+3}], s3 offen sc1
    """)
    p.end_cond()
    NSH = OPT.get('nsh', 32)
    p(f"{NM}_p0_nozero:")
    if not OPT.get('b0dbg'):
        p(f"global_load_dword v{U}, v{V_ZERO}, s[{P_DBG}:{P_DBG+1}] sc1")
    p(f"""
    s_waitcnt vmcnt(0)
    s_barrier
    s_cmp_lg_u32 s{S_WAVE}, 0
    s_cbranch_scc1 {NM}_p0_nosig
    """)
    p.begin_cond()
    if OPT.get('b0dbg'):
        p("s_and_b32 s3, s2, 7")
        signal(p, 3, T0, T1, base=P_DBG, shift=5, add=0)
    else:
        p(f"v_cmp_gt_u32 vcc, 1, v{U}\ns_cbranch_vccz {NM}_p0_clr")
        poll(p, V_ZERO, U, 1, base=P_DBG)
        p(f"{NM}_p0_clr:\ns_and_b32 s3, s2, {NSH-1}\ns_add_u32 s3, s3, {C_B0}")
        signal(p, 3, T0, T1)
    p.end_cond()
    p(f"{NM}_p0_nosig:")
    stamp(p)
    zero = [f"v_accvgpr_write_b32 a{i}, 0" for i in range(128)] + [f"v_mov_b32 v{i}, 0" for i in range(128)]
    p.extend(merge(zero, ['\n'.join(g[:5]) if k == 0 else x for g in late for k, x in enumerate(g) if k == 0 or k >= 5]))
    if OPT.get('st0'): stamp(p)
    mksrd(p, S_G, P_WS, WS_MOD, 4 * 15360)
    p(f"""
    s_mov_b32 s{S_POS}, 0
    s_mov_b32 s{S_CM3}, {(-3*PAIR) & 0xffffffff}
    s_add_u32 s{S_WR}, s{S_WOFF}, {2*PAIR}
    s_mov_b32 s{S_DOFF}, {4*64*8192}
    s_mov_b32 s{S_DSTEP}, {64*8192}
    s_mov_b32 s{S_CNT}, 0
    s_mov_b32 s{S_XOFF}, 0
    s_mov_b32 s98, 15360
    s_mov_b32 s99, 30720
    s_mov_b32 s100, 46080
    s_cmp_lg_u32 s{S_WAVE}, 0
    s_cbranch_scc1 {NM}_p0_nopoll
    """)
    p.begin_cond()
    if OPT.get('b0dbg'):
        p(f"v_and_b32 v{T0}, 7, v{V_TID}\nv_lshlrev_b32 v{T0}, 5, v{T0}")
        poll(p, T0, T1, 32, base=P_DBG, slp=OPT.get('slp0', 8))
    else:
        p(f"v_and_b32 v{T0}, {NSH-1}, v{V_TID}\nv_lshlrev_b32 v{T0}, 8, v{T0}\nv_add_u32 v{T0}, {WS_CNT + C_B0*256}, v{T0}")
        poll(p, T0, T1, 256 // NSH, slp=OPT.get('slp0', 4))
    p.end_cond()
    p(f"""{NM}_p0_nopoll:
    s_barrier""")
    stamp(p)


KOFF = 4096 + 8192
VOFF = 4096 + 2080 + 4 * 8192

def tile_addr(p, vl, vg, vtok, vrm):
    p(f"""
    v_lshrrev_b32 v{vg}, 4, v{vl}
    v_and_b32 v{vtok}, 15, v{vl}
    s_lshl_b32 s{S_T0}, s{S_Q2}, 2
    s_add_u32 s{S_T0}, s{S_T0}, s{S_WAVE}
    s_lshl_b32 s{S_T0}, s{S_T0}, 2
    s_add_u32 s{S_T0}, s{S_T0}, s{S_KQ}
    s_lshl_b32 s{S_T0}, s{S_T0}, 4
    v_add_u32 v{vtok}, s{S_T0}, v{vtok}
    v_mul_u32_u24 v{vrm}, 1280, v{vtok}
    v_lshl_add_u32 v{vrm}, v{vg}, 3, v{vrm}
    s_mul_i32 s{S_T0}, s{S_CT}, 160
    v_add_u32 v{vrm}, s{S_T0}, v{vrm}
    """)


def p1_setup(p):
    p(f"""
    s_lshl_b32 s{S_T0}, s{S_Q2}, 2
    s_add_u32 s{S_T0}, s{S_T0}, s{S_WAVE}
    s_mul_i32 s{S_T1}, s{S_T0}, 81920
    s_add_u32 s{S_T1}, s{S_T1}, {WS_XN}
    """)
    mksrd(p, S_XN, P_WS, f"s{S_T1}", 81920)
    p(f"""
    s_lshl_b32 s{S_T0}, s{S_T0}, 19
    s_lshl_b32 s{S_T1}, s{S_HEAD}, 14
    s_add_u32 s{S_T0}, s{S_T0}, s{S_T1}
    s_add_u32 s{S_T0}, s{S_T0}, {WS_O}
    """)
    mksrd(p, S_O, P_WS, f"s{S_T0}", 16384)
    p(f"s_lshl_b32 s{S_T0}, s{S_HEAD}, 19\ns_add_u32 s{S_T1}, s{S_T0}, {1536*256 - VOFF}")
    mksrd(p, S_VS, P_V, f"s{S_T1}", VOFF + 512 * 256)
    p(f"s_add_u32 s{S_T1}, s{S_T0}, {1536*256 - KOFF}")
    mksrd(p, S_KS, P_K, f"s{S_T1}", KOFF + 512 * 256)
    p(f"""
    v_and_b32 v2, 63, v0
    v_lshrrev_b32 v3, 5, v2
    v_mul_u32_u24 v3, 2080, v3
    v_bfe_u32 v4, v2, 2, 2
    v_lshl_add_u32 v3, v4, 8, v3
    v_bfe_u32 v5, v2, 4, 1
    v_lshl_add_u32 v3, v5, 5, v3
    v_and_b32 v5, 1, v2
    v_lshl_add_u32 v3, v5, 4, v3
    v_bfe_u32 v5, v2, 1, 1
    v_lshl_add_u32 v3, v5, 3, v3
    v_add_u32 v3, {RING0}, v3
    """)
    for dt in range(4):
        p(f"v_xor_b32 v5, {dt}, v4\nv_lshl_add_u32 v{V_AW+dt}, v5, 6, v3")
    p(f"""
    s_lshr_b32 s{S_T0}, s2, 1
    s_mul_i32 s{S_T1}, s{S_T0}, 4682
    s_lshr_b32 s{S_T1}, s{S_T1}, 16
    s_mul_i32 s{S_T2}, s{S_T1}, 14
    s_sub_u32 s{S_T0}, s{S_T0}, s{S_T2}
    s_lshl_b32 s{S_T0}, s{S_T0}, 1
    s_lshr_b32 s{S_T2}, s{S_WAVE}, 1
    s_add_u32 s{S_T0}, s{S_T0}, s{S_T2}
    s_sub_u32 s3, s{S_T0}, 16
    s_mul_i32 s{S_T2}, s3, 43
    s_lshr_b32 s{S_T2}, s{S_T2}, 7
    s_mul_i32 s{S_JIN}, s{S_T2}, 3
    s_sub_u32 s3, s3, s{S_JIN}
    s_add_u32 s3, s3, 4
    s_lshr_b32 s{S_JBN}, s{S_T0}, 2
    s_and_b32 s{S_JIN}, s{S_T0}, 3
    s_cmp_lt_u32 s{S_T0}, 16
    s_cselect_b32 s{S_T2}, s{S_JBN}, s{S_T2}
    s_cselect_b32 s3, s{S_JIN}, s3
    s_lshl_b32 s{S_T1}, s{S_T1}, 2
    s_add_u32 s{S_T1}, s{S_T1}, s{S_T2}
    s_mul_i32 s{S_T1}, s{S_T1}, 27
    s_lshr_b32 s{S_T1}, s{S_T1}, 2
    s_add_u32 s3, s3, s{S_T1}
    s_lshl_b32 s3, s3, 1
    s_and_b32 s{S_T1}, s{S_WAVE}, 1
    s_add_u32 s3, s3, s{S_T1}
    s_mul_i32 s{S_JIN}, s3, {8*1280}
    s_and_b32 s{S_T1}, s2, 1
    s_mul_i32 s{S_T1}, s{S_T1}, 640
    s_add_u32 s{S_JIN}, s{S_JIN}, s{S_T1}
    s_cmp_eq_u32 s{S_T0}, 18
    s_cselect_b32 s{S_JIN}, 0x40000000, s{S_JIN}
    s_mul_i32 s{S_T0}, s2, 20
    s_add_u32 s{S_T0}, s{S_T0}, s{S_WAVE}
    s_lshl_b32 s{S_T0}, s{S_T0}, 10
    """)
    p(f"s_add_u32 s{S_T2}, s{S_T0}, {WS_WDF}")
    mksrd(p, S_JB, P_WS, f"s{S_T2}", 4 * 4096 + 1024)
    p(f"""
    s_cmp_lt_u32 s2, 112
    s_cselect_b32 s{S_JB+2}, s{S_JB+2}, 0
    s_cselect_b32 s{S_JBN}, {SZ_WD}, 0
    """)
    p(f"""
    s_and_b32 s3, s2, 7
    s_lshr_b32 s{S_T0}, s2, 3
    s_mul_i32 s{S_WIN}, s3, 80
    s_and_b32 s{S_T1}, s{S_WAVE}, 1
    s_lshl_b32 s{S_T1}, s{S_T1}, 3
    s_add_u32 s{S_WIN}, s{S_WIN}, s{S_T1}
    s_mul_i32 s{S_WIN}, s{S_WIN}, 3456
    s_lshl_b32 s{S_T1}, s{S_T0}, 7
    s_add_u32 s{S_WIN}, s{S_WIN}, s{S_T1}
    s_lshl_b32 s{S_T0}, s{S_T0}, 2
    s_add_u32 s{S_T0}, s{S_T0}, s{S_WAVE}
    s_lshl_b32 s{S_T0}, s{S_T0}, 10
    s_mul_i32 s{S_WPO}, s3, {5*108*1024}
    s_add_u32 s{S_WPO}, s{S_WPO}, s{S_T0}
    s_add_u32 s{S_WPX}, s{S_T0}, {40*108*1024}
    s_lshl_b32 s{S_T2}, s3, 7
    s_add_u32 s{S_WPX}, s{S_WPX}, s{S_T2}
    """)
    p(f"""
    s_mul_i32 s{S_T0}, s{S_KQ}, {1024*1280}
    s_lshr_b32 s{S_PW}, s2, 3
    s_lshl_b32 s{S_PW}, s{S_PW}, 2
    s_add_u32 s{S_PW}, s{S_PW}, s{S_WAVE}
    s_mul_i32 s{S_PW}, s{S_PW}, 10240
    s_add_u32 s{S_PW}, s{S_PW}, s{S_T0}
    s_mul_i32 s{S_WOO}, s{S_WAVE}, {32*1280}
    s_add_u32 s{S_WOO}, s{S_WOO}, s{S_T0}
    s_mul_i32 s{S_T0}, s{S_CT}, 160
    s_add_u32 s{S_WOO}, s{S_WOO}, s{S_T0}
    s_mul_i32 s{S_W5}, s{S_WAVE}, 5120
    s_lshl_b32 s{S_GI}, s{S_Q2}, 2
    s_add_u32 s{S_GI}, s{S_GI}, s{S_WAVE}
    s_lshl_b32 s{S_GI}, s{S_GI}, 3
    s_add_u32 s{S_GI}, s{S_GI}, s{S_CT}
    """)

    for i in range(5):
        p(f"""v_add_u32 v3, {64*i}, v2
        v_mul_u32_u24 v4, 6554, v3
        v_lshrrev_b32 v4, 16, v4
        v_mul_u32_u24 v5, 160, v4
        v_lshlrev_b32 v3, 4, v3
        v_sub_u32 v3, v3, v5
        v_lshrrev_b32 v5, 2, v4
        v_xor_b32 v5, v5, v4
        v_and_b32 v5, 4, v5
        v_mul_u32_u24 v5, 5, v5
        v_xor_b32 v4, v5, v4
        v_mul_u32_u24 v5, 1280, v4
        v_add_u32 v5, v5, v3""")
        if 0 < i < 4: p(f"v_subrev_u32 v5, {1024*i}, v5")
        p(f"v_accvgpr_write_b32 a{A_SV+i}, v5")
    tile_addr(p, 2, 3, 4, 5)
    p(f"v_mul_u32_u24 v3, 44, v3\nv_add_u32 v5, v5, v3\nv_accvgpr_write_b32 a{A_SV+5}, v5")
    p(f"""v_and_b32 v3, 15, v2
    v_lshrrev_b32 v4, 5, v2
    v_lshlrev_b32 v3, 4, v3
    v_lshl_add_u32 v3, v4, 9, v3
    v_bfe_u32 v4, v2, 4, 1
    v_add_u32 v4, s{S_KQ}, v4
    v_and_b32 v5, 1, v4
    v_lshl_add_u32 v3, v5, 8, v3
    v_bfe_u32 v5, v4, 1, 1
    v_lshl_add_u32 v{V_XA}, v5, 10, v3
    v_xor_b32 v{V_XA+1}, 1024, v{V_XA}""")
    p(f"""
    v_lshrrev_b32 v3, 5, v2
    v_lshlrev_b32 v3, 6, v3
    v_add_u32 v{V_CA}, {LDS_CONST}, v3
    v_lshlrev_b32 v6, 4, v0
    v_add_u32 v1, 2560, v6
    v_add_u32 v7, 40, v0
    v_mov_b32 v2, {fhex(QSCALE)}
    v_mov_b32 v3, 1.0
    s_mul_i32 s3, s3, 320
    s_add_u32 s3, s3, {3*2560 - 160*16}
    v_add_u32 v4, s3, v6
    v_cmp_lt_u32 vcc, 159, v0
    v_add_u32 v5, 2560, v4
    v_subrev_u32 v8, 160, v0
    v_cndmask_b32 v1, v1, v5, vcc
    v_cndmask_b32 v7, v7, v8, vcc
    v_cndmask_b32 v{VP_SC}, v2, v3, vcc
    v_cndmask_b32 v9, v6, v4, vcc
    s_mul_i32 s3, s{S_CT}, 320
    s_add_u32 s3, s3, {2*2560 - 180*16}
    v_cmp_lt_u32 vcc, 179, v0
    v_add_u32 v4, s3, v6
    v_add_u32 v5, {3*2560}, v4
    v_cndmask_b32 v{VP_O1}, v9, v4, vcc
    v_cndmask_b32 v{VP_O2}, v1, v5, vcc
    v_cndmask_b32 v{VP_AD}, v3, 0, vcc
    v_cmp_lt_u32 vcc, 199, v0
    v_cndmask_b32 v7, v7, v0, vcc
    v_lshrrev_b32 v4, 1, v7
    v_lshlrev_b32 v4, 6, v4
    v_and_b32 v5, 1, v7
    v_lshl_add_u32 v{VP_LA}, v5, 4, v4
    """)


def kv_switch(q):
    tl, t1, t2 = V_T, V_T + 1, V_T + 2
    lane_id(q, tl)
    q(f"""
    v_lshrrev_b32 v{t1}, 4, v{tl}
    v_and_b32 v{t2}, 15, v{tl}
    v_lshlrev_b32 v{tl}, 2, v{t1}
    v_xor_b32 v{t2}, v{tl}, v{t2}
    v_lshlrev_b32 v{t2}, 4, v{t2}
    v_lshl_add_u32 v{t2}, v{t1}, 8, v{t2}
    s_lshl_b32 s{S_T0}, s{S_WAVE}, 11
    s_add_u32 s{S_T0}, s{S_T0}, 4096
    v_add_u32 v{V_DMA}, s{S_T0}, v{t2}
    v_subrev_u32 v{V_DMA+1}, 16, v{V_DMA}
    v_mov_b32 v{V_DMA+2}, v{V_DMA}
    v_mov_b32 v{V_DMA+3}, v{V_DMA+1}
    s_mov_b32 s{S_DA}, s{S_KS}
    s_mov_b32 s{S_DA+1}, s{S_KS+1}
    s_mov_b32 s{S_DA+2}, s{S_KS+2}
    s_mov_b32 s{S_DB}, s{S_VS}
    s_mov_b32 s{S_DB+1}, s{S_VS+1}
    s_mov_b32 s{S_DB+2}, 0
    s_mov_b32 s{S_DOFF}, 0
    s_mov_b32 s{S_DSTEP}, 8192
    """)


def wo_dma(sl):
    pc = WO_PIECE[sl]
    L = [f"s_mov_b32 s{S_T1}, s{S_CT}" if sl == 0 else f"s_cmp_gt_u32 s{S_CT}, {sl-1}\ns_cselect_b32 s{S_T1}, {sl-1}, {sl}",
         f"s_mul_i32 s{S_T1}, s{S_T1}, {128*1280}",
         f"s_add_u32 s{S_T1}, s{S_T1}, s{S_WOO}", f"s_add_u32 m0, s{S_W5}, {pc[0]*5120}"]
    if pc[3] != pc[0] + 3:
        L[-1] += f"\ns_cmp_eq_u32 s{S_WAVE}, 3\ns_cselect_b32 m0, {pc[3]*5120}, m0"
    L += [f"buffer_load_dwordx4 v{V_WD+i}, s[{S_XN}:{S_XN+3}], s{S_T1} offen offset:{1024*i} lds" for i in range(4)]
    L += [f"s_add_u32 m0, m0, 4096", f"buffer_load_dwordx4 v{V_WD+4}, s[{S_XN}:{S_XN+3}], s{S_T1} offen lds"]
    return L

def spread(f, L, slots):
    gi = 0; k = 0
    for x in L:
        if x.startswith('buffer') or x.startswith('global'):
            put(f, [x], [slots[gi]]); gi += 1; k = 0
        else:
            lo = slots[gi - 1] if gi else max(slots[0] - 3, 0)
            hi = max(lo, slots[gi] - 1) if gi < len(slots) else lo
            put(f, [x], [min(lo + k // 2, hi)]); k += 1

def attn_body(p, last=False):
    M = qk_mfmas(0, 'negm') + pv_mfmas(0) + qk_mfmas(1, 'negm') + pv_mfmas(1)
    f1, f2 = {}, {}
    put(f1, ["s_barrier"], [0])
    put(f1, v_reads(0), [1, 1, 2, 3, 4, 5, 6, 7, 8, 9, 10, 11, 12, 13, 13, 14])
    put(f1, [mksync(regs=[a(A_V, 16)])], [15])
    put(f1, [mksync(regs=[a(A_V + 16, 16)])], [22])
    put(f1, k_reads(0), [16, 17, 18, 19, 20, 21, 23, 24])
    put(f1, [mksync(lgkm=0)], [31])
    put(f2, v_reads(SLOT), [0, 1, 2, 3, 4, 5, 6, 7, 8, 9, 10, 11, 12, 13, 13, 14])
    put(f2, [mksync(regs=[a(A_V, 16)])], [15])
    put(f2, [mksync(regs=[a(A_V + 16, 16)])], [22])
    if not last:
        dg = dma_pair_at()
        put(f1, dg[:6], [17, 18, 20, 23, 29, 30])
        put(f1, [f"s_mov_b32 m0, s{S_SWR}",
                 f"buffer_load_dwordx4 v{V_WO}, s[{S_KS}:{S_KS+3}], s{S_WIN} offen nt lds",
                 f"s_add_u32 m0, m0, 20480",
                 f"buffer_load_dwordx4 v{V_JO}, s[{S_G}:{S_G+3}], s{S_JIN} offen nt lds",
                 f"buffer_load_dword a{A_SF+4}, v{V_PW}, s[{S_XN}:{S_XN+3}], s{S_PW} offen"], [2, 3, 5, 6, 9])
        put(f1, [f"ds_read_b64_tr_b16 {a(A_SF+2*i,2)}, v{V_SC} offset:{i*1024}" for i in range(2)], [25, 26])
        put(f2, [f"buffer_store_dwordx4 {a(A_SF,4)}, v{V_L16}, s[{S_JB}:{S_JB+3}], s{S_SOFF} offen sc1"], [1])
        put(f2, [f"s_lshl_b32 s{S_SOFF}, s{S_CNT}, 12",
                 f"s_add_u32 s{S_JIN}, s{S_JIN}, 128", f"s_add_u32 s{S_WIN}, s{S_WIN}, {16*3456}", f"s_add_u32 s{S_SWR}, s{S_SWR}, 4096",
                 f"s_add_u32 s{S_PW}, s{S_PW}, 2048"], [5, 2, 3, 6, 7])
        put(f2, [f"v_add_u32 v{V_SC}, 4096, v{V_SC}"], [14])
        put(f2, k_reads(SLOT), [16, 17, 18, 19, 20, 21, 23, 24])
        put(f2, dg[6:], [0, 16, 18, 20, 25, 29])
        put(f2, pos_update_at(), [10, 11, 11, 11, 12, 12])
        put(f2, [f"v_add_u32 v{V_AV+i}, s{S_DELTA}, v{V_AV+i}" for i in range(4)], [17, 19, 21, 23])
        put(f2, [f"v_add_u32 v{V_AK+i}, s{S_DELTA}, v{V_AK+i}" for i in range(4)], [26, 27, 28, 29])
        put(f2, [f"s_add_u32 s{S_CNT}, s{S_CNT}, 1", f"s_cmp_lt_u32 s{S_CNT}, 6", mksync(dma_keep=8, lgkm=0)], [30, 30, 30])
        put(f2, [f"s_cbranch_scc1 {NM}_at"], [31])
    else:
        put(f1, [f"v_accvgpr_read_b32 v{V_WD+i}, a{A_SV+i}" for i in range(5)], [1, 2, 2, 3, 3])
        spread(f1, wo_dma(0) + wo_dma(1)[:7], [6, 8, 11, 15, 19, 25, 27, 29])
        spread(f2, wo_dma(1)[7:] + wo_dma(2), [2, 6, 16, 19, 23, 26, 29])
        put(f2, [f"v_subrev_u32 v{V_AV+i}, {2*PAIR}, v{V_AV+i}" for i in range(4)], [17, 18, 20, 21])
        put(f2, [mksync(dma_keep=10, lgkm=0)], [31])
    order_gap(f1); order_gap(f2)
    vb = OPT.get('verbose')
    p.extend(pack(M[:32], f1, softmax_stream(1, 1), verbose=vb and 'at1'))
    p.extend(pack(M[32:], f2, softmax_stream(0, 0), stop=32 if last else 31, verbose=vb and 'at2'))


def row_sums(p, T):
    for qt in range(2):
        p(f"v_mov_b32 v{T+qt}, v{V_LS+qt}")
    for qt in range(2):
        p(f"v_permlane32_swap_b32 v{V_LS+qt}, v{T+qt}")
    for qt in range(2):
        p(f"v_add_f32 v{V_LS+qt}, v{V_LS+qt}, v{T+qt}")


def exact_path():
    q = Prog()
    VL, VK, VD, VRD, MX = 156, 157, 158, 160, 164
    AK2, SK, SV, SC, SO = 192, 8, 12, S_CNT, S_DOFF
    q(f"{NM}_exact:\ns_waitcnt vmcnt(0) lgkmcnt(0)\ns_nop 15")
    q(f"s_lshl_b32 s{S_T0}, s{S_HEAD}, 19\ns_add_u32 s{S_T0}, s{S_T0}, {1536*256}")
    mksrd(q, SK, P_K, f"s{S_T0}", 512 * 256)
    mksrd(q, SV, P_V, f"s{S_T0}", 512 * 256)
    lane_id(q, VL)
    q(f"""
    v_and_b32 v{VK}, 31, v{VL}
    v_lshlrev_b32 v{VK}, 8, v{VK}
    v_lshrrev_b32 v{MX}, 5, v{VL}
    v_lshl_add_u32 v{VK}, v{MX}, 4, v{VK}
    v_lshrrev_b32 v{MX+1}, 4, v{VL}
    v_and_b32 v{VD}, 15, v{VL}
    v_lshlrev_b32 v{MX+2}, 2, v{MX+1}
    v_xor_b32 v{VD}, v{MX+2}, v{VD}
    v_lshlrev_b32 v{VD}, 4, v{VD}
    v_lshl_add_u32 v{VD}, v{MX+1}, 8, v{VD}
    s_add_u32 s{S_T0}, s{S_W5}, {WO_PIECE[4][0]*5120}
    s_mov_b32 m0, s{S_T0}
    v_lshlrev_b32 v{MX}, 10, v{MX}
    v_bfe_u32 v{MX+2}, v{VL}, 2, 2
    v_lshl_add_u32 v{MX}, v{MX+2}, 8, v{MX}
    v_and_b32 v{MX+1}, 1, v{MX+1}
    v_lshl_add_u32 v{MX}, v{MX+1}, 5, v{MX}
    v_and_b32 v{MX+1}, 3, v{VL}
    v_lshl_add_u32 v{MX}, v{MX+1}, 3, v{MX}
    v_add_u32 v{MX}, s{S_T0}, v{MX}
    """)
    for dt in range(4):
        q(f"v_xor_b32 v{MX+1}, {dt}, v{MX+2}\nv_lshl_add_u32 v{VRD+dt}, v{MX+1}, 6, v{MX}")
    def qk(cinit):
        for m in range(8):
            q(f"buffer_load_dwordx4 {a(AK2+4*m,4)}, v{VK}, s[{SK}:{SK+3}], s{SO} offen offset:{32*m}")
        q("s_waitcnt vmcnt(0)")
        for x in qk_mfmas(0, cinit):
            for m in range(8):
                x = x.replace(f", {a(A_K+4*m,4)},", f", {a(AK2+4*m,4)},")
            q(x)
    q(f"v_mov_b32 v{MX}, 0xff800000\nv_mov_b32 v{MX+2}, 0xff800000\ns_mov_b32 s{SO}, 0")
    q.begin_loop()
    q(f"{NM}_ex1:")
    qk('zero')
    for qt in range(2):
        for i in range(0, 16, 2):
            q(f"v_max3_f32 v{MX+2*qt}, v{MX+2*qt}, v{V_S+16*qt+i}, v{V_S+16*qt+i+1}")
    q(f"s_add_u32 s{SO}, s{SO}, 8192\ns_cmp_lt_u32 s{SO}, {16*8192}\ns_cbranch_scc1 {NM}_ex1")
    q.end_loop(16)
    for qt in range(2):
        m_ = MX + 2 * qt
        q(f"v_mov_b32 v{m_+1}, v{m_}\nv_permlane32_swap_b32 v{m_}, v{m_+1}\nv_max_f32 v{m_}, v{m_}, v{m_+1}")
        for i in range(16):
            q(f"v_sub_f32 v{V_NEGM+16*qt+i}, 0, v{m_}")
    for i in range(128):
        q(f"v_accvgpr_write_b32 a{i}, 0")
    q(f"v_mov_b32 v{V_LS}, 0\nv_mov_b32 v{V_LS+1}, 0\ns_mov_b32 s{SO}, 0")
    q.begin_loop()
    q(f"{NM}_ex2:")
    qk('negm')
    q.extend(softmax_stream(0, 0))
    pv = pv_mfmas(0)
    for ks in range(2):
        for i in range(4):
            q(f"buffer_load_dwordx4 v{VD}, s[{SV}:{SV+3}], s{SO} offen offset:{1024*i} lds")
        q(f"s_add_u32 s{SO}, s{SO}, 4096\ns_waitcnt vmcnt(0)")
        for dt in range(4):
            for jj in range(2):
                q(f"ds_read_b64_tr_b16 {a(A_V+16*ks+4*dt+2*jj,2)}, v{VRD+dt} offset:{2048*jj}")
        q("s_waitcnt lgkmcnt(0)")
        q.extend(pv[8 * ks:8 * ks + 8])
    q(f"s_cmp_lt_u32 s{SO}, {16*8192}\ns_cbranch_scc1 {NM}_ex2")
    q.end_loop(16)
    row_sums(q, MX)
    for i in range(16):
        q(f"v_mov_b32 v{V_P[1]+i}, 0")
    lane_id(q, 90)
    q(f"s_nop 15\ns_branch {NM}_exact_ret")
    q.finalize()
    return q


def phase1(p, outl):
    vb = OPT.get('verbose')
    B1, B2 = V_C, V_C + 16
    for kq in range(4):
        so = f"s{97+kq}" if kq else 0
        p(f"buffer_load_dwordx4 {v(B1+4*kq,4)}, v{VP_O1}, s[{S_G}:{S_G+3}], {so} offen sc1")
        p(f"buffer_load_dwordx4 {v(B2+4*kq,4)}, v{VP_O2}, s[{S_G}:{S_G+3}], {so} offen sc1")
    def xl(lo, hi):
        for t in range(lo, hi):
            p.extend(x_loads(t, (t % 2) * 2048))
            if t % 2 == 1:
                p(f"s_add_u32 s{S_XOFF}, s{S_XOFF}, 4096")
    xl(0, 2)
    p.sync(regs=[v(B1, 32)])
    if OPT.get('st0'): stamp(p)
    for b in (B1, B2):
        p(f"""v_pk_add_f32 {v(b,2)}, {v(b,2)}, {v(b+4,2)}
        v_pk_add_f32 {v(b+2,2)}, {v(b+2,2)}, {v(b+6,2)}
        v_pk_add_f32 {v(b+8,2)}, {v(b+8,2)}, {v(b+12,2)}
        v_pk_add_f32 {v(b+10,2)}, {v(b+10,2)}, {v(b+14,2)}
        v_pk_add_f32 {v(b,2)}, {v(b,2)}, {v(b+8,2)}
        v_pk_add_f32 {v(b+2,2)}, {v(b+2,2)}, {v(b+10,2)}""")
    def rnd(b):
        for e in (0, 2):
            p(f"v_cvt_pk_bf16_f32 v{b+e}, v{b+e}, v{b+e+1}\nv_and_b32 v{b+e+1}, 0xffff0000, v{b+e}\nv_lshlrev_b32 v{b+e}, 16, v{b+e}")
    rnd(B1); rnd(B2)
    for e in range(4):
        p(f"v_add_f32 v{B2+e}, v{VP_AD}, v{B2+e}")
    rnd(B2)
    for b in (B1, B2):
        for e in (0, 2):
            p(f"v_pk_mul_f32 {v(b+e,2)}, {v(b+e,2)}, {v(VP_SC,2)} op_sel_hi:[1,0]")
    p(f"ds_write_b128 v{VP_LA}, {v(B2,4)}\nds_write_b128 v{VP_LA}, {v(B1,4)} offset:32")
    xl(2, 4)
    p.sync(dma_keep=0, lgkm=0)
    p("s_barrier")
    if OPT.get('st0'): stamp(p)
    p.extend(c_reads(0, 0))
    p.extend(a_reads(0, 0))
    p.extend(c_reads(1, 128))
    p.extend(a_reads(1, 1))
    xl(4, 8)
    p.extend(h_valu(0, 0, 0))
    p.sync(regs=[a(A_K, 16), v(V_C + 16, 16), v(V_X + 8, 8)])
    stamp(p)
    p(f"s_mov_b32 m0, s{S_WR}")
    p.begin_loop()
    p(f"{NM}_qp:")
    dg = dma_pair_qp()
    xadv = f"s_add_u32 s{S_XOFF}, s{S_XOFF}, 4096"
    for t in range(8):
        M = [f"v_mfma_f32_32x32x16_bf16 {v(acc(dt,qt),16)}, {a(A_K+16*(t%4)+4*dt,4)}, {v(V_H+8*(t%2)+4*qt,4)}, {v(acc(dt,qt),16)}"
             for dt in range(4) for qt in range(2)]
        f = {}
        ar = a_reads((t + 2) % 4, (t + 2) % 8)
        cr = c_reads(t % 2, (t + 2) * 128)
        sy = mksync(regs=[a(A_K + 16 * ((t + 1) % 4), 16), v(V_C + 16 * (t % 2), 16), v(V_X + 8 * ((t + 2) % 8), 8)],
                    dma_keep=8 if t == 5 else None)
        if t == 6:
            put(f, ["s_barrier"], [0])
            put(f, [f"v_add_u32 v{V_AW+i}, s{S_DELTA}, v{V_AW+i}" for i in range(4)], [0, 1, 2, 2])
            put(f, cr, [1, 1, 2, 2])
            put(f, x_loads(t, 0), [3, 5])
            put(f, ar, [3, 4, 4, 5, 6, 6, 7, 7])
            put(f, [sy], [7])
        else:
            put(f, cr, [0, 0, 1, 1])
            put(f, x_loads(t, (t % 2) * 2048), [2, 4])
            put(f, ar, [2, 3, 3, 4, 5, 5, 6, 7] if t != 7 else [2, 3, 3, 4, 5, 5, 6, 6])
            put(f, [sy], [7] if t != 7 else [6])
        pu = pos_update(); wu = wr_update()
        if t == 0: put(f, dg[1:2] + pu[:1], [6, 7])
        if t == 1: put(f, dg[2:4] + [xadv], [6, 7, 7])
        if t == 2: put(f, dg[4:7], [6, 7, 7])
        if t == 3: put(f, dg[7:8] + [xadv], [6, 7])
        if t == 4: put(f, dg[8:10] + pu[1:], [6, 7, 7, 7])
        if t == 5: put(f, dg[10:12] + [xadv], [6, 7, 7])
        if t == 6: put(f, wu, [2, 4, 7])
        if t == 7:
            put(f, [f"v_add_u32 v{V_CA}, 1024, v{V_CA}", xadv, dg[0], f"s_add_u32 s{S_CNT}, s{S_CNT}, 1"], [3, 4, 5, 5])
            put(f, [f"s_bitcmp1_b32 22, s{S_CNT}", f"s_cbranch_scc1 {NM}_qp"], [6, 7])
        order_gap(f)
        p.extend(pack(M, f, h_valu((t + 1) % 8, (t + 1) % 2, (t + 1) % 2), stop=7 if t == 7 else 8, verbose=vb and f'qp{t}'))
    p.begin_cond()
    p(f"s_cmp_eq_u32 s{S_CNT}, 3\ns_cbranch_scc1 {NM}_switch")
    p.end_cond()
    p.end_loop(5)
    q = Prog()
    q(f"{NM}_switch:")
    kv_switch(q)
    q(f"s_branch {NM}_qp")
    q.finalize()
    outl.append(q)
    stamp(p)
    T = V_H
    BASE = RING0 + PAIR
    lane_id(p, T)
    p(f"""
    v_bfe_u32 v{T+1}, v{T}, 3, 2
    v_mul_u32_u24 v{T+1}, {WBLK}, v{T+1}
    v_bfe_u32 v{T+2}, v{T}, 2, 1
    v_mul_u32_u24 v{T+2}, {PADI}, v{T+2}
    v_add_u32 v{T+1}, v{T+1}, v{T+2}
    v_add_u32 v{T+1}, {BASE}, v{T+1}
    v_and_b32 v{T+2}, 3, v{T}
    v_lshl_add_u32 v{T+1}, v{T+2}, 8, v{T+1}
    v_lshrrev_b32 v{T+3}, 5, v{T}
    v_lshl_add_u32 v{T+1}, v{T+3}, 4, v{T+1}
    """)
    for mm in range(4):
        p(f"v_xor_b32 v{T+4}, {mm}, v{T+2}\nv_lshl_add_u32 v{V_AK+mm}, v{T+4}, 6, v{T+1}")
    p.sync(lgkm=0)
    p.extend(k_reads(SLOT))
    p(f"""s_mov_b32 s{S_DB+2}, s{S_VS+2}
    s_add_u32 s{S_RDB}, s{S_WOFF}, {PAIR}
    s_mov_b32 s{S_CM3}, {(-2*PAIR) & 0xffffffff}
    s_mov_b32 s{S_SOFF}, 20480""")
    p.extend(dma_pair_at())
    p(f"""
    v_mul_u32_u24 v{T+1}, {PADI}, v{T+3}
    v_bfe_u32 v{T+2}, v{T}, 2, 2
    v_lshl_add_u32 v{T+1}, v{T+2}, 8, v{T+1}
    v_bfe_u32 v{T+4}, v{T}, 4, 1
    v_lshl_add_u32 v{T+1}, v{T+4}, 5, v{T+1}
    v_and_b32 v{T+4}, 3, v{T}
    v_lshl_add_u32 v{T+1}, v{T+4}, 3, v{T+1}
    v_add_u32 v{T+1}, {BASE}, v{T+1}
    """)
    for dt in range(4):
        p(f"v_xor_b32 v{T+5}, {dt}, v{T+2}\nv_lshl_add_u32 v{V_AV+dt}, v{T+5}, 6, v{T+1}")
    p(f"v_mov_b32 v{V_LS}, 0\nv_mov_b32 v{V_LS+1}, 0")
    for tile in range(8):
        for i in range(8):
            p(f"v_cvt_pk_bf16_f32 v{8*tile+i}, v{16*tile+2*i}, v{16*tile+2*i+1}")
    upd = lambda: pos_update_at() + [f"v_add_u32 v{V_AV+i}, s{S_DELTA}, v{V_AV+i}" for i in range(4)] + \
        [f"v_add_u32 v{V_AK+i}, s{S_DELTA}, v{V_AK+i}" for i in range(4)]
    p.extend(upd())
    mksrd(p, S_XN, P_WO, None, SZ_WO)
    mksrd(p, S_G, P_WD, None, f"s{S_JBN}")
    p(f"""s_cmp_lt_u32 s{S_WAVE}, 2
    s_cselect_b32 s{S_KS}, s{P_WG}, s{P_WU}
    s_cselect_b32 s{S_KS+1}, s{P_WG+1}, s{P_WU+1}
    s_cmp_lt_u32 s2, 216
    s_cselect_b32 s{S_KS+2}, {SZ_WG}, 0""")
    p.sync(dma_keep=8, lgkm=0)
    f = {}
    put(f, ["s_barrier"], [0])
    dg = dma_pair_at()
    put(f, dg, [0, 1, 3, 5, 7, 7, 8, 9, 10, 12, 14, 14])
    if not OPT.get('noxw'):
        put(f, [f"v_accvgpr_read_b32 v{T+8}, a{A_SV+5}", f"global_load_dword a{A_SF+5}, v{T+8}, s[{P_X}:{P_X+1}]"], [11, 13])
    put(f, k_reads(0), [15] * 8)
    order_gap(f)
    p.extend(pack(qk_mfmas(0, 'zero'), f, [], verbose=vb and 'it-1'))
    for qt in range(2):
        S = V_S + 16 * qt
        m = V_NEGM + 16 * qt
        p(f"""v_max3_f32 v{m}, v{S}, v{S+1}, v{S+2}
        v_max3_f32 v{m+1}, v{S+3}, v{S+4}, v{S+5}
        v_max3_f32 v{m}, v{m}, v{S+6}, v{S+7}
        v_max3_f32 v{m+1}, v{m+1}, v{S+8}, v{S+9}
        v_max3_f32 v{m}, v{m}, v{S+10}, v{S+11}
        v_max3_f32 v{m+1}, v{m+1}, v{S+12}, v{S+13}
        v_max3_f32 v{m}, v{m}, v{S+14}, v{S+15}
        v_max_f32 v{m}, v{m}, v{m+1}
        v_mov_b32 v{m+1}, v{m}""")
    for qt in range(2):
        p(f"v_permlane32_swap_b32 v{V_NEGM+16*qt}, v{V_NEGM+16*qt+1}")
    for qt in range(2):
        m = V_NEGM + 16 * qt
        p(f"v_max_f32 v{m}, v{m}, v{m+1}\nv_sub_f32 v{m}, 0, v{m}")
    for qt in range(2):
        for i in range(1, 16):
            p(f"v_mov_b32 v{V_NEGM+16*qt+i}, v{V_NEGM+16*qt}")
    p(f"""
    v_lshrrev_b32 v{T+1}, 5, v{T}
    v_bfe_u32 v{T+3}, v{T}, 2, 3
    v_lshl_add_u32 v{T+1}, v{T+1}, 4, v{T+3}
    v_lshlrev_b32 v{T+1}, 7, v{T+1}
    v_lshl_add_u32 v{T+1}, v{T+4}, 3, v{T+1}
    s_lshl_b32 s{S_T0}, s{S_WAVE}, 5
    s_add_u32 s{S_T0}, s{S_T0}, {IMG_B - 4096}
    v_lshlrev_b32 v{V_PW}, 5, v{T}
    v_add_u32 v{V_SC}, s{S_T0}, v{T+1}
    v_lshrrev_b32 v{T+1}, 3, v{T}
    v_and_b32 v{T+3}, 7, v{T}
    v_lshlrev_b32 v{T+3}, 4, v{T+3}
    v_mul_u32_u24 v{V_JO}, 1280, v{T+1}
    v_add_u32 v{V_JO}, v{V_JO}, v{T+3}
    v_mul_u32_u24 v{V_WO}, 3456, v{T+1}
    v_add_u32 v{V_WO}, v{V_WO}, v{T+3}
    s_lshl_b32 s{S_SWR}, s{S_WAVE}, 10
    s_add_u32 s{S_SWR}, s{S_SWR}, {IMG_W}
    """)
    stamp(p)
    sub = [f"v_add_f32 v{V_S+16*qt+r}, v{V_NEGM+16*qt}, v{V_S+16*qt+r}" for ks in range(2) for qt in range(2) for r in range(8*ks, 8*ks+8)]
    sm = softmax_stream(0, 0)
    st = sub[:2]; k = 2
    for x in sm:
        st.append(x)
        if x.startswith('v_exp') and k < 32:
            st.append(sub[k]); k += 1
    p.sync(lgkm=0)
    f = {}
    put(f, k_reads(SLOT), [15] * 8)
    p.extend(pack(qk_mfmas(1, 'negm'), f, st, verbose=vb and 'it0'))
    p.extend(upd())
    p(f"s_mov_b32 s{S_CNT}, 0")
    p.sync(dma_keep=8, lgkm=0)
    p.begin_loop()
    p(f"{NM}_at:")
    attn_body(p)
    p.end_loop(6)
    attn_body(p, last=True)
    p("s_barrier")
    p.extend(v_reads(0))
    sm = softmax_stream(1, 1)
    p.extend(sm[:10])
    f = {}
    put(f, v_reads(SLOT, A_K), [i * 12 // 16 for i in range(16)])
    spread(f, wo_dma(3), [4, 7, 12, 13, 14])
    order_gap(f)
    p.extend(pack(pv_mfmas(0), f, sm[10:], verbose=vb and 'it15'))
    T = 88
    row_sums(p, T)
    p(f"""s_mov_b32 s3, {fhex(0.0 if OPT.get('forcefb') else 2.0**80)}
    v_add_f32 v{T}, v{V_LS}, v{V_LS+1}
    v_cmp_ngt_f32 vcc, s3, v{T}""")
    lane_id(p, T + 2)
    p(f"s_cbranch_vccnz {NM}_exact\n{NM}_exact_ret:")
    outl.append(exact_path())
    q = Prog()
    for qt in range(2):
        q(f"v_rcp_f32 v{T+4+2*qt}, v{V_LS+qt}")
    q(f"""
    v_lshrrev_b32 v{T}, 5, v{T+2}
    v_bfe_u32 v{T+1}, v{T+2}, 2, 3
    v_lshl_add_u32 v{T}, v{T}, 4, v{T+1}
    v_mul_u32_u24 v{T}, 160, v{T}
    v_and_b32 v{T+1}, 3, v{T+2}
    v_lshl_add_u32 v{V_AR}, v{T+1}, 3, v{T}
    v_add_u32 v{V_AR+1}, 57344, v{V_AR}
    v_add_u32 v{V_AR+2}, {2*57344}, v{V_AR}
    """)
    for dt in range(4):
        q(f"s_mov_b32 s{S_OOFF+dt}, {dt*4096}")
    head = [x.text for x in q.items]
    def norm(n, packed):
        dt, qt = n >> 1, n & 1
        B = 16 * (n % 4)
        O = V_OF + 8 * n
        L = [f"v_accvgpr_read_b32 v{B+i}, a{oacc(dt,qt)+i}" for i in range(16)]
        if packed:
            L += [f"v_pk_mul_f32 {v(B+2*i,2)}, {v(B+2*i,2)}, {v(T+4+2*qt,2)} op_sel_hi:[1,0]" for i in range(8)]
        else:
            L += [f"v_mul_f32 v{B+i}, v{T+4+2*qt}, v{B+i}" for i in range(16)]
        L += [f"v_cvt_pk_bf16_f32 v{O+i}, v{B+2*i}, v{B+2*i+1}" for i in range(8)]
        L += [f"v_permlane16_swap_b32 v{O+i}, v{O+4+i}" for i in range(4)]
        L += [f"buffer_store_dwordx4 {v(O+4*h,4)}, v{V_L16}, s[{S_O}:{S_O+3}], s{S_OOFF+dt} offen offset:{qt*2048+h*1024} sc1" for h in range(2)]
        return L
    M = pv_mfmas(1, A_K)
    M = [M[8 * ks + i] for i in range(8) for ks in range(2)]
    f = {}
    spread(f, wo_dma(4), [2, 3, 4, 5, 6])
    p.extend(pack(M, f, head + norm(0, False), verbose=vb and 'it16'))
    stamp(p)
    for n in range(1, 8):
        p.extend(norm(n, True))
        if n == 5: p.extend(p2_ard(0))
    stamp(p)


V_OF = 160
V_AR = 84
V_CK = 153
V_GC = 155
V_WR = 192
A_A2 = 160
A_GA = 200
S_F1I = 4

def p2_ard(t):
    base = WO_PIECE[t // 4][t % 4] * 5120
    k = base // 57344
    return [f"ds_read_b64_tr_b16 {a(A_A2+20*(t%2)+4*c+2*jj,2)}, v{V_AR+k} offset:{base-k*57344+32*c+1280*jj}" for c in range(5) for jj in range(2)]

def check_then_poll(p, va, vd, expect):
    global npoll
    lab = f"{NM}_ck{npoll}"
    p(f"v_cmp_gt_u32 vcc, {expect}, v{vd}\ns_cbranch_vccz {lab}")
    p.begin_cond()
    poll(p, va, vd, expect)
    p.end_cond()
    p(f"{lab}:")


WP_CB = [96, 112, 128, 160, 176]
def wp_reads(p, VL):
    A = 214
    p(f"""
    v_lshrrev_b32 v{A}, 5, v{VL}
    v_lshlrev_b32 v218, 6, v{A}
    v_lshlrev_b32 v219, 10, v{A}
    v_bfe_u32 v{A}, v{VL}, 2, 2
    v_lshl_add_u32 v219, v{A}, 7, v219
    v_bfe_u32 v{A}, v{VL}, 4, 1
    v_lshl_add_u32 v219, v{A}, 11, v219
    v_and_b32 v{A}, 3, v{VL}
    v_lshl_add_u32 v219, v{A}, 3, v219
    s_lshl_b32 s3, s{S_WAVE}, 5
    v_add_u32 v219, s3, v219
    """)
    for s_ in range(5):
        for jj in range(2):
            p(f"ds_read_b64_tr_b16 {v(V_WR+4*s_+2*jj,2)}, v219 offset:{IMG_W+4096*s_+512*jj}")
        for i in range(4):
            p(f"ds_read_b128 {v(WP_CB[s_]+4*i,4)}, v218 offset:{LDS_TABW+128*s_+16*i}")

def wp_compute(p):
    A, B_, CS, BI = 214, 215, 216, 217
    RW = V_WR
    p(f"s_mov_b32 s3, 0x3f803f80\nv_mov_b32 v{CS}, 0\nv_mov_b32 v{BI}, 0")
    for s_ in range(5):
        for d in range(4):
            w = RW + 4 * s_ + d
            c = WP_CB[s_] + 2 * d
            p(f"""v_lshlrev_b32 v{A}, 16, v{w}
            v_and_b32 v{B_}, 0xffff0000, v{w}
            v_fmac_f32 v{BI}, v{c+8}, v{A}
            v_fmac_f32 v{BI}, v{c+9}, v{B_}
            v_pk_mul_f32 {v(A,2)}, {v(c,2)}, {v(A,2)}
            v_cvt_pk_bf16_f32 v{w}, v{A}, v{B_}
            v_dot2_f32_bf16 v{CS}, v{w}, s3, v{CS}""")
    p(f"""
    v_mov_b32 v{B_}, v{BI}
    v_mov_b32 v{A}, v{CS}
    v_permlane32_swap_b32 v{BI}, v{B_}
    v_permlane32_swap_b32 v{CS}, v{A}
    v_add_f32 v{CS}, v{CS}, v{A}
    v_add_f32 v{BI}, v{BI}, v{B_}
    v_cvt_pk_bf16_f32 v{V_WR+20}, v{CS}, v{BI}
    v_lshrrev_b32 v{V_WR+21}, 2, v{V_L16}
    """)

def wp_stores(srdn):
    L = []
    for s_ in range(5):
        L.append(f"buffer_store_dwordx4 {v(V_WR+4*s_,4)}, v{V_L16}, s[{srdn}:{srdn+3}], s{S_WPO} offen sc1")
        if s_ < 4: L.append(f"s_add_u32 s{S_WPO}, s{S_WPO}, {108*1024}")
    L += ["s_mov_b32 exec_hi, 0", f"buffer_store_dword v{V_WR+20}, v{V_WR+21}, s[{srdn}:{srdn+3}], s{S_WPX} offen sc1", "s_mov_b32 exec_hi, -1"]
    return L


V_X1 = 240
V_RM = 250
V_TOK, V_G4 = 251, 252
V_GB = 220
V_L16B = 254
HH_RB = 56 * 4096
AST = 40960
RED = LDS_TOTAL - 61440
S_B2, S_A2 = 8, 12
S_A4 = 40
S_AO4 = 44
V_VB, V_RW, V_RR = 204, 208, 211

def shard_addr(p, vd, cbase):
    p(f"v_and_b32 v{vd}, 0x1f0, v{V_L16}\nv_lshlrev_b32 v{vd}, 4, v{vd}\nv_add_u32 v{vd}, {WS_CNT + cbase*256}, v{vd}")

def a_srd(p, srdn, NKS, PER, WS_A):
    p(f"""
    s_mul_i32 s{S_T2}, s{S_WAVE}, {PER}
    s_lshl_b32 s{S_T1}, s{S_T2}, 3
    s_add_u32 s{S_T1}, s{S_T1}, s{S_CT}
    s_mul_i32 s{S_T1}, s{S_T1}, 5120
    s_add_u32 s{S_T1}, s{S_T1}, {WS_A}
    s_sub_u32 s{S_T2}, {NKS}, s{S_T2}
    s_min_u32 s{S_T2}, s{S_T2}, {PER}
    s_mul_i32 s{S_T2}, s{S_T2}, {AST}
    s_sub_u32 s{S_T2}, s{S_T2}, {AST-5120}
    """)
    mksrd(p, srdn, P_WS, f"s{S_T1}", f"s{S_T2}")

def rot_addrs(p):
    for r in range(4):
        p(f"s_add_u32 s{S_T0}, s{S_WAVE}, {r}\ns_and_b32 s{S_T0}, s{S_T0}, 3\ns_mul_i32 s{S_T1}, s{S_T0}, {HH_RB}\nv_add_u32 v{V_VB+r}, s{S_T1}, v{V_L16}")
        p(f"s_mul_i32 s{S_T1}, s{S_T0}, 15360\ns_add_u32 s{S_T1}, s{S_T1}, {RED + max(r-1,0)*5120}")
        p(f"v_add_u32 v{V_RW+r-1 if r else V_RR}, s{S_T1}, v{V_L16}")

def aloads(afr, j, srdn, so):
    L = [f"buffer_load_dwordx4 {afr(j,i)}, v{V_L16}, s[{srdn}:{srdn+3}], s{so} offen offset:{1024*i} sc1" for i in range(4)]
    L.append(f"buffer_load_dwordx4 {afr(j,4)}, v{V_L16B}, s[{srdn}:{srdn+3}], s{so} offen sc1")
    L.append(f"s_add_u32 s{so}, s{so}, {AST}")
    return L

def bloads(j, srdn, so):
    return [f"buffer_load_dwordx4 {bfr(j,i)}, v{V_VB+i}, s[{srdn}:{srdn+3}], s{so} offen {OPT.get('bflag', 'sc1')}" for i in range(4)] + [f"s_add_u32 s{so}, s{so}, 4096"]

def gemm_steps(p, N, afr, extra, pre):
    for t in range(N):
        order = [(r, c) for r in ((1, 2, 3, 0) if t == N - 1 else range(4)) for c in range(5)]
        M = [f"v_mfma_f32_16x16x32_bf16 {v(4*(5*r+c),4)}, {afr(t,c)}, {bfr(t,r)}, {'0' if t == 0 else v(4*(5*r+c),4)}" for r, c in order]
        pre(t)
        p.sync(regs=[afr(t, i) for i in range(5)] + [bfr(t, 0, 16)])
        if OPT.get('st3') and N == 32 and t in (0, 1, 4, 8, 12, 16, 20, 24, 28): stamp(p)
        L = list(extra(t))
        f = {}
        if t == N - 1:
            wr = [f"ds_write_b128 v{V_RW+r-1}, {v(4*(5*r+c),4)} offset:{c*1024}" for r in (1, 2) for c in range(5)]
            put(f, wr, [9, 10, 11, 12, 13, 14, 15, 16, 17, 18])
        p.extend(pack(M, f, L, budget=8))

def reduce_tile(p, side):
    side = list(side)
    def mix(L, every):
        for i, x in enumerate(L):
            p.add(x)
            if i % every == every - 1:
                while side:
                    y = side.pop(0); p.add(y)
                    if y.startswith('buffer'): break
    mix([f"ds_write_b128 v{V_RW+2}, {v(4*(15+c),4)} offset:{c*1024}" for c in range(5)], 1)
    p.sync(lgkm=0)
    p("s_barrier")
    for s_ in range(3):
        for c in range(5):
            p(f"ds_read_b128 {v(20+20*s_+4*c,4)}, v{V_RR} offset:{s_*5120+c*1024}")
    L = [f"v_pk_add_f32 {v(2*i,2)}, {v(2*i,2)}, {v(20+2*i,2)}" for i in range(10)]
    L += [f"v_pk_add_f32 {v(40+2*i,2)}, {v(40+2*i,2)}, {v(60+2*i,2)}" for i in range(10)]
    L += [f"v_pk_add_f32 {v(2*i,2)}, {v(2*i,2)}, {v(40+2*i,2)}" for i in range(10)]
    mix(L, 3)
    return side, mix

def residual(G, XR, dst):
    L = []
    for d in range(10):
        L += [f"v_lshlrev_b32 v40, 16, v{XR+d}", f"v_and_b32 v41, 0xffff0000, v{XR+d}",
              f"v_pk_fma_f32 v[40:41], {v(G+2*d,2)}, {v(2*d,2)}, v[40:41]",
              f"v_cvt_pk_bf16_f32 v{dst+d}, v40, v41"]
    return L


def phase2(p):
    V_GA, T = 160, 88
    S_BO, S_WS_, S_PB, S_O2, S_O3, S_PO = 12, 52, 52, 8, 16, 13
    RB2 = OPT.get('rb2', 6)
    afr = lambda t, c, n=4: a(A_A2 + 20 * (t % 2) + 4 * c, n)
    S_B0 = 98
    def bfr2(t, r, n=4):
        if t < 4: return v(V_OF + 16 * t + 4 * r, n)
        if r == 0: return a((12 * RB2 + 4 * (t - 4)) % 160, n)
        return a(12 * (t % RB2) + 4 * (r - 1), n)
    ard = p2_ard
    def adv(t, so):
        nx = (t + 1) // 4
        return [f"s_cmp_gt_u32 s{S_CT}, {nx-1}\ns_cselect_b32 s{so}, {nx-1}, {nx}\ns_lshl_b32 s{so}, s{so}, 14"] if t % 4 == 3 else [f"s_add_u32 s{so}, s{so}, 4096"]
    def bl(t):
        return [f"buffer_load_dwordx4 {bfr2(t,r)}, v{V_L16}, s[{S_B2}:{S_B2+3}], s{S_BO} offen offset:{1024*r} sc1" for r in (1, 2, 3)] + adv(t, S_BO)
    def bl0(t):
        return [f"buffer_load_dwordx4 {bfr2(t,0)}, v{V_L16}, s[{S_B2}:{S_B2+3}], s{S_B0} offen sc1"] + adv(t, S_B0)
    def mf(t):
        rs = range(4) if t < 4 else (1, 2, 3)
        order = [(r, c) for r in rs for c in range(5)] if t == 31 else [(r, c) for c in range(5) for r in rs]
        return [f"v_mfma_f32_16x16x32_bf16 {v(4*(5*r+c),4)}, {afr(t,c)}, {bfr2(t,r)}, {'0' if t == 0 else v(4*(5*r+c),4)}" for r, c in order]
    def setup(q):
        q(f"""
        s_lshl_b32 s{S_T1}, s{S_Q2}, 2
        s_add_u32 s{S_T1}, s{S_T1}, s{S_WAVE}
        s_lshl_b32 s{S_T1}, s{S_T1}, 2
        s_add_u32 s{S_T1}, s{S_T1}, s{S_KQ}
        s_add_u32 s{S_F1I}, s{S_T1}, {C_F1}
        s_lshl_b32 s{S_T0}, s{S_T1}, 17
        s_add_u32 s{S_T0}, s{S_T0}, {WS_O}
        s_cmp_eq_u32 s{S_CT}, 0
        s_cselect_b32 s{S_BO}, 16384, 0
        s_mov_b32 s{S_B0}, s{S_BO}
        """)
        mksrd(q, S_B2, P_WS, f"s{S_T0}", 32 * 4096)
        tile_addr(q, T + 2, V_G4, V_TOK, V_RM)
        q(f"v_add_u32 v{V_L16B}, 4096, v{V_L16}")
        q(f"v_lshrrev_b32 v{T}, 1, v{V_G4}\nv_lshlrev_b32 v{T}, 6, v{T}\nv_and_b32 v{T+1}, 1, v{V_G4}\nv_lshl_add_u32 v{T}, v{T+1}, 4, v{T}")
    su = texts(setup)
    n4 = (len(su) + 3) // 4
    p.sync(lgkm=0)
    for t in range(4):
        f = {}
        if t < 3:
            put(f, ard(t + 1), [1, 2, 3, 4, 6, 7, 8, 10, 11, 12])
            put(f, [mksync(regs=[afr(t + 1, 0, 20)])], [19])
        p.extend(pack(mf(t), f, su[n4 * t:n4 * t + n4], budget=8))
    p("s_waitcnt vmcnt(0)")
    signal(p, S_F1I, T + 3, T + 4)
    stamp(p)
    for t in range(5):
        p(f"ds_read_b128 {v(V_GB+4*t,4)}, v{T} offset:{LDS_TABG+128*t}")
        p(f"ds_read_b128 {a(A_GA+4*t,4)}, v{T} offset:{LDS_TABG+128*t+32}")
    wp_reads(p, T + 2)
    p.sync(lgkm=0)
    p("s_barrier")
    p.extend(ard(4))
    def rest(q):
        wp_compute(q)
        mksrd(q, S_WS_, P_WS, WS_WP, 41 * 108 * 1024)
        q(f"s_cmp_lt_u32 s2, 216\ns_cselect_b32 s{S_WS_+2}, s{S_WS_+2}, 0")
        for r in range(1, 4):
            q(f"s_add_u32 s{S_T0}, s{S_KQ}, {r}\ns_and_b32 s{S_T0}, s{S_T0}, 3\ns_mul_i32 s{S_PO+r-1}, s{S_T0}, 7680\ns_add_u32 s{S_PO+r-1}, s{S_PO+r-1}, {(r-1)*2560}")
    p.extend(merge(texts(rest), wo_dma(5) + wo_dma(6) + wo_dma(7)))
    poll(p, T + 3, T + 4, 8)
    stamp(p)
    nxt = 8
    for t in range(4, nxt):
        p.extend(bl(t))
    p3_setup(p)
    def pk(r):
        return [f"v_cvt_pk_bf16_f32 v{20*r+d}, v{20*r+2*d}, v{20*r+2*d+1}" for d in range(10)] + \
               [f"buffer_store_dwordx4 {v(20*r,4)}, v{V_L16}, s[{S_PB}:{S_PB+3}], s{S_PO+r-1} offen sc1",
                f"buffer_store_dwordx4 {v(20*r+4,4)}, v{V_L16}, s[{S_PB}:{S_PB+3}], s{S_PO+r-1} offen offset:1024 sc1",
                f"buffer_store_dwordx2 {v(20*r+8,2)}, v{T+4}, s[{S_PB}:{S_PB+3}], s{S_PO+r-1} offen offset:2048 sc1"]
    A3 = [96, 116, 160]
    def ard2(t):
        L = []
        for x, (c, jj) in zip(ard(t), [(c, jj) for c in range(5) for jj in range(2)]):
            L.append(re.sub(r'a\[\d+:\d+\]', v(A3[t % 3] + 4 * c + 2 * jj, 2), x))
        return L
    p.sync(regs=[bfr2(4, 1, 12)], lgkm=0)
    n0 = 4
    NE = OPT.get('ne', 8)
    WPS = OPT.get('wps', 4)
    for t in range(4, 32):
        M = mf(t)
        if OPT.get('st3') and t % 4 == 0: stamp(p)
        f = {}
        if t == 19:
            put(f, ["s_barrier"], [0])
        if t < 31:
            put(f, ard(t + 1), [1, 1, 2, 3, 5, 5, 6, 7, 9, 9])
            if nxt < 32:
                if nxt < t + RB2 - 1 and t % 2 == 0 and nxt < 31:
                    spread(f, bl(nxt) + bl(nxt + 1), [0, 4, 8, 10, 11, 12]); nxt += 2
                else:
                    spread(f, bl(nxt), [4, 8, 11]); nxt += 1
            elif t == 30:
                put(f, [f"global_load_dwordx2 {v(V_X1+2*i,2)}, v{V_RM}, s[{P_X}:{P_X+1}] offset:{32*i}" for i in range(5)], [0, 4, 8, 10, 11])
            else:
                k = min(4, 4 + NE - n0)
                spread(f, [x for u in range(n0, n0 + k) for x in bl0(u)], [0, 4, 8, 11]); n0 += k
            if WPS <= t < WPS + 6:
                ws = wp_stores(S_WS_)
                ws = [ws[0:2], ws[2:4], ws[4:6], ws[6:8], ws[8:9], ['\n'.join(ws[9:])]][t - WPS]
                put(f, ws, [13] * len(ws))
            put(f, [mksync(regs=[afr(t + 1, 0, 20), bfr2(t + 1, 1, 12)])], [14])
        else:
            put(f, ard2(4), [0, 0, 1, 1, 2, 2, 3, 3, 4, 4])
        q = Prog()
        if t == WPS + 12:
            q(f"s_and_b32 s3, s2, 7\ns_lshl_b32 s3, s3, 2\ns_add_u32 s3, s3, s{S_WAVE}\ns_add_u32 s3, s3, {C_WP}")
            signal(q, 3, T, T + 1)
        if t == 24:
            shard_addr(q, V_CK, C_WP)
            q(f"v_lshrrev_b32 v{T+4}, 1, v{V_L16}")
        if t == 25:
            q(f"s_mul_i32 s3, s{S_GI}, 30720\ns_add_u32 s3, s3, {WS_PB}")
            mksrd(q, S_PB, P_WS, "s3", 30720)
        L = joined(q)
        order_gap(f)
        if t == 31:
            p.extend(pack(M, f, pk(1), budget=8, start=9))
        else:
            p.extend(pack(M, f, L, budget=8, start=10 if L else 0))
    stamp(p)
    p.extend(pk(2) + pk(3))
    nst = n0; nx5 = 0
    p.extend(ard2(5))
    for t in range(4, 32):
        M = [f"v_mfma_f32_16x16x32_bf16 {v(4*c,4)}, {v(A3[t%3]+4*c,4)}, {bfr2(t,0)}, {v(4*c,4)}" for c in range(5)]
        if t == nst:
            p.sync(regs=[bfr2(t, 0)])
            p(f"s_add_u32 s3, s{S_GI}, {C_G}")
            signal(p, 3, V_GC, V_GC + 1)
            p(f"global_load_dword v{V_CK+1}, v{V_CK}, s[{P_WS}:{P_WS+1}] sc1")
            stamp(p)
        if t == OPT.get('gr', 28):
            RB_ = 40
            p(f"s_mul_i32 s{S_PO}, s{S_KQ}, 7680\ns_add_u32 s{S_PO+1}, s{S_PO}, 2560\ns_add_u32 s{S_PO+2}, s{S_PO}, 5120")
            check_then_poll(p, V_GC, V_GC + 1, 4)
            for s_ in range(3):
                b = RB_ + 2 + 10 * s_
                p(f"""buffer_load_dwordx4 {v(b,4)}, v{V_L16}, s[{S_PB}:{S_PB+3}], s{S_PO+s_} offen sc1
                buffer_load_dwordx4 {v(b+4,4)}, v{V_L16}, s[{S_PB}:{S_PB+3}], s{S_PO+s_} offen offset:1024 sc1
                buffer_load_dwordx2 {v(b+8,2)}, v{T+4}, s[{S_PB}:{S_PB+3}], s{S_PO+s_} offen offset:2048 sc1""")
        p.sync(regs=[v(A3[t % 3], 20), bfr2(t, 0)])
        if OPT.get('st5') and t in (4, 8, 13, 18, 22, 26, 30): stamp(p)
        f = {}
        if t + 2 < 32: put(f, ard2(t + 2), [0, 0, 1, 1, 2, 2, 3, 3, 4, 4])
        if n0 < 32 and (n0 < nst + 8 or t >= nst):
            spread(f, bl0(n0), [2]); n0 += 1
        if t == OPT.get('gs', 23): put(f, [f"global_load_dword v{V_GC+1}, v{V_GC}, s[{P_WS}:{P_WS+1}] {OPT.get('pflag', 'sc1')}"], [4])
        order_gap(f)
        p.extend(pack(M, f, [], budget=8))
    assert n0 == 32
    if OPT.get('st5'): stamp(p)
    check_then_poll(p, V_CK, V_CK + 1, 32)
    p("s_barrier")
    if OPT.get('st5'): stamp(p)
    mksrd(p, S_O2, P_WS, WS_X1F, 64 * 40 * 1024)
    mksrd(p, S_O3, P_WS, WS_STATS, 8 * 2048 * 8)
    p(f"""
    v_lshrrev_b32 v{T}, 5, v{V_TOK}
    v_mul_u32_u24 v{T}, 40960, v{T}
    v_and_b32 v{T+1}, 31, v{V_TOK}
    v_lshl_add_u32 v{T}, v{T+1}, 4, v{T}
    v_lshrrev_b32 v{T+1}, 1, v{V_G4}
    v_lshl_add_u32 v{T}, v{T+1}, 9, v{T}
    v_and_b32 v{T+1}, 1, v{V_G4}
    v_lshl_add_u32 v{T+2}, v{T+1}, 10, v{T}
    v_lshl_add_u32 v{T}, v{T+1}, 3, v{T}
    v_lshlrev_b32 v{T+3}, 3, v{V_TOK}""")
    S_AO = 12
    p(f"""s_mul_i32 s{S_AO}, s{S_CT}, 5120
    s_add_u32 s98, s{S_AO}, 4096
    s_lshl_b32 s99, s{S_CT}, 14
    s_lshl_b32 s3, s{S_Q2}, 2
    s_add_u32 s3, s3, s{S_WAVE}
    s_lshl_b32 s3, s3, 1
    s_lshr_b32 s{S_T0}, s{S_KQ}, 1
    s_add_u32 s3, s3, s{S_T0}
    s_add_u32 s{S_F1I}, s3, {C_F2}
    s_mov_b32 s100, 0x00003f80
    s_mov_b32 s101, 0x3f800000
    s_mov_b32 s3, 0x3f803f80""")
    stamp(p)
    for g in range(OPT.get('pf3', 2)):
        p.extend(p3_dma(g))
    for i in range(20):
        p(f"v_accvgpr_read_b32 v{V_GA+i}, a{A_GA+i}")
    for s_ in range(3):
        b = RB_ + 2 + 10 * s_
        p.sync(regs=[v(b, 10)])
        for d in range(10):
            p(f"v_dot2_f32_bf16 v{2*d}, v{b+d}, s100, v{2*d}\nv_dot2_f32_bf16 v{2*d+1}, v{b+d}, s101, v{2*d+1}")
    p.extend(residual(V_GA, V_X1, V_X1))
    for d in range(10):
        p(f"v_mov_b32 v{20+d}, v{V_X1+d}")
    p("v_mov_b32 v46, 0\nv_mov_b32 v47, 0")
    for t in (0, 2):
        p(f"v_permlane16_swap_b32 v{20+2*t}, v{22+2*t}\nv_permlane16_swap_b32 v{21+2*t}, v{23+2*t}")
    p(f"""
    buffer_store_dwordx4 v[20:23], v{T+2}, s[{S_O2}:{S_O2+3}], s{S_AO} offen sc1
    buffer_store_dwordx4 v[24:27], v{T+2}, s[{S_O2}:{S_O2+3}], s{S_AO} offen offset:2048 sc1
    buffer_store_dwordx2 v[28:29], v{T}, s[{S_O2}:{S_O2+3}], s98 offen sc1
    """)
    for d in range(10):
        p(f"v_dot2_f32_bf16 v46, v{V_X1+d}, s3, v46\nv_dot2_f32_bf16 v47, v{V_X1+d}, v{V_X1+d}, v47")
    for sw in ('16', '32'):
        p(f"""v_mov_b32 v48, v46
        v_mov_b32 v49, v47
        v_permlane{sw}_swap_b32 v46, v48
        v_permlane{sw}_swap_b32 v47, v49
        v_add_f32 v46, v46, v48
        v_add_f32 v47, v47, v49""")
    p(f"""
    s_mov_b64 exec, 0xffff
    buffer_store_dwordx2 v[46:47], v{T+3}, s[{S_O3}:{S_O3+3}], s99 offen sc1
    s_mov_b64 exec, -1
    s_waitcnt vmcnt(0)
    """)
    signal(p, S_F1I, 0, 1)
    stamp(p)


S_A3, S_B3, S_H3 = 20, 24, 28
S_CG, S_AO3, S_W3, S_TL, S_BO3, S_F3I = 32, 33, 34, 35, 36, 37
KSB = 108 * 1024

def p3_setup(p):
    p(f"""
    s_and_b32 s{S_TL}, s2, 1
    s_lshl_b32 s{S_TL}, s{S_TL}, 3
    s_lshr_b32 s{S_T0}, s2, 5
    s_add_u32 s{S_TL}, s{S_TL}, s{S_T0}
    s_lshl_b32 s{S_TL}, s{S_TL}, 2
    s_add_u32 s{S_TL}, s{S_TL}, s{S_WAVE}
    s_bfe_u32 s{S_T2}, s2, 0x20001
    s_lshl_b32 s{S_F3I}, s{S_TL}, 2
    s_add_u32 s{S_F3I}, s{S_F3I}, s{S_T2}
    s_add_u32 s{S_F3I}, s{S_F3I}, {C_F3}
    s_bfe_u32 s{S_CG}, s2, 0x20003
    s_lshl_b32 s{S_T0}, s{S_T2}, 2
    s_add_u32 s{S_T0}, s{S_T0}, s{S_CG}
    s_mul_i32 s{S_T0}, s{S_T0}, 27
    s_lshr_b32 s{S_T0}, s{S_T0}, 2
    s_lshl_b32 s{S_T0}, s{S_T0}, 10
    s_add_u32 s{S_T0}, s{S_T0}, {WS_WP}
    s_mul_i32 s{S_AO3}, s{S_WAVE}, {KSB}
    s_lshl_b32 s{S_W3}, s{S_WAVE}, 12
    s_mov_b32 s{S_BO3}, 0
    s_mul_i32 s{S_T1}, s{S_TL}, 40960
    s_add_u32 s{S_T1}, s{S_T1}, {WS_X1F}
    """)
    mksrd(p, S_A3, P_WS, f"s{S_T0}", 40 * KSB + 7168)
    mksrd(p, S_B3, P_WS, f"s{S_T1}", 40960)
    p(f"""
    s_lshr_b32 s{S_T0}, s{S_TL}, 1
    s_mul_i32 s{S_T0}, s{S_T0}, {HH_RB}
    s_mul_i32 s{S_T2}, s{S_T2}, {14*4096}
    s_add_u32 s{S_T0}, s{S_T0}, s{S_T2}
    s_and_b32 s{S_T1}, s{S_TL}, 1
    s_lshl_b32 s{S_T1}, s{S_T1}, 11
    s_add_u32 s{S_T0}, s{S_T0}, s{S_T1}
    s_add_u32 s{S_T0}, s{S_T0}, {WS_HH}
    """)
    mksrd(p, S_H3, P_WS, f"s{S_T0}", 14 * 4096 - 2048)
    a_srd(p, S_A4, 56, 14, WS_WDF)
    p(f"s_mov_b32 s{S_AO4}, 0")

def p3_dma(g):
    return [f"s_add_u32 m0, s{S_W3}, {g*16384}"] + \
           [f"buffer_load_dwordx4 v{V_L16}, s[{S_A3}:{S_A3+3}], s{S_AO3} offen offset:{1024*i} sc1 lds" for i in range(4)] + \
           [f"s_add_u32 s{S_AO3}, s{S_AO3}, {4*KSB}"]

def afr4(j, i, n=4):
    return a(20 * (j % 11) + 4 * i, n)
def bfr(j, i, n=4): return v([140, 156, 172, 188, 80, 96, 112][j % 7] + 4 * i, n)

def phase34(p, outl):
    V_RD, V_LN, V_ST, V_E, T = 112, 115, 116, 132, 136
    V_X4, V_C3, V_OA = 212, 213, 216
    S_STT, S_HO, S_B4, S_BO4, S_X = 8, 12, 8, 19, 24
    A_A = 160
    NPF = OPT.get('pf3', 2)
    abuf = lambda n, i=0, k=4: a(A_A + 16 * (n % 3) + 4 * i, k)
    def ard(n):
        k, nt, t0 = (n, 4, 0) if n <= 40 else (n - 41, 3, 4)
        if k == 40:
            return [f"ds_read2st64_b32 {abuf(n,i,2)}, v{V_X4} offset0:{4*(t0+i)} offset1:{4*(t0+i)+1}\n"
                    f"ds_read2st64_b32 {a(A_A+16*(n%3)+4*i+2,2)}, v{V_X4} offset0:{4*(t0+i)+2} offset1:{4*(t0+i)+3}" for i in range(nt)]
        base = 4096 * k if n <= 40 else 7168 + 3072 * k
        r = base // 61440
        return [f"ds_read_b128 {abuf(n,i)}, v{V_RD+r} offset:{base-r*61440+1024*i}" for i in range(nt)]
    def b_load(t):
        L = [f"buffer_load_dwordx4 {a(4*t,4)}, v{V_L16}, s[{S_B3}:{S_B3+3}], s{S_BO3} offen offset:{(t%4)*1024} sc1"]
        if t % 4 == 3: L.append(f"s_add_u32 s{S_BO3}, s{S_BO3}, 4096")
        return L
    def dma_x():
        return [f"s_lshl_b32 s{S_W3}, s{S_WAVE}, 11", f"s_add_u32 s{S_AO3}, s{S_W3}, {40*KSB}", f"s_mov_b32 m0, s{S_W3}"] + \
               [f"buffer_load_dwordx4 v{V_L16}, s[{S_A3}:{S_A3+3}], s{S_AO3} offen offset:{1024*i} sc1 lds" for i in range(2)] + \
               [f"s_mul_i32 s{S_W3}, s{S_WAVE}, 3072", f"s_mul_i32 s{S_AO3}, s{S_WAVE}, {KSB}"]
    def dma_b(rho):
        return [f"s_add_u32 m0, s{S_W3}, {7168+12288*rho}"] + \
               [f"buffer_load_dwordx4 v{V_L16B}, s[{S_A3}:{S_A3+3}], s{S_AO3} offen offset:{1024*i} sc1 lds" for i in range(3)] + \
               [f"s_add_u32 s{S_AO3}, s{S_AO3}, {4*KSB}"]
    p("s_barrier")
    lane_id(p, V_LN)
    p(f"v_mov_b32 v{V_RD}, v{V_L16}\nv_add_u32 v{V_RD+1}, 61440, v{V_L16}\nv_add_u32 v{V_RD+2}, {2*61440}, v{V_L16}")
    mksrd(p, S_STT, P_WS, WS_STATS, 8 * 2048 * 8)
    p(f"""s_lshl_b32 s{S_T0}, s{S_TL}, 8
    s_add_u32 s{S_T1}, s{S_T0}, {WS_CNT + C_F2*256}
    v_mov_b32 v{T}, s{S_T1}
    v_and_b32 v{T+2}, 31, v{V_LN}
    v_lshlrev_b32 v{T+2}, 3, v{T+2}
    v_lshrrev_b32 v{V_X4}, 2, v{V_L16}""")
    p.extend(ard(0) + ard(1))
    NS = OPT.get('f2s', 8)
    for g in range(NPF, 10):
        if g == NS: p(f"global_load_dword v{T+1}, v{T}, s[{P_WS}:{P_WS+1}] sc1")
        p.extend(p3_dma(g))
    check_then_poll(p, T, T + 1, 16)
    stamp(p)
    NB0 = 6
    for t in range(NB0):
        p.extend(b_load(t))
    def st_loads(q):
        for i in range(8):
            q(f"buffer_load_dwordx2 {v(V_ST+2*i,2)}, v{T+2}, s[{S_STT}:{S_STT+3}], s{S_T0} offen sc1")
            if i < 7: q(f"s_add_u32 s{S_T0}, s{S_T0}, 16384")
    def st_math(q):
        q(f"v_add_f32 v{T}, v{V_ST}, v{V_ST+2}\nv_add_f32 v{T+1}, v{V_ST+1}, v{V_ST+3}")
        for i in range(2, 8):
            q(f"v_add_f32 v{T}, v{T}, v{V_ST+2*i}\nv_add_f32 v{T+1}, v{T+1}, v{V_ST+2*i+1}")
        q(f"""v_mul_f32 v{T}, {fhex(1.0/640)}, v{T}
        v_mul_f32 v{T+1}, {fhex(1.0/640)}, v{T+1}
        v_fma_f32 v{T+1}, -v{T}, v{T}, v{T+1}
        v_max_f32 v{T+1}, 0, v{T+1}""")
        round_bf16(q, T + 1, T + 1)
        q(f"v_add_f32 v{T+1}, {fhex(1e-5)}, v{T+1}")
        round_bf16(q, T + 1, T + 1)
        q(f"""v_sqrt_f32 v{T+1}, v{T+1}
        v_sub_f32 v{T}, 0, v{T}
        v_cvt_pk_bf16_f32 v{V_E}, v{T}, v{T+1}
        v_mov_b32 v{V_E+1}, v{V_E}
        v_mov_b32 v{V_E+2}, v{V_E}
        v_mov_b32 v{V_E+3}, v{V_E}
        v_and_b32 v{T+1}, 0xffff0000, v{V_E}
        v_rcp_f32 v{T+1}, v{T+1}
        v_and_b32 v{T+2}, 15, v{V_LN}
        v_lshlrev_b32 v{T+2}, 4, v{T+2}
        v_mul_f32 v{T}, v{T+1}, v{T+1}
        v_bfe_u32 v{T+3}, v{V_LN}, 4, 1
        v_lshl_add_u32 v{T+2}, v{T+3}, 10, v{T+2}
        v_lshrrev_b32 v{T+3}, 5, v{V_LN}
        v_lshl_add_u32 v{T+2}, v{T+3}, 8, v{T+2}""")
        for i in range(7):
            q(f"s_mul_i32 s{S_T0}, s{S_CG}, {4 if i < 4 else 3}\ns_add_u32 s{S_T0}, s{S_T0}, {i if i < 4 else 12 + i}")
            q(f"s_lshr_b32 s{S_T1}, s{S_T0}, 1\ns_lshl_b32 s{S_T1}, s{S_T1}, 12\ns_and_b32 s{S_T0}, s{S_T0}, 1\ns_lshl_b32 s{S_T0}, s{S_T0}, 9\ns_add_u32 s{S_HO+i}, s{S_T0}, s{S_T1}")
    def p4_setup(q):
        q(f"""s_mul_i32 s{S_T0}, s{S_Q2}, {4*HH_RB}
        s_lshl_b32 s{S_T1}, s{S_KQ}, 10
        s_add_u32 s{S_T0}, s{S_T0}, s{S_T1}
        s_add_u32 s{S_T0}, s{S_T0}, {WS_HH}""")
        mksrd(q, S_B4, P_WS, f"s{S_T0}", 4 * HH_RB - 3072)
        q(f"s_mul_i32 s{S_BO4}, s{S_WAVE}, {14*4096}")
        rot_addrs(q)
        q(f"""s_lshl_b32 s{S_T0}, s{S_Q2}, 3
        s_lshr_b32 s{S_T1}, s{S_KQ}, 1
        s_add_u32 s{S_T0}, s{S_T0}, s{S_T1}
        s_lshl_b32 s{S_T0}, s{S_T0}, 2
        s_add_u32 s{S_T0}, s{S_T0}, s{S_WAVE}
        s_lshl_b32 s{S_T0}, s{S_T0}, 8
        s_add_u32 s{S_T0}, s{S_T0}, {WS_CNT + C_F3*256}
        v_lshlrev_b32 v{V_C3}, 11, v{V_G4}
        v_add_u32 v{V_C3}, s{S_T0}, v{V_C3}
        v_and_b32 v{V_OA}, 1, v{V_G4}
        v_mul_u32_u24 v{V_OA}, 24, v{V_OA}
        v_add_u32 v{V_OA}, v{V_RM}, v{V_OA}""")
    def glu(i, packed):
        b = 16 * i
        if packed:
            L = [f"v_pk_mul_f32 {v(b+2*r,2)}, {v(b+2*r,2)}, {v(T,2)} op_sel_hi:[1,0]" for r in range(4)]
            L += [f"v_pk_mul_f32 {v(b+2*r,2)}, {v(b+2*r,2)}, {v(b+8+2*r,2)}" for r in range(4)]
        else:
            L = [f"v_mul_f32 v{b+r}, v{T}, v{b+r}" for r in range(8)] + [f"v_mul_f32 v{b+r}, v{b+r}, v{b+8+r}" for r in range(8)]
        L += [f"v_cvt_pk_bf16_f32 v{b+8+d}, v{b+2*d}, v{b+2*d+1}" for d in range(4)]
        L.append(f"buffer_store_dwordx4 {v(b+8,4)}, v{T+2}, s[{S_H3}:{S_H3+3}], s{S_HO+i} offen sc1 ;@hh")
        return L
    Q = [(3, texts(st_loads), 'st'), (7, dma_x(), 'dx')]
    Q += [({0: 7, 1: 7, 2: 15, 3: 15, 4: 23, 5: 23, 6: 23}.get(r, 31), dma_b(r), ('db', r)) for r in range(10)]
    nx = NB0
    NW = OPT.get('nw4', 7)
    for j in range(NW):
        Q.append((41 + 5 * j + 5, aloads(afr4, j, S_A4, S_AO4), 'w'))
    EB = OPT.get('eb', 76)
    flat = [(e, x, nm) for e, L, nm in Q for x in L]
    bars = {7: None, 15: None, 23: None, 31: None, 37: 2, 50: 5, 62: 9}
    if 4 * NPF < 10: bars[4 * NPF - 3] = None
    V = {20 + i: x for i, x in enumerate(chunks(texts(st_math), 12))}
    ga = [x for i in range(4) for x in glu(i, False)]
    V.update({42 + i: x for i, x in enumerate(chunks(ga, 8))})
    V.update({52 + i: x for i, x in enumerate(chunks(texts(p4_setup), 7))})
    issued = []
    credit = 0.0
    p.sync(regs=[a(0, 4), abuf(0, 0, 16)])
    for n in range(82):
        k, nt, t0 = (n, 4, 0) if n <= 40 else (n - 41, 3, 4)
        if OPT.get('st4') and n % 8 == 0: stamp(p)
        if n == OPT.get('es', 57):
            p.sync(tags=['hh'])
            signal(p, S_F3I, V_C3 + 1, V_C3 + 2)
        bsrc = a(4 * k, 4) if k < 40 else v(V_E, 4)
        M = [f"v_mfma_f32_32x32x16_bf16 {v(16*(t0+i),16)}, {abuf(n,i)}, {bsrc}, {'0' if k == 0 else v(16*(t0+i),16)}" for i in range(nt)]
        f = {}
        g0 = 0
        if n in bars:
            need = bars[n]
            if need is None:
                keep = len(issued) if n < 8 else None
            else:
                last = max(i for i, nm in enumerate(issued) if nm == ('db', need))
                assert issued.count(('db', need)) == 3
                keep = len(issued) - 1 - last
            put(f, ([mksync(dma_keep=keep)] if keep is not None else []) + ["s_barrier"], [0] * (2 if keep is not None else 1))
            g0 = 1
        if n + 2 < 82:
            rd = ard(n + 2)
            put(f, rd, [min(g0 + i * (nt - g0) // len(rd), nt - 1) for i in range(len(rd))])
        credit = min(credit + (1.55 if n <= 40 else 1.2), 2.5)
        gi = g0
        for rep in range(2 if n < 3 else 1):
            if nx < 40:
                put(f, b_load(nx), [gi] * len(b_load(nx))); nx += 1; gi += 1; credit -= 1
        while flat and flat[0][0] <= n - (1 if n in bars and flat[0][0] == n else 0):
            e, x, nm = flat[0]
            if x.startswith('buffer'):
                if credit < 1 or gi >= nt: break
                credit -= 0.5 if 'dwordx2' in x else 1
                put(f, [x], [gi]); gi += 1
                if ' lds' in x: issued.append(nm)
            else:
                put(f, [x], [max(gi - 1, 0)])
            flat.pop(0)
        if n == EB: put(f, [f"global_load_dword v{V_C3+1}, v{V_C3}, s[{P_WS}:{P_WS+1}] sc1"], [nt - 1])
        if n < 81:
            k1 = n + 1 if n + 1 <= 40 else n - 40
            regs = [abuf(n + 1, 0, 16 if n + 1 <= 40 else 12)] + ([a(4 * k1, 4)] if n + 1 < 40 else [])
            put(f, [mksync(regs=regs)], [nt - 1])
        p.extend(pack(M, f, V.get(n, []), verbose=OPT.get('verbose') and f'p3_{n}'))
    for e, x, nm in flat:
        p.add(x)
    stamp(p)
    NE4 = OPT.get('ne4', 3)
    p(f"v_cmp_gt_u32 vcc, 4, v{V_C3+1}\ns_cbranch_vccnz {NM}_p4late")
    for j in range(NE4):
        p.extend(bloads(j, S_B4, S_BO4))
    for i in range(4, 7):
        p.extend(glu(i, True))
    p(f"{NM}_p4go:")
    q = Prog()
    q(f"{NM}_p4late:\ns_nop 15")
    for i in range(4, 7):
        q.extend(glu(i, True))
    poll(q, V_C3, V_C3 + 1, 4)
    for j in range(NE4):
        q.extend(bloads(j, S_B4, S_BO4))
    q(f"s_waitcnt vmcnt(0)\ns_branch {NM}_p4go")
    q.finalize()
    outl.append(q)
    mksrd(p, S_X, P_OUT, None, SZ_X)
    p(f"s_add_u32 s{S_F3I}, s{S_F3I}, 256\nv_add_u32 v{V_C3}, 65536, v{V_C3}")
    nw, nb = NW, NE4
    SG = OPT.get('sg4', 2); LC = OPT.get('lc4', 7)
    def extra(t):
        nonlocal nw, nb
        L = []
        if nb < 8:
            L += bloads(nb, S_B4, S_BO4); nb += 1
        if t == LC - 1: L.append(f"global_load_dword v{V_C3+1}, v{V_C3}, s[{P_WS}:{P_WS+1}] sc1")
        for rep in range(1 if L and t != LC - 1 else 2):
            if nw < 14 and nw - 11 < t:
                L += aloads(afr4, nw, S_A4, S_AO4); nw += 1
        if t >= LC:
            for rep in range(2):
                if nb < 14 and nb - 7 < t:
                    L += bloads(nb, S_B4, S_BO4); nb += 1
        if t == 10: L.append("s_barrier")
        return L
    def pre(t):
        nonlocal nb
        assert nw > t and (nb > t or t == LC)
        if t == SG:
            p.sync(tags=['hh'])
            signal(p, S_F3I, V_C3 + 1, V_C3 + 2)
            stamp(p)
        if t == LC:
            check_then_poll(p, V_C3, V_C3 + 1, 4)
            stamp(p)
            for rep in range(2):
                p.extend(bloads(nb, S_B4, S_BO4)); nb += 1
    gemm_steps(p, 14, afr4, extra, pre)
    assert nw == 14 and nb == 14
    stamp(p)
    reduce_tile(p, [])
    p.extend(residual(V_GB, V_X1, 20))
    for t in (0, 2):
        p(f"v_permlane16_swap_b32 v{20+2*t}, v{22+2*t}\nv_permlane16_swap_b32 v{21+2*t}, v{23+2*t}")
    p(f"buffer_store_dwordx4 v[20:23], v{V_OA}, s[{S_X}:{S_X+3}], 0 offen")
    p(f"buffer_store_dwordx4 v[24:27], v{V_OA}, s[{S_X}:{S_X+3}], 0 offen offset:64")
    p(f"buffer_store_dwordx2 v[28:29], v{V_RM}, s[{S_X}:{S_X+3}], 0 offen offset:128")


def chunks(L, n):
    k = (len(L) + n - 1) // n
    return [L[i * k:(i + 1) * k] for i in range(n)]


def gen_mega(opt=None):
    global nstamp, npoll
    nstamp = 0; npoll = 0
    OPT.clear(); OPT.update(opt or {})
    p = Prog()
    outl = []
    p(f"s_cmp_ge_u32 s2, 256\ns_cbranch_scc1 {NM}_end")
    stamp(p)
    if OPT.get('probe'): p("s_memrealtime s[96:97]\ns_waitcnt lgkmcnt(0)\ns_mov_b32 s95, s96")
    phase0(p)
    phase1(p, outl)
    phase2(p)
    phase34(p, outl)
    if OPT.get('stamps'):
        p("s_waitcnt vmcnt(0)")
        p(f"{TIMER()} s[{S_ST}:{S_ST+1}]\ns_waitcnt lgkmcnt(0)")
        p(f"s_lshl_b32 s3, s2, 2\ns_add_u32 s3, s3, s{S_WAVE}\ns_lshl_b32 s3, s3, 7\ns_add_u32 s3, s3, {WS_STAMP}\nv_mov_b32 v0, s3")
        p(f"v_accvgpr_write_b32 a{224+nstamp}, s{S_ST}")
        for i in range(8):
            p(f"global_store_dwordx4 v0, a[{224+4*i}:{227+4*i}], s[{P_WS}:{P_WS+1}] offset:{16*i}")
    if OPT.get('probe'):
        if 'pseg' in OPT:
            p(f"v_accvgpr_read_b32 v0, a{224+OPT['pseg']}\ns_nop 1\nv_readfirstlane_b32 s95, v0")
        p(f"""s_cmp_lg_u32 s2, {OPT.get('pwg', 0)}
        s_cbranch_scc1 {NM}_end
        {NM}_probe:
        s_memrealtime s[96:97]
        s_waitcnt lgkmcnt(0)
        s_sub_u32 s96, s96, s95
        s_cmp_lt_u32 s96, {OPT['probe']*100}
        s_cbranch_scc1 {NM}_probe""")
    if OPT.get('dbgout'):
        p(f"s_cmp_lg_u32 s2, 77\ns_cbranch_scc1 {NM}_end\ns_cmp_lg_u32 s{S_WAVE}, 0\ns_cbranch_scc1 {NM}_end")
        p("v_accvgpr_read_b32 v1, a224\nv_mov_b32 v0, 0")
        sel = [1, 2, 3, 4, 5, 6, 8, 9, 10, 11, 12, 13, 15, 17]
        for n_, k_ in enumerate(sel):
            w_ = n_ + 1 if n_ < 7 else n_ + 2
            p(f"v_accvgpr_read_b32 v2, a{224+k_}\nv_sub_u32 v2, v2, v1\nglobal_store_dword v0, v2, s[{P_DBG}:{P_DBG+1}] offset:{4*w_}")
    p(f"{NM}_end:\ns_endpgm")
    p.finalize(verbose=OPT.get('nopverbose'))
    for q in outl:
        p.items += q.items
    p(f'{NM}_codeend:')
    if not OPT.get('noalign'): align_pass(p)
    return p


NAME = 'adaLN_cond__sliding_block_cached__glu_gated_bilinear__prompt'
def build_file(out, opt=None):
    p = gen_mega(opt)
    head = open('cdna_kernels/' + NAME + '.s.ref').read().split('; Override launch')[0]
    kn = NAME + '_kernel'
    c, d = kernel_text(kn, p, force_vgpr=512)
    if (opt or {}).get('list'):
        launch = f"; @launch kernel={kn} grid=(256,1,1) block=(256,1,1) lds={LDS_TOTAL}\n"
    else:
        launch = f"; @launch grid=(256,1,1) block=(256,1,1) lds={LDS_TOTAL}\n"
    open(out, 'w').write(head + launch + '.amdgcn_target "amdgcn-amd-amdhsa--gfx950"\n' + c + d)
    return p

if __name__ == '__main__':
    opt = {}
    for k in sys.argv[2:]:
        if '=' in k:
            a_, b_ = k.split('='); opt[a_] = int(b_) if b_.isdigit() else b_.replace('+', ' ')
        else: opt[k] = 1
    p = build_file(sys.argv[1], opt)
    print(p.stats(), p.maxregs(), 'stamps', nstamp)
```
